```python
import torch

def _softmax(x, axis=-1):
    return torch.softmax(x, dim=axis)

def _gelu(x):
    return torch.nn.functional.gelu(x, approximate='tanh')

def _silu(x):
    return torch.nn.functional.silu(x)

def _sigmoid(x):
    return torch.sigmoid(x)

def _layernorm(x, axis=-1, eps=1e-05):
    m = x.mean(dim=axis, keepdim=True)
    v = x.var(dim=axis, keepdim=True, unbiased=False)
    return (x - m) / torch.sqrt(v + eps)

def _scatter_add(tgt, idx, src, axis=0):
    return tgt.clone().index_add_(axis, idx, src)

def _segment_sum(src, seg, n):
    out = torch.zeros((n,) + src.shape[1:], dtype=src.dtype)
    return out.index_add_(0, seg, src)

def _pad(x, pw):
    flat = tuple((v for pair in reversed(pw) for v in pair))
    return torch.nn.functional.pad(x, flat)
kernel_name = 'parallel_sum__memory_aug_recurrent_mem_tr__mixer_gmlp__prompt'

def setup_inputs():

    _w = lambda a: (lambda t: t.to(torch.bfloat16) if t.is_floating_point() else t)(torch.as_tensor(a))

    def _A_setup():
        B, S, Dm = (1, 2048, 512)
        H, Dh = (32, 128)
        M, seg = (8, 32)
        seg = min(seg, S)
        S = S // seg * seg
        return {'x': _w((lambda *s: torch.randn(*s, dtype=torch.bfloat16) * 0.05)(B, S, Dm)), 'mem0': _w((lambda *s: torch.randn(*s, dtype=torch.bfloat16) * 1.6)(B, M, Dm)), 'Wq': _w((lambda *s: torch.randn(*s, dtype=torch.bfloat16) * 0.8)(Dm, H, Dh) * Dm ** (-0.5)), 'Wk': _w((lambda *s: torch.randn(*s, dtype=torch.bfloat16) * 0.8)(Dm, H, Dh) * Dm ** (-0.5)), 'Wv': _w((lambda *s: torch.randn(*s, dtype=torch.bfloat16) * 1.6)(Dm, H, Dh) * Dm ** (-0.5)), 'Wo': _w((lambda *s: torch.randn(*s, dtype=torch.bfloat16) * 1.6)(H, Dh, Dm) * (H * Dh) ** (-0.5)), 'seg_len': seg}
    _A_in = _A_setup()

    def _B_setup():
        B, S, D, F = (1, 2048, 512, 1792)
        Fh = F // 2
        return {'x': _w((lambda *s: torch.randn(*s, dtype=torch.bfloat16) * 0.05)(B, S, D)), 'w_in': _w((lambda *s: torch.randn(*s, dtype=torch.bfloat16) * 0.2)(D, 2 * Fh)), 'w_sp': _w(0.01 * (lambda *s: torch.randn(*s, dtype=torch.bfloat16) * 0.2)(S, S)), 'b_sp': _w(1.0 + 0.01 * (lambda *s: torch.randn(*s, dtype=torch.bfloat16) * 0.05)(S)), 'w_out': _w((lambda *s: torch.randn(*s, dtype=torch.bfloat16) * 0.05)(Fh, D))}
    _B_in = _B_setup()
    return {'A_x': _A_in['x'], 'A_mem0': _A_in['mem0'], 'A_Wq': _A_in['Wq'], 'A_Wk': _A_in['Wk'], 'A_Wv': _A_in['Wv'], 'A_Wo': _A_in['Wo'], 'A_seg_len': _A_in['seg_len'], 'B_x': _B_in['x'], 'B_w_in': _B_in['w_in'], 'B_w_sp': _B_in['w_sp'], 'B_b_sp': _B_in['b_sp'], 'B_w_out': _B_in['w_out']}

def reference(A_x, A_mem0, A_Wq, A_Wk, A_Wv, A_Wo, A_seg_len, B_x, B_w_in, B_w_sp, B_b_sp, B_w_out):

    def _A_ref(x, mem0, Wq, Wk, Wv, Wo, seg_len):
        B, S, Dm = x.shape
        H, Dh = (Wq.shape[1], Wq.shape[2])
        M = mem0.shape[1]
        scale = Dh ** (-0.5)
        n_seg = S // seg_len
        L = M + seg_len
        idx = torch.arange(L)
        mask = (idx[:, None] < M) | (idx[:, None] >= idx[None, :])
        mem = mem0
        outs = []
        for s in range(n_seg):
            xs = x[:, s * seg_len:(s + 1) * seg_len, :].clone()
            h = torch.concatenate([mem, xs], axis=1)
            q = torch.einsum('btd,dhe->bhte', h, Wq)
            k = torch.einsum('btd,dhe->bhte', h, Wk)
            v = torch.einsum('btd,dhe->bhte', h, Wv)
            scores = torch.einsum('bhqe,bhke->bhqk', q, k) * scale
            scores = torch.where(mask[None, None], scores, -1000000000.0)
            p = _softmax(scores, axis=-1)
            o = torch.einsum('bhqk,bhke->bhqe', p, v)
            o = torch.einsum('bhte,hed->btd', o, Wo)
            mem = o[:, :M, :].clone()
            outs.append(o[:, M:, :])
        return torch.concatenate(outs, axis=1)

    def _B_ref(x, w_in, w_sp, b_sp, w_out):
        B, S, D = x.shape
        F = w_in.shape[-1]
        Fh = F // 2
        z = _gelu(torch.einsum('bsd,df->bsf', x, w_in))
        z1 = z[..., :Fh].clone()
        z2 = _layernorm(z[..., Fh:], axis=-1)
        g = torch.einsum('ts,bsf->btf', w_sp, z2) + b_sp[None, :, None]
        return torch.einsum('bsf,fd->bsd', z1 * g, w_out)
    x = A_x
    xn = _layernorm(x, axis=-1)
    return x + _A_ref(xn, A_mem0, A_Wq, A_Wk, A_Wv, A_Wo, A_seg_len) + _B_ref(xn, B_w_in, B_w_sp, B_b_sp, B_w_out)
```

```python
from dsl import *
from layout import *

LDS_WO = 0
LDS_KX = 131072
LDS_MEM = LDS_KX + 8192
LDS_QK = LDS_MEM + 8192
QP = 272
LDS_K2 = 8 * QP
LDS_O = LDS_QK + 4608
LDS_KX2 = LDS_O + 2048
LDS_DUMMY = LDS_KX2 + 8192
LDS_END = LDS_DUMMY + 256

S_WQ, S_WK, S_WV, S_WO, S_WS = 8, 12, 16, 20, 24
S_H, S_W, S_STEP = 28, 29, 30
S_SLOT = 32
S_SELLO, S_SELHI = 40, 41
S_T0, S_T1, S_T2 = 42, 43, 44
S_MEMOFF, S_PARTOFF, S_KVOFF, S_KMOFF, S_VMOFF = 45, 46, 47, 48, 49
S_LO = 50
S_CNT = 52
S_C = 53
S_SENT = 54
S_EXEC = 56
S_TM = 58
S_DBG = 66
S_KXB = 68
S_KXN = 69
S_PHASE = 70
S_CNT2 = 71

V_LANE16 = 1
V_POLL = 2
V_MEMW = 3
V_MEMR = 4
V_IDX = 7
V_QW = 8
V_QR = 9
V_KMX = 10
V_OW = 11
V_PST = 12
V_SELV = 13
V_MST = 14
V_WOR = 15
V_A = 16
V_ACC = 48
V_QF = 72
V_KF = 88
V_S = 104
V_VX = 116
V_T = 124
V_WV = 128

def wreg(mat, par, j, n=8):
    idx = (par * 8 + j) * 8
    if mat == 0: return ar(idx, n)
    if mat == 1: return ar(128 + idx, n)
    return vr(V_WV + idx, n)

def chain_setup(A):
    srd(A, S_WQ, 72, 4 << 20)
    srd(A, S_WK, 74, 4 << 20)
    srd(A, S_WV, 76, 4 << 20)
    srd(A, S_WO, 78, 4 << 20)
    srd(A, S_WS, 80, WS_SIZE)
    A(f"""
    v_lshrrev_b32 v124, 6, v0
    v_and_b32 v125, 63, v0            ; lane
    s_nop 0
    v_readfirstlane_b32 s{S_W}, v124
    v_and_b32 v126, 15, v125          ; n16
    v_lshrrev_b32 v127, 4, v125       ; g
    v_lshlrev_b32 v{V_LANE16}, 4, v125
    s_mov_b32 s{S_SELLO}, 0x05040100
    s_mov_b32 s{S_SELHI}, 0x07060302
    s_mov_b32 s{S_LO}, 0x00ff00ff
    s_mov_b32 s{S_LO+1}, 0x00ff00ff
    s_mov_b32 s{S_C}, 0x3e0293ee
    s_mov_b32 s{S_SENT}, 0xfffffffe
    """)
    A(f"""
    s_lshl_b32 s{S_T0}, s{S_W}, 11
    v_lshlrev_b32 v{V_POLL}, 6, v126
    v_lshl_add_u32 v{V_POLL}, v127, 4, v{V_POLL}
    v_add_u32 v{V_POLL}, s{S_T0}, v{V_POLL}
    """)
    A(f"""
    s_lshl_b32 s{S_T0}, s{S_W}, 11
    s_add_u32 s{S_T0}, s{S_T0}, {LDS_MEM}
    v_add_u32 v{V_MEMW}, s{S_T0}, v{V_LANE16}
    """)
    for jj in range(3):
        A(f"""
        s_lshl_b32 s{S_T0}, s{S_W}, 1
        s_add_u32 s{S_T0}, s{S_T0}, {2*jj+2}
        s_and_b32 s{S_T0}, s{S_T0}, 7
        s_lshl_b32 s{S_T0}, s{S_T0}, 10
        s_add_u32 s{S_T0}, s{S_T0}, {LDS_MEM}
        v_add_u32 v{V_MEMR+jj}, s{S_T0}, v{V_LANE16}
        """)
    A(f"""
    v_mov_b32 v{V_IDX}, 0xeeee
    v_mov_b32 v120, 0x4444
    v_cndmask_b32 v{V_IDX}, v{V_IDX}, v120, s[{S_LO}:{S_LO+1}]
    """)
    A(f"""
    v_and_b32 v120, 1, v127
    v_lshlrev_b32 v120, 2, v120
    v_lshrrev_b32 v121, 1, v127
    v_add_u32 v120, v120, v121         ; ra
    v_and_b32 v121, 7, v126
    v_lshrrev_b32 v121, 1, v121
    v_lshlrev_b32 v121, 4, v121        ; gq*16
    v_lshrrev_b32 v122, 3, v126
    v_lshl_add_u32 v121, v122, 3, v121 ; + half*8
    v_and_b32 v122, 1, v126
    v_lshl_add_u32 v121, v122, 2, v121 ; + (n16&1)*4
    v_mul_u32_u24 v{V_QW}, {QP}, v120
    v_add_u32 v{V_QW}, v{V_QW}, v121
    s_lshl_b32 s{S_T0}, s{S_W}, 6
    s_add_u32 s{S_T0}, s{S_T0}, {LDS_QK}
    v_add_u32 v{V_QW}, s{S_T0}, v{V_QW}
    v_lshl_add_u32 v{V_KMX}, v120, 6, v121
    s_lshl_b32 s{S_T0}, s{S_W}, 9
    v_add_u32 v{V_KMX}, s{S_T0}, v{V_KMX}
    v_and_b32 v122, 7, v126
    v_mul_u32_u24 v{V_QR}, {QP}, v122
    v_lshl_add_u32 v{V_QR}, v127, 4, v{V_QR}
    v_add_u32 v{V_QR}, {LDS_QK}, v{V_QR}
    s_lshr_b32 s{S_T0}, s{S_W}, 1
    s_lshl_b32 s{S_T0}, s{S_T0}, 10
    s_and_b32 s{S_T1}, s{S_W}, 1
    s_lshl_b32 s{S_T1}, s{S_T1}, 3
    s_add_u32 s{S_T0}, s{S_T0}, s{S_T1}
    s_add_u32 s{S_T0}, s{S_T0}, {LDS_O}
    v_add_u32 v{V_OW}, s{S_T0}, v{V_LANE16}
    v_lshlrev_b32 v{V_PST}, 15, v120
    v_lshl_add_u32 v{V_PST}, v126, 4, v{V_PST}
    s_lshl_b32 s{S_T0}, s{S_W}, 13
    s_lshl_b32 s{S_T1}, s{S_H}, 8
    s_add_u32 s{S_T0}, s{S_T0}, s{S_T1}
    v_add_u32 v{V_PST}, s{S_T0}, v{V_PST}
    ; SELV = 0x3f80 << (16*(n16&1))
    v_and_b32 v122, 1, v126
    v_lshlrev_b32 v122, 4, v122
    v_mov_b32 v{V_SELV}, 0x3f80
    v_lshlrev_b32 v{V_SELV}, v122, v{V_SELV}
    ; MST = (2w' + n16/8)*1024 + (i + 8*(g&1))*64 + ((n16/2)&3)*16 + (n16&1)*8 ; i = h>>2, w' = h&3
    v_lshrrev_b32 v122, 3, v126
    v_lshlrev_b32 v{V_MST}, 10, v122
    v_and_b32 v122, 1, v127
    v_lshl_add_u32 v{V_MST}, v122, 9, v{V_MST}
    v_bfe_u32 v122, v126, 1, 2
    v_lshl_add_u32 v{V_MST}, v122, 4, v{V_MST}
    v_and_b32 v122, 1, v126
    v_lshl_add_u32 v{V_MST}, v122, 3, v{V_MST}
    s_and_b32 s{S_T0}, s{S_H}, 3
    s_lshl_b32 s{S_T0}, s{S_T0}, 11
    s_lshr_b32 s{S_T1}, s{S_H}, 2
    s_lshl_b32 s{S_T1}, s{S_T1}, 6
    s_add_u32 s{S_T0}, s{S_T0}, s{S_T1}
    v_add_u32 v{V_MST}, s{S_T0}, v{V_MST}
    s_lshl_b32 s{S_T0}, s{S_W}, 15
    v_add_u32 v{V_WOR}, s{S_T0}, v{V_LANE16}
    """)
    for j in range(8):
        A(f"""
        s_lshl_b32 s{S_T0}, s{S_W}, 1
        s_add_u32 s{S_T0}, s{S_T0}, {j}
        s_and_b32 s{S_T0}, s{S_T0}, 7
        s_lshl_b32 s{S_SLOT+j}, s{S_T0}, 19     ; 64*u*8192
        """)
    A(f"""
    v_lshlrev_b32 v120, 16, v127
    v_lshl_add_u32 v120, v126, 2, v120
    s_lshl_b32 s{S_T0}, s{S_H}, 8
    s_lshl_b32 s{S_T1}, s{S_W}, 6
    s_add_u32 s{S_T0}, s{S_T0}, s{S_T1}
    v_add_u32 v120, s{S_T0}, v120
    ; v121 = (h*128 + 32*(g&1) + 8*(g>>1))*1024 + (128w + 8 n16)*2   (Wo)
    v_and_b32 v121, 1, v127
    v_lshlrev_b32 v121, 15, v121
    v_lshrrev_b32 v122, 1, v127
    v_lshl_add_u32 v121, v122, 13, v121
    v_lshl_add_u32 v121, v126, 4, v121
    s_lshl_b32 s{S_T0}, s{S_H}, 17
    s_lshl_b32 s{S_T1}, s{S_W}, 8
    s_add_u32 s{S_T0}, s{S_T0}, s{S_T1}
    v_add_u32 v121, s{S_T0}, v121
    """)

def chain_load_weights(A):
    batches = [(m, j) for m in range(3) for j in range(8)]
    NB = 3
    def bank(b): return 16 + (b % 4) * 16
    srds = [S_WQ, S_WK, S_WV]
    def issue(b):
        m, j = batches[b]
        for rr in range(8):
            for e in range(2):
                rowoff = 32 * (rr // 4) + 4 * (rr % 2) + 2 * ((rr % 4) // 2) + e
                A(f"s_add_u32 s{S_T0 + (rr*2+e) % 3}, s{S_SLOT+j}, {rowoff*8192}")
                A(f"buffer_load_dword v{bank(b) + rr*2 + e}, v120, s[{srds[m]}:{srds[m]+3}], s{S_T0 + (rr*2+e) % 3} offen")
    def process(b):
        m, j = batches[b]
        for rr in range(8):
            e0 = bank(b) + rr * 2; e1 = e0 + 1
            for par in range(2):
                sel = S_SELLO if par == 0 else S_SELHI
                idx = (par * 8 + j) * 8 + rr
                if m == 2:
                    A(f"v_perm_b32 v{V_WV+idx}, v{e1}, v{e0}, s{sel}")
                else:
                    t = 84 + (rr * 2 + par) % 8
                    A(f"v_perm_b32 v{t}, v{e1}, v{e0}, s{sel}")
                    A(f"v_accvgpr_write_b32 a{m*128+idx}, v{t}")
    n = len(batches)
    for b in range(NB): issue(b)
    for b in range(n):
        if b + NB < n:
            issue(b + NB)
            A(f"s_waitcnt vmcnt({16*NB})")
        else:
            A(f"s_waitcnt vmcnt({16*(n-1-b)})")
        process(b)
    groups = [(ups, half) for ups in range(2) for half in range(2)]
    def obank(gi): return 16 + (gi % 2) * 32
    def oissue(gi):
        ups, half = groups[gi]
        for q in range(4):
            rr = 4 * half + q
            for e in range(2):
                row = 64 * ups + 16 * (rr // 4) + 4 * ((rr % 4) // 2) + 2 * (rr % 2) + e
                st = S_T0 + (q * 2 + e) % 3
                A(f"s_mov_b32 s{st}, {row*1024}")
                A(f"buffer_load_dwordx4 {vr(obank(gi) + (q*2+e)*4, 4)}, v121, s[{S_WO}:{S_WO+3}], s{st} offen")
    def oprocess(gi):
        ups, half = groups[gi]
        for T in range(8):
            o = 84 + (T % 2) * 4
            for q in range(4):
                e0 = obank(gi) + (q * 2) * 4 + T // 2
                e1 = obank(gi) + (q * 2 + 1) * 4 + T // 2
                sel = S_SELLO if T % 2 == 0 else S_SELHI
                A(f"v_perm_b32 v{o+q}, v{e1}, v{e0}, s{sel}")
            A(f"ds_write_b128 v{V_WOR}, {vr(o,4)} offset:{((T*2+ups)*2+half)*1024}")
    oissue(0); oissue(1)
    for gi in range(4):
        A(f"s_waitcnt vmcnt({8 if gi < 3 else 0})")
        oprocess(gi)
        if gi + 2 < 4:
            A("s_nop 1")
            oissue(gi + 2)
    A("s_waitcnt lgkmcnt(0)")

def smf(A, acc, a, b):
    A(f"v_smfmac_f32_16x16x64_bf16 {vr(acc,4)}, {vr(a,4)}, {b}, v{V_IDX}")

def kx_prefetch(A, sbase, kvoff_extra, ldflags=""):
    A(f"""
    s_lshl_b32 s{S_T0}, s{S_W}, 11
    s_add_u32 s{S_T1}, s{S_T0}, s{sbase}
    s_mov_b32 m0, s{S_T1}
    s_add_u32 s{S_T0}, s{S_T0}, s{S_KVOFF}
    s_add_u32 s{S_T0}, s{S_T0}, {kvoff_extra}
    buffer_load_dwordx4 v{V_LANE16}, s[{S_WS}:{S_WS+3}], s{S_T0} offen lds {ldflags}
    buffer_load_dwordx4 v{V_LANE16}, s[{S_WS}:{S_WS+3}], s{S_T0} offen offset:1024 lds {ldflags}
    """)
def vx_load(A, ldflags=""):
    A(f"""
    s_lshl_b32 s{S_T0}, s{S_W}, 11
    s_add_u32 s{S_T0}, s{S_T0}, s{S_KVOFF}
    s_add_u32 s{S_T0}, s{S_T0}, 8192
    buffer_load_dwordx4 {vr(V_VX,4)}, v{V_LANE16}, s[{S_WS}:{S_WS+3}], s{S_T0} offen {ldflags}
    buffer_load_dwordx4 {vr(V_VX+4,4)}, v{V_LANE16}, s[{S_WS}:{S_WS+3}], s{S_T0} offen offset:1024 {ldflags}
    """)

NST = 10
def chain_loop(A, st="", nsteps=64, timeout=20000, timing=False, stamps=False, rsleep=0, msleep=0):
    def stamp(i):
        if stamps: A(f"s_memtime s[{82+2*i}:{83+2*i}]")
    Q0, Q1, K0, K1, V0, V1 = [V_ACC + 4 * i for i in range(6)]
    L_step = A.newlabel("CH_step"); L_poll = A.newlabel("CH_poll"); L_red = A.newlabel("CH_red")
    L_done = A.newlabel("CH_done"); L_pok = A.newlabel("CH_pok"); L_rok = A.newlabel("CH_rok")
    A(f"""
    s_mov_b32 s{S_STEP}, 0
    s_mov_b32 s{S_PHASE}, 0
    s_mov_b32 s{S_MEMOFF}, {WS_MEMF}
    s_mov_b32 s{S_PARTOFF}, {WS_PART}
    s_lshl_b32 s{S_T0}, s{S_H}, 14
    s_add_u32 s{S_KVOFF}, s{S_T0}, {WS_KV}
    s_lshl_b32 s{S_T0}, s{S_H}, 11
    s_add_u32 s{S_KMOFF}, s{S_T0}, {WS_KM}
    s_lshl_b32 s{S_T0}, s{S_H}, 12
    s_lshl_b32 s{S_T1}, s{S_W}, 10
    s_add_u32 s{S_T0}, s{S_T0}, s{S_T1}
    s_add_u32 s{S_VMOFF}, s{S_T0}, {WS_VM}
    """)
    A(f"s_mov_b32 s{S_KXB}, {LDS_KX}\ns_mov_b32 s{S_KXN}, {LDS_KX2}")
    kx_prefetch(A, S_KXB, 0)
    A("s_barrier")
    if timing:
        A(f"s_memtime s[{S_TM}:{S_TM+1}]")
    A.label(L_step)
    stamp(0)
    for i in range(24):
        A(f"v_mov_b32 v{V_ACC+i}, 0")
    A(f"s_mov_b32 s{S_CNT2}, 0")
    if msleep:
        L_ns = A.newlabel("CH_ns")
        A(f"s_cmp_eq_u32 s{S_W}, 0\ns_cbranch_scc1 {L_ns}\ns_sleep {msleep}")
        A.label(L_ns)
    A.label(L_poll)
    A(f"""
    buffer_load_dwordx4 {vr(V_A,4)}, v{V_POLL}, s[{S_WS}:{S_WS+3}], s{S_MEMOFF} offen sc1
    buffer_load_dwordx4 {vr(V_A+4,4)}, v{V_POLL}, s[{S_WS}:{S_WS+3}], s{S_MEMOFF} offen offset:1024 sc1
    s_add_u32 s{S_CNT2}, s{S_CNT2}, 1
    s_cmp_gt_u32 s{S_CNT2}, {timeout}
    s_cbranch_scc1 {L_pok}
    s_waitcnt vmcnt(0)
    v_max3_u32 v{V_T}, v{V_A}, v{V_A+1}, v{V_A+2}
    v_max3_u32 v{V_T+1}, v{V_A+3}, v{V_A+4}, v{V_A+5}
    v_max3_u32 v{V_T}, v{V_T}, v{V_A+6}, v{V_A+7}
    v_max_u32 v{V_T}, v{V_T}, v{V_T+1}
    v_cmp_eq_u32 vcc, -1, v{V_T}
    s_nop 1
    s_cbranch_vccnz {L_poll}
    """)
    A.label(L_pok)
    stamp(1)
    A(f"""
    s_waitcnt vmcnt(0)
    ds_write_b128 v{V_MEMW}, {vr(V_A,4)}
    ds_write_b128 v{V_MEMW}, {vr(V_A+4,4)} offset:1024
    """)
    smf(A, Q0, V_A, wreg(0, 0, 0)); smf(A, Q1, V_A, wreg(0, 1, 0))
    A("s_waitcnt lgkmcnt(0)\ns_barrier")
    vx_load(A)
    kx_prefetch(A, S_KXN, 32 * 16384)
    A(f"""
    s_mov_b32 m0, {LDS_DUMMY}
    s_add_u32 s{S_T0}, s{S_MEMOFF}, 8192
    buffer_load_dword v{V_POLL}, s[{S_WS}:{S_WS+3}], s{S_T0} offen lds
    s_add_u32 s{S_T0}, s{S_T0}, 1024
    buffer_load_dword v{V_POLL}, s[{S_WS}:{S_WS+3}], s{S_T0} offen lds
    """)
    stamp(2)
    for jj in range(3):
        A(f"ds_read_b128 {vr(V_A+8+8*jj,4)}, v{V_MEMR+jj}")
        A(f"ds_read_b128 {vr(V_A+12+8*jj,4)}, v{V_MEMR+jj} offset:1024")
    smf(A, Q0, V_A + 4, wreg(0, 0, 1)); smf(A, Q1, V_A + 4, wreg(0, 1, 1))
    for j in range(2):
        smf(A, K0, V_A + 4 * j, wreg(1, 0, j)); smf(A, K1, V_A + 4 * j, wreg(1, 1, j))
    for j in range(2, 8):
        A(f"s_waitcnt lgkmcnt({7-j})")
        smf(A, Q0, V_A + 4 * j, wreg(0, 0, j)); smf(A, Q1, V_A + 4 * j, wreg(0, 1, j))
    for j in range(2, 8):
        smf(A, K0, V_A + 4 * j, wreg(1, 0, j)); smf(A, K1, V_A + 4 * j, wreg(1, 1, j))
    def fold(X0, X1, off, export):
        A(f"""
        v_permlane32_swap_b32 v{X0}, v{X0+1}
        v_permlane32_swap_b32 v{X0+2}, v{X0+3}
        v_permlane32_swap_b32 v{X1}, v{X1+1}
        v_permlane32_swap_b32 v{X1+2}, v{X1+3}
        v_add_f32 v{X0}, v{X0}, v{X0+1}
        v_add_f32 v{X0+2}, v{X0+2}, v{X0+3}
        v_add_f32 v{X1}, v{X1}, v{X1+1}
        v_add_f32 v{X1+2}, v{X1+2}, v{X1+3}
        v_cvt_pk_bf16_f32 v{X0}, v{X0}, v{X1}
        v_cvt_pk_bf16_f32 v{X0+2}, v{X0+2}, v{X1+2}
        ds_write_b32 v{V_QW}, v{X0} offset:{off}
        ds_write_b32 v{V_QW}, v{X0+2} offset:{off+2*QP}
        """)
        if export:
            A(f"""
            buffer_store_dword v{X0}, v{V_KMX}, s[{S_WS}:{S_WS+3}], s{S_KMOFF} offen
            buffer_store_dword v{X0+2}, v{V_KMX}, s[{S_WS}:{S_WS+3}], s{S_KMOFF} offen offset:128
            """)
    stamp(3)
    fold(Q0, Q1, 0, False)
    fold(K0, K1, LDS_K2, True)
    smf(A, V0, V_A, wreg(2, 0, 0)); smf(A, V1, V_A, wreg(2, 1, 0))
    A("s_waitcnt lgkmcnt(0)\ns_barrier")
    stamp(4)
    for kp in range(4):
        A(f"ds_read_b128 {vr(V_QF+4*kp,4)}, v{V_QR} offset:{kp*64}")
    for kp in range(4):
        A(f"ds_read_b128 {vr(V_KF+4*kp,4)}, v{V_QR} offset:{LDS_K2+kp*64}")
    A(f"v_add_u32 v{V_T}, s{S_KXB}, v{V_LANE16}")
    A(f"ds_read_b128 {vr(V_A,4)}, v{V_T}")
    for j in range(1, 8):
        smf(A, V0, V_A + 4 * j, wreg(2, 0, j)); smf(A, V1, V_A + 4 * j, wreg(2, 1, j))
        if j == 7: A("s_waitcnt lgkmcnt(7)")
        A(f"ds_read_b128 {vr(V_A+4*j,4)}, v{V_T} offset:{j*1024}")
    S0, S1, S2 = V_S, V_S + 4, V_S + 8
    for kp in range(4):
        c = "0" if kp == 0 else vr(S0, 4)
        A(f"v_mfma_f32_16x16x32_bf16 {vr(S0,4)}, {vr(V_KF+4*kp,4)}, {vr(V_QF+4*kp,4)}, {c}")
    A("s_nop 3")
    VM = V_ACC
    A(f"""
    v_cvt_pk_bf16_f32 v{VM}, v{V0}, v{V0+1}
    v_cvt_pk_bf16_f32 v{VM+1}, v{V0+2}, v{V0+3}
    v_cvt_pk_bf16_f32 v{VM+2}, v{V1}, v{V1+1}
    v_cvt_pk_bf16_f32 v{VM+3}, v{V1+2}, v{V1+3}
    buffer_store_dwordx4 {vr(VM,4)}, v{V_LANE16}, s[{S_WS}:{S_WS+3}], s{S_VMOFF} offen
    s_cmp_eq_u32 s{S_STEP}, {nsteps-1}
    s_cbranch_scc1 {L_done}
    """)
    for T in range(2):
        Sx = S1 if T == 0 else S2
        for kp in range(4):
            f = T * 4 + kp
            A(f"s_waitcnt lgkmcnt({7-f})")
            c = "0" if kp == 0 else vr(Sx, 4)
            A(f"v_mfma_f32_16x16x32_bf16 {vr(Sx,4)}, {vr(V_A+4*f,4)}, {vr(V_QF+4*kp,4)}, {c}")
    WB = [56, 64, 72, 80, 88, 96]
    order = [(T, ups) for T in range(8) for ups in range(2)]
    def wo_read(i, buf):
        T, ups = order[i]
        A(f"ds_read_b128 {vr(buf,4)}, v{V_WOR} offset:{((T*2+ups)*2)*1024}")
        A(f"ds_read_b128 {vr(buf+4,4)}, v{V_WOR} offset:{((T*2+ups)*2+1)*1024}")
    wo_read(0, WB[0]); wo_read(1, WB[1])
    A("s_nop 7")
    for i in range(2, 6): wo_read(i, WB[i])
    stamp(5)
    M, M2, LS, L2 = V_T, V_T + 1, V_T + 2, V_T + 3
    A(f"""
    v_max3_f32 v{M}, v{S0}, v{S0+1}, v{S0+2}
    v_max3_f32 v{M2}, v{S0+3}, v{S1}, v{S1+1}
    v_max3_f32 v{M}, v{M}, v{S1+2}, v{S1+3}
    v_max3_f32 v{M2}, v{M2}, v{S2}, v{S2+1}
    v_max3_f32 v{M}, v{M}, v{S2+2}, v{S2+3}
    v_max_f32 v{M}, v{M}, v{M2}
    v_mov_b32 v{M2}, v{M}
    s_nop 1
    v_permlane16_swap_b32 v{M}, v{M2}
    v_max_f32 v{M}, v{M}, v{M2}
    v_mov_b32 v{M2}, v{M}
    s_nop 1
    v_permlane32_swap_b32 v{M}, v{M2}
    v_max_f32 v{M}, v{M}, v{M2}
    v_mul_f32 v{M}, s{S_C}, v{M}
    """)
    for i in range(12):
        A(f"v_fma_f32 v{V_S+i}, v{V_S+i}, s{S_C}, -v{M}")
    for i in range(12):
        A(f"v_exp_f32 v{V_S+i}, v{V_S+i}")
    for i in range(32):
        A(f"v_mov_b32 v{V_A+i}, 0")
    PM, PX = 52, None
    A(f"""
    v_add_f32 v{LS}, v{S0}, v{S0+1}
    v_add_f32 v{L2}, v{S0+2}, v{S0+3}
    v_add_f32 v{LS}, v{LS}, v{L2}
    v_add_f32 v{L2}, v{S1}, v{S1+1}
    v_fma_f32 v{LS}, v{LS}, 0.5, v{L2}
    v_add_f32 v{L2}, v{S1+2}, v{S1+3}
    v_add_f32 v{LS}, v{LS}, v{L2}
    v_add_f32 v{L2}, v{S2}, v{S2+1}
    v_add_f32 v{LS}, v{LS}, v{L2}
    v_add_f32 v{L2}, v{S2+2}, v{S2+3}
    v_add_f32 v{LS}, v{LS}, v{L2}
    v_cvt_pk_bf16_f32 v{PM}, v{S0}, v{S0+1}
    v_cvt_pk_bf16_f32 v{PM+1}, v{S0+2}, v{S0+3}
    v_cvt_pk_bf16_f32 v{S0}, v{S1}, v{S1+1}
    v_cvt_pk_bf16_f32 v{S0+1}, v{S1+2}, v{S1+3}
    v_cvt_pk_bf16_f32 v{S0+2}, v{S2}, v{S2+1}
    v_cvt_pk_bf16_f32 v{S0+3}, v{S2+2}, v{S2+3}
    v_mov_b32 v{L2}, v{LS}
    s_waitcnt vmcnt(7)
    v_mfma_f32_16x16x32_bf16 {vr(S1,4)}, {vr(V_VX,4)}, {vr(S0,4)}, 0
    v_mfma_f32_16x16x32_bf16 {vr(S2,4)}, {vr(V_VX+4,4)}, {vr(S0,4)}, 0
    v_permlane16_swap_b32 v{LS}, v{L2}
    v_add_f32 v{LS}, v{LS}, v{L2}
    v_mov_b32 v{L2}, v{LS}
    s_nop 3
    v_mfma_f32_16x16x16_bf16 {vr(S1,4)}, {vr(VM,2)}, {vr(PM,2)}, {vr(S1,4)}
    v_mfma_f32_16x16x16_bf16 {vr(S2,4)}, {vr(VM+2,2)}, {vr(PM,2)}, {vr(S2,4)}
    v_permlane32_swap_b32 v{LS}, v{L2}
    v_add_f32 v{LS}, v{LS}, v{L2}
    v_rcp_f32 v{LS}, v{LS}
    s_nop 7
    v_cndmask_b32 v{S0}, v{S1+1}, v{S1}, s[{S_LO}:{S_LO+1}]
    v_cndmask_b32 v{S0+1}, v{S2+1}, v{S2}, s[{S_LO}:{S_LO+1}]
    v_cndmask_b32 v{S0+2}, v{S1+3}, v{S1+2}, s[{S_LO}:{S_LO+1}]
    v_cndmask_b32 v{S0+3}, v{S2+3}, v{S2+2}, s[{S_LO}:{S_LO+1}]
    v_mul_f32 v{S0}, v{S0}, v{LS}
    v_mul_f32 v{S0+1}, v{S0+1}, v{LS}
    v_mul_f32 v{S0+2}, v{S0+2}, v{LS}
    v_mul_f32 v{S0+3}, v{S0+3}, v{LS}
    v_cvt_pk_bf16_f32 v{S0}, v{S0}, v{S0+1}
    v_cvt_pk_bf16_f32 v{S0+1}, v{S0+2}, v{S0+3}
    ds_write_b64 v{V_OW}, {vr(S0,2)}
    v_add_u32 v{V_T}, {LDS_O}, v{V_LANE16}
    s_waitcnt lgkmcnt(0)
    s_barrier
    ds_read_b128 {vr(S1,4)}, v{V_T}
    ds_read_b128 {vr(S2,4)}, v{V_T} offset:1024
    """)
    stamp(6)
    A(f"s_add_u32 s{S_KVOFF}, s{S_KVOFF}, {32*16384}")
    A(f"s_mov_b32 s{S_T0}, s{S_KXB}\ns_mov_b32 s{S_KXB}, s{S_KXN}\ns_mov_b32 s{S_KXN}, s{S_T0}")
    A("s_waitcnt lgkmcnt(0)")
    OF = [S1, S2]
    nb = len(WB)
    for i in range(16):
        T, ups = order[i]
        buf = WB[i % nb]
        if i >= nb:
            later = min(15, i + nb - 1) - i
            A(f"s_waitcnt lgkmcnt({min(15, 2*later)})")
        smf(A, V_A + 4 * T, OF[ups], vr(buf, 8))
        if i + nb < 16:
            wo_read(i + nb, buf)
    FO = 72; PK = 104
    L_next = A.newlabel("CH_next")
    A("s_nop 3")
    for T in range(8):
        a = V_A + 4 * T
        if T == 7: A("s_nop 3")
        A(f"v_permlane32_swap_b32 v{a}, v{a+1}")
        A(f"v_permlane32_swap_b32 v{a+2}, v{a+3}")
        A(f"v_add_f32 v{FO+T}, v{a}, v{a+1}")
        A(f"v_add_f32 v{FO+8+T}, v{a+2}, v{a+3}")
        if T % 2 == 1:
            for rs in range(2):
                A(f"v_cvt_pk_bf16_f32 v{PK+rs*4+T//2}, v{FO+rs*8+T-1}, v{FO+rs*8+T}")
            if T == 1:
                for rs in range(2):
                    A(f"v_bfi_b32 v{PK+rs*4}, 1, s{S_PHASE}, v{PK+rs*4}")
    A(f"""
    s_add_u32 s{S_T0}, s{S_PARTOFF}, 65536
    buffer_store_dwordx4 {vr(PK,4)}, v{V_PST}, s[{S_WS}:{S_WS+3}], s{S_PARTOFF} offen {st}
    buffer_store_dwordx4 {vr(PK+4,4)}, v{V_PST}, s[{S_WS}:{S_WS+3}], s{S_T0} offen {st}
    s_add_u32 s{S_MEMOFF}, s{S_MEMOFF}, 8192
    """)
    stamp(7)
    A(f"""
    s_cmp_lg_u32 s{S_W}, 0
    s_cbranch_scc1 {L_next}
    """)
    R = 72; SEL = 112; D = 48
    A(f"""
    s_mov_b32 s{S_EXEC}, 0x00030003
    s_mov_b32 s{S_EXEC+1}, 0x00030003
    s_lshl_b32 s{S_T0}, s{S_H}, 13
    s_add_u32 s{S_T0}, s{S_T0}, s{S_PARTOFF}
    s_add_u32 s{S_T1}, s{S_T0}, 4096
    s_mov_b32 s{S_CNT}, 0
    """)
    for r in range(4):
        A(f"v_cndmask_b32 v{SEL+r}, 0, v{V_SELV}, s[{S_EXEC}:{S_EXEC+1}]")
        if r < 3: A(f"s_lshl_b64 s[{S_EXEC}:{S_EXEC+1}], s[{S_EXEC}:{S_EXEC+1}], 2")
    if rsleep: A(f"s_sleep {rsleep}")
    A.label(L_red)
    for jj in range(8):
        A(f"buffer_load_dwordx4 {vr(R+4*jj,4)}, v{V_LANE16}, s[{S_WS}:{S_WS+3}], s{S_T0 + jj//4} offen offset:{(jj%4)*1024} sc1")
    A(f"""
    s_add_u32 s{S_CNT}, s{S_CNT}, 1
    """)
    for jj in range(8):
        A(f"s_waitcnt vmcnt({7-jj})")
        c = "0" if jj == 0 else vr(D, 4)
        A(f"v_mfma_f32_16x16x32_bf16 {vr(D,4)}, {vr(SEL,4)}, {vr(R+4*jj,4)}, {c}")
        if jj % 2 == 1:
            A(f"v_bitop3_b32 v{V_T + jj//2}, v{R+4*jj-4}, v{R+4*jj}, s{S_PHASE} bitop3:0x7e")
    A(f"""
    v_or3_b32 v{V_T}, v{V_T}, v{V_T+1}, v{V_T+2}
    v_or_b32 v{V_T}, v{V_T}, v{V_T+3}
    v_and_b32 v{V_T}, 1, v{V_T}
    v_cmp_ne_u32 vcc, 0, v{V_T}
    s_cmp_gt_u32 s{S_CNT}, {timeout}
    s_cbranch_scc1 {L_rok}
    s_cbranch_vccnz {L_red}
    """)
    A.label(L_rok)
    stamp(8)
    A(f"""
    s_nop 2
    v_cvt_pk_bf16_f32 v{D}, v{D}, v{D+1}
    v_cvt_pk_bf16_f32 v{D+1}, v{D+2}, v{D+3}
    v_min_u32 v{D}, s{S_SENT}, v{D}
    v_min_u32 v{D+1}, s{S_SENT}, v{D+1}
    s_mov_b64 exec, 0xffffffff
    buffer_store_dwordx2 {vr(D,2)}, v{V_MST}, s[{S_WS}:{S_WS+3}], s{S_MEMOFF} offen {st}
    s_mov_b64 exec, -1
    """)
    A.label(L_next)
    if stamps:
        stamp(9)
        A("s_waitcnt lgkmcnt(0)")
        for i in range(1, NST):
            A(f"s_sub_u32 s{S_T0}, s{82+2*i}, s{82+2*(i-1)}")
            A(f"v_writelane_b32 v0, s{S_T0}, {i}")
        A(f"v_writelane_b32 v0, s{S_CNT}, 10")
        A(f"v_writelane_b32 v0, s{S_CNT2}, 11")
    A(f"""
    s_xor_b32 s{S_PARTOFF}, s{S_PARTOFF}, {0x40000}
    s_add_u32 s{S_KMOFF}, s{S_KMOFF}, {32*2048}
    s_add_u32 s{S_VMOFF}, s{S_VMOFF}, {32*4096}
    s_add_u32 s{S_STEP}, s{S_STEP}, 1
    s_bfe_i32 s{S_PHASE}, s{S_STEP}, 0x10001
    s_branch {L_step}
    """)
    A.label(L_done)
    if timing:
        A(f"""
        s_memtime s[{S_TM+2}:{S_TM+3}]
        s_waitcnt lgkmcnt(0)
        s_sub_u32 s{S_TM+2}, s{S_TM+2}, s{S_TM}
        """)

def test_kernel(st="", stamps=False, **kw):
    A = Asm()
    A.raw(f"; @launch grid=(256,1,1) block=(256,1,1) lds={LDS_END}")
    A.raw('.amdgcn_target "amdgcn-amd-amdhsa--gfx950"\n.text')
    A.raw(kernel_head("chain_kernel"))
    A(f"""
    s_and_b32 s3, s2, 7
    s_cmp_lg_u32 s3, 0
    s_cbranch_scc1 L_exit
    s_cmp_ge_u32 s2, 256
    s_cbranch_scc1 L_exit
    s_lshr_b32 s{S_H}, s2, 3
    s_load_dwordx4 s[72:75], s[0:1], 16
    s_load_dwordx4 s[76:79], s[0:1], 32
    s_load_dwordx2 s[80:81], s[0:1], 112
    s_load_dwordx2 s[{S_DBG}:{S_DBG+1}], s[0:1], 104
    s_memtime s[{S_TM+4}:{S_TM+5}]
    s_waitcnt lgkmcnt(0)
    """)
    chain_setup(A)
    chain_load_weights(A)
    chain_loop(A, st=st, timing=True, stamps=stamps, **kw)
    A(f"""
    s_sub_u32 s{S_TM+4}, s{S_TM}, s{S_TM+4}
    s_getreg_b32 s3, hwreg(HW_REG_XCC_ID)
    v_mov_b32 v20, s{S_TM+2}
    v_mov_b32 v21, s{S_TM+4}
    s_cmp_lg_u32 s{S_H}, 0
    s_cbranch_scc1 L_exit
    v_mov_b32 v22, 0
    s_mov_b64 exec, 1
    global_store_dwordx2 v22, v[20:21], s[{S_DBG}:{S_DBG+1}]
    s_mov_b64 exec, 0xffe
    s_cmp_lg_u32 s{S_W}, 0
    s_cbranch_scc1 L_exit
    v_lshrrev_b32 v22, 2, v{V_LANE16}
    global_store_dword v22, v0, s[{S_DBG}:{S_DBG+1}] offset:4
    """)
    A.label("L_exit")
    A("s_waitcnt vmcnt(0)\ns_endpgm")
    A.raw(kernel_desc("chain_kernel", 512, 102, 256))
    return A.text()

if __name__ == "__main__":
    import sys
    open("chain_f.s", "w").write(test_kernel(""))
    open("chain_s.s", "w").write(test_kernel("sc1"))
    open("chain_ft.s", "w").write(test_kernel("", True))
    open("chain_f2.s", "w").write(test_kernel("", msleep=4))
    open("chain_f3.s", "w").write(test_kernel("", msleep=6, rsleep=2))
```

```python
class Asm:
    def __init__(self):
        self.L = []
        self.nlab = 0
    def __call__(self, s):
        for line in s.strip("\n").split("\n"):
            line = line.split(";")[0].strip()
            if line: self.L.append(line)
    def label(self, name):
        self.L.append(name + ":")
    def newlabel(self, base="L"):
        self.nlab += 1
        return f"{base}_{self.nlab}"
    def comment(self, s):
        self.L.append("    ; " + s)
    def raw(self, s):
        self.L.append(s)
    def text(self):
        return "\n".join(self.L) + "\n"

def vr(b, n=1):
    return f"v{b}" if n == 1 else f"v[{b}:{b+n-1}]"
def ar(b, n=1):
    return f"a{b}" if n == 1 else f"a[{b}:{b+n-1}]"
def sr(b, n=1):
    return f"s{b}" if n == 1 else f"s[{b}:{b+n-1}]"

def srd(A, d, base, nbytes):
    A(f"s_mov_b32 s{d}, s{base}")
    A(f"s_and_b32 s{d+1}, s{base+1}, 0xffff")
    A(f"s_mov_b32 s{d+2}, {nbytes:#x}")
    A(f"s_mov_b32 s{d+3}, 0x00020000")

def kernel_desc(name, vgpr, sgpr, accum, kernarg=120):
    return f"""
.section .rodata,"a"
.p2align 6
.amdhsa_kernel {name}
  .amdhsa_next_free_vgpr {vgpr}
  .amdhsa_next_free_sgpr {sgpr}
  .amdhsa_accum_offset {accum}
  .amdhsa_group_segment_fixed_size 0
  .amdhsa_kernarg_size {kernarg}
  .amdhsa_user_sgpr_count 2
  .amdhsa_user_sgpr_kernarg_segment_ptr 1
  .amdhsa_system_sgpr_workgroup_id_x 1
.end_amdhsa_kernel
.text
"""
def kernel_head(name):
    return f""".globl {name}
.p2align 8
.type {name},@function
{name}:
"""
```

```python
from dsl import *
from layout import *

class Q:
    def __init__(self, A, name, maxc):
        self.A, self.name, self.maxc = A, name, maxc
        self.q = []
    def issue(self, tag):
        self.q.append(tag)
        if len(self.q) > self.maxc:
            raise RuntimeError(f"{self.name} overflow {len(self.q)}")
    def wait(self, tag):
        idx = [i for i, t in enumerate(self.q) if t == tag]
        if not idx: return
        last = idx[-1]
        n = len(self.q) - 1 - last
        self.A(f"s_waitcnt {self.name}({n})")
        self.q = self.q[last + 1:]
    def drain(self):
        if self.q:
            self.A(f"s_waitcnt {self.name}(0)")
            self.q = []
    def room(self, n):
        over = len(self.q) + n - self.maxc
        if over > 0:
            keep = len(self.q) - over
            self.A(f"s_waitcnt {self.name}({keep})")
            self.q = self.q[over:]

class GemmCfg:
    def __init__(self, **kw):
        self.np = 4; self.nw = 8; self.wp = 4; self.ww = 1
        self.BK = 64; self.NS = 4; self.PD = 2; self.RW = 4
        self.wkind = "tr"
        self.kpat = "nat"
        self.orient = "WP"
        self.lds_base = 0
        self.early = True
        self.__dict__.update(kw)
        self.BN = self.nw * self.ww * 16
        self.BM = self.np * self.wp * 16
        self.stage_bytes = self.BK * self.BN * 2
        self.dma_per_wave = self.stage_bytes // 4096
        self.kshift = 0 if self.BN >= 128 else 1
        self.nsets = (self.NS * self.stage_bytes + 65535) // 65536 if self.stage_bytes <= 32768 else 1
        assert self.stage_bytes % 4096 == 0

G_VL16 = 1
G_VDMA = 2
G_VRD = 18
G_VT = 34
G_VE = 40
G_VP = 48
G_SP = 8
G_SW = 12
G_SWV = 29
G_ST = 42
G_SPOFF = 48
G_SWOFF = 49
G_SLOOP = 50
G_SM0 = 51

def key8(row):
    return (row % 4) | ((((row // 4) ^ (row // 8)) % 2) << 2)

def gemm_setup_addr(A, c, wpitch):
    T0, T1, T2, T3 = G_VT, G_VT + 1, G_VT + 2, G_VT + 3
    A(f"v_and_b32 v{T0}, 63, v0")
    A(f"v_lshlrev_b32 v{G_VL16}, 4, v{T0}")
    rowbytes = c.BN * 2 if c.wkind == "tr" else c.BK * 2
    lanes_per_row = rowbytes // 16
    rows_per_instr = max(1, 64 // lanes_per_row)
    c.rows_per_instr = rows_per_instr
    if c.wkind == "tr":
        assert c.dma_per_wave <= 8 or True
        c.dma_v = []
        nuniq = min(c.dma_per_wave, 8)
        assert c.dma_per_wave <= 16
        for i in range(c.dma_per_wave):
            r = G_VDMA + i
            c.dma_v.append(r)
            A(f"s_mul_i32 s{G_ST}, s{G_SWV}, {c.dma_per_wave*64}")
            A(f"s_add_u32 s{G_ST}, s{G_ST}, {i*64}")
            A(f"v_add_u32 v{T1}, s{G_ST}, v{T0}")
            if lanes_per_row & (lanes_per_row - 1) == 0:
                sh = lanes_per_row.bit_length() - 1
                A(f"v_lshrrev_b32 v{T2}, {sh}, v{T1}")
                A(f"v_and_b32 v{T3}, {lanes_per_row-1}, v{T1}")
            else:
                magic = (1 << 20) // lanes_per_row + 1
                A(f"v_mul_u32_u24 v{T2}, {magic}, v{T1}")
                A(f"v_lshrrev_b32 v{T2}, 20, v{T2}")
                A(f"v_mul_u32_u24 v{T3}, {lanes_per_row}, v{T2}")
                A(f"v_sub_u32 v{T3}, v{T1}, v{T3}")
            A(f"v_lshrrev_b32 v{G_VT+4}, 2, v{T2}")
            A(f"v_lshrrev_b32 v{G_VT+5}, 3, v{T2}")
            A(f"v_xor_b32 v{G_VT+4}, v{G_VT+4}, v{G_VT+5}")
            A(f"v_and_b32 v{G_VT+4}, 1, v{G_VT+4}")
            A(f"v_and_b32 v{G_VT+5}, 3, v{T2}")
            A(f"v_lshl_or_b32 v{G_VT+4}, v{G_VT+4}, 2, v{G_VT+5}")
            if c.kshift: A(f"v_lshrrev_b32 v{G_VT+4}, {c.kshift}, v{G_VT+4}")
            A(f"v_lshlrev_b32 v{G_VT+4}, 1, v{G_VT+4}")
            A(f"v_xor_b32 v{T3}, v{T3}, v{G_VT+4}")
            A(f"s_mov_b32 s{G_ST}, {wpitch}")
            A(f"v_mul_lo_u32 v{T2}, v{T2}, s{G_ST}")
            A(f"v_lshl_add_u32 v{r}, v{T3}, 4, v{T2}")
        A(f"v_bfe_u32 v{T1}, v{T0}, 2, 2")
        A(f"v_lshrrev_b32 v{T2}, 4, v{T0}")
        for h in range(2):
            if c.kpat == "nat":
                A(f"v_lshl_add_u32 v{T3}, v{T2}, 3, v{T1}")
                if h: A(f"v_add_u32 v{T3}, 4, v{T3}")
            else:
                A(f"v_lshl_add_u32 v{T3}, v{T2}, 2, v{T1}")
                if h: A(f"v_add_u32 v{T3}, 16, v{T3}")
            A(f"v_lshrrev_b32 v{G_VT+4}, 2, v{T3}")
            A(f"v_lshrrev_b32 v{G_VT+5}, 3, v{T3}")
            A(f"v_xor_b32 v{G_VT+4}, v{G_VT+4}, v{G_VT+5}")
            A(f"v_and_b32 v{G_VT+4}, 1, v{G_VT+4}")
            A(f"v_and_b32 v{G_VT+5}, 3, v{T3}")
            A(f"v_lshl_or_b32 v{G_VT+4}, v{G_VT+4}, 2, v{G_VT+5}")
            if c.kshift: A(f"v_lshrrev_b32 v{G_VT+4}, {c.kshift}, v{G_VT+4}")
            A(f"v_mul_u32_u24 v{T3}, {rowbytes}, v{T3}")
            A(f"v_and_b32 v{G_VT+5}, 3, v{T0}")
            A(f"v_lshl_add_u32 v{T3}, v{G_VT+5}, 3, v{T3}")
            for j in range(min(8, c.nw)):
                r = G_VRD + h * 8 + j
                if c.ww == 1:
                    A(f"v_xor_b32 v{G_VT+5}, {j}, v{G_VT+4}")
                    A(f"v_lshl_add_u32 v{r}, v{G_VT+5}, 5, v{T3}")
                    if c.lds_base: A(f"v_add_u32 v{r}, {c.lds_base}, v{r}")
                else:
                    A(f"s_and_b32 s{G_ST}, s{G_SWV}, {c.ww-1}")
                    A(f"s_mul_i32 s{G_ST}, s{G_ST}, {c.nw}")
                    A(f"s_add_u32 s{G_ST}, s{G_ST}, {j}")
                    A(f"s_and_b32 s{G_ST+1}, s{G_ST}, 7")
                    A(f"s_lshr_b32 s{G_ST}, s{G_ST}, 3")
                    A(f"s_lshl_b32 s{G_ST}, s{G_ST}, 8")
                    A(f"s_add_u32 s{G_ST}, s{G_ST}, {c.lds_base}")
                    A(f"v_xor_b32 v{G_VT+5}, s{G_ST+1}, v{G_VT+4}")
                    A(f"v_lshl_add_u32 v{r}, v{G_VT+5}, 5, v{T3}")
                    A(f"v_add_u32 v{r}, s{G_ST}, v{r}")
    else:
        assert c.BK == 64 and c.ww == 1
        A(f"v_lshrrev_b32 v{T1}, 3, v{T0}")
        A(f"v_and_b32 v{T2}, 7, v{T0}")
        c.dma_v = []
        for par in range(2):
            r = G_VDMA + par
            A(f"v_lshrrev_b32 v{T3}, 1, v{T1}")
            if par: A(f"v_add_u32 v{T3}, 4, v{T3}")
            A(f"v_xor_b32 v{T3}, v{T3}, v{T2}")
            A(f"s_mov_b32 s{G_ST}, {wpitch}")
            A(f"v_mul_lo_u32 v{G_VT+4}, v{T1}, s{G_ST}")
            A(f"v_lshl_add_u32 v{r}, v{T3}, 4, v{G_VT+4}")
            A(f"s_mul_i32 s{G_ST}, s{G_SWV}, {c.dma_per_wave*8*wpitch}")
            A(f"v_add_u32 v{r}, s{G_ST}, v{r}")
        A(f"v_and_b32 v{T1}, 15, v{T0}")
        A(f"v_lshrrev_b32 v{T2}, 4, v{T0}")
        for kk in range(2):
            for p in range(2):
                r = G_VRD + kk * 2 + p
                A(f"v_lshrrev_b32 v{T3}, 1, v{T2}")
                A(f"v_add_u32 v{T3}, {4*kk+2*p}, v{T3}")
                A(f"v_lshrrev_b32 v{G_VT+4}, 1, v{T1}")
                A(f"v_xor_b32 v{T3}, v{T3}, v{G_VT+4}")
                A(f"v_lshlrev_b32 v{T3}, 4, v{T3}")
                A(f"v_and_b32 v{G_VT+4}, 1, v{T2}")
                A(f"v_lshl_add_u32 v{T3}, v{G_VT+4}, 3, v{T3}")
                A(f"v_lshl_add_u32 v{r}, v{T1}, 7, v{T3}")
                if c.lds_base: A(f"v_add_u32 v{r}, {c.lds_base}, v{r}")
                for st_ in range(1, c.nsets):
                    A(f"v_add_u32 v{r+4*st_}, {65536*st_}, v{r}")

def acc(c, i, j):
    return (i * c.nw + j) * 4

import math
def gemm_mainloop(A, c, nk32, p_tile_stride, wpitch, first=True, sc="", roll=True):
    for a0 in (1, 2, 3, 4):
        try:
            _gemm_mainloop(Asm(), c, nk32, p_tile_stride, wpitch, first, None, None, sc, roll, a0)
        except AssertionError as e:
            if "not periodic" in str(e): continue
            raise
        return _gemm_mainloop(A, c, nk32, p_tile_stride, wpitch, first, None, None, sc, roll, a0)
    raise RuntimeError("no periodic schedule")

def _gemm_mainloop(A, c, nk32, p_tile_stride, wpitch, first, vq, lq, sc, roll, a0):
    vq = vq or Q(A, "vmcnt", 63); lq = lq or Q(A, "lgkmcnt", 15)
    kps = c.BK // 32
    nst = nk32 // kps
    assert nk32 % kps == 0
    npsets = c.PD + 1
    def preg(t, i): return G_VP + ((t % npsets) * c.np + i) * 4
    WR = G_VP + npsets * c.np * 4
    def wreg(slot): return WR + (slot % c.RW) * 4
    c.vgpr_end = WR + c.RW * 4
    st = dict(pb=0, sb=0, nread=0)
    wadv = c.BK * wpitch if c.wkind == "tr" else c.BK * 2
    def dma(s):
        if s >= nst: return
        buf = c.lds_base + (s % c.NS) * c.stage_bytes
        A(f"s_add_u32 s{G_ST}, s{G_SWOFF}, {(s - st['sb']) * wadv}")
        for i in range(c.dma_per_wave):
            A(f"s_add_u32 m0, s{G_SM0}, {buf + i*1024}")
            if c.wkind == "tr":
                vq.room(1)
                A("s_nop 0")
                A(f"buffer_load_dwordx4 v{c.dma_v[i]}, s[{G_SW}:{G_SW+3}], s{G_ST} offen lds")
            else:
                if i: A(f"s_add_u32 s{G_ST}, s{G_ST}, {8*wpitch}")
                else: A("s_nop 0")
                vq.room(1)
                A(f"buffer_load_dwordx4 v{G_VDMA + (i&1)}, s[{G_SW}:{G_SW+3}], s{G_ST} offen lds")
            vq.issue(("D", s))
    def pload(t):
        if t >= nk32: return
        for i in range(c.np):
            off = i * p_tile_stride + (t - st['pb']) * 1024
            hi = off - off % 4096
            vq.room(1)
            if hi:
                A(f"s_add_u32 s{G_ST+1}, s{G_SPOFF}, {hi}")
                A(f"buffer_load_dwordx4 {vr(preg(t,i),4)}, v{G_VL16}, s[{G_SP}:{G_SP+3}], s{G_ST+1} offen offset:{off % 4096} {sc}")
            else:
                A(f"buffer_load_dwordx4 {vr(preg(t,i),4)}, v{G_VL16}, s[{G_SP}:{G_SP+3}], s{G_SPOFF} offen offset:{off} {sc}")
            vq.issue(("P", t))
    nseq = nk32 * c.nw
    def wread(n):
        t, j = divmod(n, c.nw)
        s, kk = divmod(t, kps)
        buf = (s % c.NS) * c.stage_bytes
        lq.room(2)
        if c.wkind == "tr":
            off = buf + kk * 32 * c.BN * 2 + (j // 8) * 256
            assert off < 65536, off
            for h in range(2):
                A(f"ds_read_b64_tr_b16 {vr(wreg(n)+2*h,2)}, v{G_VRD + h*8 + j%8} offset:{off}")
                lq.issue(("W", n))
        else:
            off = buf % 65536 + j * 2048
            assert off < 65536, off
            for p in range(2):
                A(f"ds_read_b64 {vr(wreg(n)+2*p,2)}, v{G_VRD + kk*2 + p + 4*(buf // 65536)} offset:{off}")
                lq.issue(("W", n))
    A(f"s_mul_i32 s{G_SM0}, s{G_SWV}, {c.dma_per_wave*1024}")
    lead = c.NS - 2 if c.early else c.NS - 1
    assert lead >= 1
    for s in range(lead): dma(s)
    for t in range(c.PD): pload(t)
    per_stage = kps * c.nw
    def kstep(t):
        pload(t + c.PD)
        for j in range(c.nw):
            n = t * c.nw + j
            lim = min(n + c.RW, nseq)
            if not c.early: lim = min(lim, (n // per_stage + 1) * per_stage)
            while st['nread'] < lim:
                if st['nread'] % per_stage == 0:
                    s = st['nread'] // per_stage
                    vq.wait(("D", s))
                    A("s_barrier")
                    dma(s + lead)
                wread(st['nread']); st['nread'] += 1
            if j == 0: vq.wait(("P", t))
            lq.wait(("W", n))
            for i in range(c.np):
                a = ar(acc(c, i, j), 4)
                cc = "0" if (first and t == 0) else a
                if c.orient == "WP":
                    A(f"v_mfma_f32_16x16x32_bf16 {a}, {vr(wreg(n),4)}, {vr(preg(t,i),4)}, {cc}")
                else:
                    A(f"v_mfma_f32_16x16x32_bf16 {a}, {vr(preg(t,i),4)}, {vr(wreg(n),4)}, {cc}")
    L = c.NS
    while (L * kps) % npsets or (L * per_stage) % c.RW: L += c.NS
    tail = max(lead + 1, (c.PD + kps - 1) // kps + 1)
    nit = (nst - a0 - tail) // L if roll else 0
    if nit < 2:
        for t in range(nk32): kstep(t)
        return vq, lq
    for t in range(a0 * kps): kstep(t)
    def norm(q, t0):
        d = {"D": t0 // kps, "P": t0, "W": t0 * c.nw}
        return [(k, i - d[k]) if k in d else (k, i) for k, i in q]
    t0 = a0 * kps
    lab = A.newlabel("GL")
    A(f"s_mov_b32 s{G_SLOOP}, {nit}")
    sv, sl, sn = norm(vq.q, t0), norm(lq.q, t0), st['nread'] - t0 * c.nw
    A.label(lab)
    for t in range(t0, t0 + L * kps): kstep(t)
    t1 = t0 + L * kps
    assert norm(vq.q, t1) == sv and norm(lq.q, t1) == sl and st['nread'] - t1 * c.nw == sn, ("not periodic", sv, norm(vq.q, t1))
    A(f"s_add_u32 s{G_SPOFF}, s{G_SPOFF}, {L*kps*1024}")
    A(f"s_add_u32 s{G_SWOFF}, s{G_SWOFF}, {L*wadv}")
    A(f"s_sub_u32 s{G_SLOOP}, s{G_SLOOP}, 1")
    A(f"s_cmp_lg_u32 s{G_SLOOP}, 0")
    A(f"s_cbranch_scc1 {lab}")
    t2 = t0 + nit * L * kps
    sh = t2 - t1
    d = {"D": sh // kps, "P": sh, "W": sh * c.nw}
    vq.q = [(k, i + d[k]) if k in d else (k, i) for k, i in vq.q]
    lq.q = [(k, i + d[k]) if k in d else (k, i) for k, i in lq.q]
    st['nread'] += sh * c.nw
    st['pb'] = nit * L * kps; st['sb'] = nit * L
    for t in range(t2, nk32): kstep(t)
    return vq, lq
```

```python
from dsl import *
from layout import *
from gemm import *

KA = dict(x=0, mem0=8, wq=16, wk=24, wv=32, wo=40, seg=48, bx=56, win=64, wsp=72, bsp=80, wout=88, out=96, dbg=104, ws=112)

def load_ptr(A, dst, name):
    A(f"s_load_dwordx2 s[{dst}:{dst+1}], s[0:1], {KA[name]}")

def prep_kernel(A):
    A.raw(kernel_head("prep_kernel"))
    A("s_cmp_ge_u32 s2, 160\ns_cbranch_scc1 L_prep_exit")
    load_ptr(A, 4, "x"); load_ptr(A, 6, "ws"); load_ptr(A, 20, "mem0")
    A("s_waitcnt lgkmcnt(0)")
    srd(A, 8, 4, 2 << 20); srd(A, 12, 6, WS_SIZE); srd(A, 16, 20, 8192)
    A("s_cmp_ge_u32 s2, 128\ns_cbranch_scc1 L_prep_fill")
    A("""
    v_lshrrev_b32 v1, 4, v0
    v_and_b32 v2, 15, v0               ; l16
    s_lshl_b32 s3, s2, 14              ; tile*16*1024
    v_lshlrev_b32 v3, 10, v1
    v_lshl_add_u32 v3, v2, 4, v3       ; token*1024 + l16*16
    buffer_load_dwordx4 v[8:11], v3, s[8:11], s3 offen
    buffer_load_dwordx4 v[12:15], v3, s[8:11], s3 offen offset:256
    buffer_load_dwordx4 v[16:19], v3, s[8:11], s3 offen offset:512
    buffer_load_dwordx4 v[20:23], v3, s[8:11], s3 offen offset:768
    s_mov_b32 s22, 0xffff0000
    s_waitcnt vmcnt(0)
    """)
    for i in range(16):
        A(f"v_lshlrev_b32 v{32+2*i}, 16, v{8+i}")
        A(f"v_and_b32 v{33+2*i}, s22, v{8+i}")
    A("v_add_f32 v4, v32, v33")
    for i in range(2, 32): A(f"v_add_f32 v4, v4, v{32+i}")
    def red16(r):
        for ctl in ("quad_perm:[1,0,3,2]", "quad_perm:[2,3,0,1]", "row_half_mirror", "row_mirror"):
            A("s_nop 1")
            A(f"v_add_f32_dpp v{r}, v{r}, v{r} {ctl} row_mask:0xf bank_mask:0xf")
    red16(4)
    A("v_mul_f32 v4, 0x3b000000, v4")
    for i in range(32): A(f"v_sub_f32 v{32+i}, v{32+i}, v4")
    A("v_mul_f32 v5, v32, v32")
    for i in range(1, 32): A(f"v_fmac_f32 v5, v{32+i}, v{32+i}")
    red16(5)
    A("""
    v_mov_b32 v6, 0x3727c5ac
    v_fmac_f32 v6, 0x3b000000, v5
    v_rsq_f32 v6, v6
    s_nop 0
    """)
    for i in range(16):
        A(f"v_mul_f32 v{32+2*i}, v{32+2*i}, v6")
        A(f"v_mul_f32 v{33+2*i}, v{33+2*i}, v6")
        A(f"v_cvt_pk_bf16_f32 v{8+i}, v{32+2*i}, v{33+2*i}")
    A(f"""
    v_lshrrev_b32 v4, 2, v2
    v_lshlrev_b32 v4, 10, v4
    v_and_b32 v5, 3, v2
    v_lshl_add_u32 v4, v5, 8, v4
    v_lshl_add_u32 v4, v1, 4, v4
    s_add_u32 s3, s3, {WS_XN}
    s_add_u32 s22, s3, 4096
    s_add_u32 s23, s3, 8192
    s_add_u32 s24, s3, 12288
    buffer_store_dwordx4 v[8:11], v4, s[12:15], s3 offen
    buffer_store_dwordx4 v[12:15], v4, s[12:15], s22 offen
    buffer_store_dwordx4 v[16:19], v4, s[12:15], s23 offen
    buffer_store_dwordx4 v[20:23], v4, s[12:15], s24 offen
    s_branch L_prep_exit
    """)
    A.label("L_prep_fill")
    A(f"""
    s_sub_u32 s3, s2, 128
    v_lshlrev_b32 v1, 4, v0
    v_mov_b32 v4, -1
    v_mov_b32 v5, -1
    v_mov_b32 v6, -1
    v_mov_b32 v7, -1
    s_lshl_b32 s22, s3, 14
    s_add_u32 s23, s22, {WS_MEMF + 8192}
    s_add_u32 s22, s22, {WS_PART}
    """)
    for i in range(4):
        A(f"buffer_store_dwordx4 v[4:7], v1, s[12:15], s22 offen")
        A(f"buffer_store_dwordx4 v[4:7], v1, s[12:15], s23 offen")
        A("s_add_u32 s22, s22, 4096\ns_add_u32 s23, s23, 4096")
    A("s_cmp_lg_u32 s3, 0\ns_cbranch_scc1 L_prep_exit")
    A(f"""
    v_mov_b32 v4, 0
    v_mov_b32 v5, 0
    v_mov_b32 v6, 0
    v_mov_b32 v7, 0
    s_mov_b32 s22, {WS_FLAG}
    buffer_store_dwordx4 v[4:7], v1, s[12:15], s22 offen
    """)
    for it in range(4):
        A(f"""
        v_add_u32 v2, {it*256}, v0
        v_and_b32 v3, 1, v2                 ; th
        v_bfe_u32 v8, v2, 1, 2              ; ga
        v_bfe_u32 v9, v2, 3, 3              ; row
        v_bfe_u32 v10, v2, 6, 1             ; hf
        v_lshrrev_b32 v11, 7, v2            ; u
        v_lshlrev_b32 v12, 10, v9
        v_lshl_add_u32 v12, v11, 7, v12
        v_lshl_add_u32 v12, v8, 5, v12
        v_lshl_add_u32 v12, v3, 4, v12
        v_lshl_add_u32 v12, v10, 3, v12
        buffer_load_dwordx2 v[14:15], v12, s[16:19], 0 offen
        v_lshlrev_b32 v2, 3, v2
        s_mov_b32 s22, {WS_MEMF}
        s_mov_b32 s23, 0xfffffffe
        s_waitcnt vmcnt(0)
        v_min_u32 v14, s23, v14
        v_min_u32 v15, s23, v15
        buffer_store_dwordx2 v[14:15], v2, s[12:15], s22 offen
        """)
    A.label("L_prep_exit")
    A("s_waitcnt vmcnt(0)\ns_endpgm")
    return kernel_desc("prep_kernel", 64, 32, 64)

def wave_id(A):
    A(f"v_lshrrev_b32 v{G_VT}, 6, v0\ns_nop 0\nv_readfirstlane_b32 s{G_SWV}, v{G_VT}\ns_nop 3")

def acc_pack(A, dst, a0, a1, t):
    for r in range(4):
        A(f"v_accvgpr_read_b32 v{t+r}, a{a0+r}")
        A(f"v_accvgpr_read_b32 v{t+4+r}, a{a1+r}")
    A(f"v_cvt_pk_bf16_f32 v{dst}, v{t}, v{t+1}")
    A(f"v_cvt_pk_bf16_f32 v{dst+1}, v{t+2}, v{t+3}")
    A(f"v_cvt_pk_bf16_f32 v{dst+2}, v{t+4}, v{t+5}")
    A(f"v_cvt_pk_bf16_f32 v{dst+3}, v{t+6}, v{t+7}")

C_QK = GemmCfg(np=4, nw=8, wp=4, ww=1, orient="WP")
C_V = GemmCfg(np=4, nw=8, wp=4, ww=1, orient="PW")
S_RB, S_HD = 52, 53

def qkv_tile(A, kind, st=""):
    c = C_V if kind == "V" else C_QK
    c.dma_v = C_QK.dma_v
    A(f"""
    s_lshl_b32 s{G_SPOFF}, s{S_RB}, 2
    s_add_u32 s{G_SPOFF}, s{G_SPOFF}, s{G_SWV}
    s_lshl_b32 s{G_SPOFF}, s{G_SPOFF}, 16
    s_add_u32 s{G_SPOFF}, s{G_SPOFF}, {WS_XN}
    s_lshl_b32 s{G_SWOFF}, s{S_HD}, 8
    """)
    vq, lq = gemm_mainloop(A, c, 16, 16384, 8192)
    A(f"""
    s_lshl_b32 s{G_ST}, s{S_RB}, 2
    s_add_u32 s{G_ST}, s{G_ST}, s{G_SWV}
    s_lshl_b32 s{G_ST}, s{G_ST}, 6              ; seg0*32
    s_add_u32 s{G_ST}, s{G_ST}, s{S_HD}
    """)
    if kind == "Q":
        A(f"s_lshl_b32 s{G_ST}, s{G_ST}, 13\ns_add_u32 s{G_ST}, s{G_ST}, {WS_Q}")
        segstride = 32 * 8192
    else:
        A(f"s_lshl_b32 s{G_ST}, s{G_ST}, 14\ns_add_u32 s{G_ST}, s{G_ST}, {WS_KV + (8192 if kind == 'V' else 0)}")
        segstride = 32 * 16384
    A("s_nop 7")
    E = G_VP
    n = 0
    if kind in "KQ":
        for i in range(4):
            for kp in range(4):
                d = E + (n % 4) * 12; n += 1
                acc_pack(A, d, acc(c, i, 2 * kp), acc(c, i, 2 * kp + 1), d + 4)
                off = (i // 2) * segstride + (i % 2) * 4096 + kp * 1024
                A(f"s_add_u32 s{G_ST+1}, s{G_ST}, {off - off % 4096}")
                A(f"buffer_store_dwordx4 {vr(d,4)}, v{G_VL16}, s[{G_SP}:{G_SP+3}], s{G_ST+1} offen offset:{off % 4096} {st}")
    else:
        for sg in range(2):
            for j in range(8):
                d = E + (n % 4) * 12; n += 1
                acc_pack(A, d, acc(c, 2 * sg, j), acc(c, 2 * sg + 1, j), d + 4)
                off = sg * segstride + (j // 2) * 2048 + (j % 2) * 128
                A(f"s_add_u32 s{G_ST+1}, s{G_ST}, {off - off % 4096}")
                A(f"buffer_store_dwordx4 {vr(d,4)}, v{G_VE}, s[{G_SP}:{G_SP+3}], s{G_ST+1} offen offset:{off % 4096} {st}")

def qkv_epi_addr(A):
    A(f"""
    v_and_b32 v{G_VT}, 1, v0
    v_lshlrev_b32 v{G_VE}, 10, v{G_VT}
    v_bfe_u32 v{G_VT}, v0, 4, 2
    v_lshl_add_u32 v{G_VE}, v{G_VT}, 8, v{G_VE}
    v_bfe_u32 v{G_VT}, v0, 1, 3
    v_lshl_add_u32 v{G_VE}, v{G_VT}, 4, v{G_VE}
    """)

def qkv_kernel(A):
    A.raw(kernel_head("qkv_kernel"))
    A("s_cmp_ge_u32 s2, 768\ns_cbranch_scc1 L_qkv_exit")
    load_ptr(A, 4, "ws")
    A("s_load_dwordx4 s[16:19], s[0:1], 16\ns_load_dwordx2 s[20:21], s[0:1], 32")
    wave_id(A)
    gemm_setup_addr(A, C_QK, 8192)
    qkv_epi_addr(A)
    A(f"""
    s_and_b32 s{S_HD}, s2, 31
    s_bfe_u32 s{S_RB}, s2, 0x30005
    s_lshr_b32 s3, s2, 8
    s_waitcnt lgkmcnt(0)
    """)
    srd(A, G_SP, 4, WS_SIZE)
    A("s_cmp_eq_u32 s3, 1\ns_cbranch_scc1 L_qkv_V\ns_cmp_eq_u32 s3, 2\ns_cbranch_scc1 L_qkv_Q")
    srd(A, G_SW, 18, 4 << 20)
    qkv_tile(A, "K")
    A("s_branch L_qkv_exit")
    A.label("L_qkv_V")
    srd(A, G_SW, 20, 4 << 20)
    qkv_tile(A, "V")
    A("s_branch L_qkv_exit")
    A.label("L_qkv_Q")
    srd(A, G_SW, 16, 4 << 20)
    qkv_tile(A, "Q")
    A.label("L_qkv_exit")
    A("s_waitcnt vmcnt(0)\ns_endpgm")
    return kernel_desc("qkv_kernel", 256, 64, 128)


import math, struct
def f32(x): return struct.unpack("<I", struct.pack("<f", x))[0]
GC0 = -2.0 * 0.7978845608028654 * math.log2(math.e)
GC1 = GC0 * 0.044715
S_GC0, S_GC1 = 54, 55
def gelu_consts(A):
    A(f"s_mov_b32 s{S_GC0}, {f32(GC0):#x}\ns_mov_b32 s{S_GC1}, {f32(GC1):#x}")
def gelu_n(A, regs, t):
    n = len(regs)
    A(f"v_mov_b32 v{t+n}, s{S_GC0}")
    for i, r in enumerate(regs): A(f"v_mul_f32 v{t+i}, v{r}, v{r}")
    for i, r in enumerate(regs): A(f"v_fma_f32 v{t+i}, v{t+i}, s{S_GC1}, v{t+n}")
    for i, r in enumerate(regs): A(f"v_mul_f32 v{t+i}, v{t+i}, v{r}")
    for i, r in enumerate(regs): A(f"v_exp_f32 v{t+i}, v{t+i}")
    for i, r in enumerate(regs): A(f"v_add_f32 v{t+i}, 1.0, v{t+i}")
    for i, r in enumerate(regs): A(f"v_rcp_f32 v{t+i}, v{t+i}")
    A("s_nop 0")
    for i, r in enumerate(regs): A(f"v_mul_f32 v{r}, v{r}, v{t+i}")

C_Z1 = GemmCfg(np=4, nw=8, wp=4, ww=1, orient="WP")
def z1_tile(A, st=""):
    c = C_Z1
    A(f"""
    s_lshl_b32 s{G_SPOFF}, s{S_RB}, 2
    s_add_u32 s{G_SPOFF}, s{G_SPOFF}, s{G_SWV}
    s_lshl_b32 s{G_SPOFF}, s{G_SPOFF}, 16
    s_add_u32 s{G_SPOFF}, s{G_SPOFF}, {WS_XN}
    s_lshl_b32 s{G_SWOFF}, s{S_HD}, 8
    """)
    gemm_mainloop(A, c, 16, 16384, 3584)
    A(f"""
    s_lshl_b32 s{G_ST}, s{S_RB}, 2
    s_add_u32 s{G_ST}, s{G_ST}, s{G_SWV}
    s_mul_i32 s{G_ST}, s{G_ST}, {4*28672}
    s_lshl_b32 s{G_ST+1}, s{S_HD}, 12
    s_add_u32 s{G_ST}, s{G_ST}, s{G_ST+1}
    s_add_u32 s{G_ST}, s{G_ST}, {WS_Z1}
    s_nop 7
    """)
    E = G_VP; n = 0
    for i in range(4):
        for kp in range(4):
            b = E + (n % 2) * 24; n += 1
            for r in range(4):
                A(f"v_accvgpr_read_b32 v{b+r}, a{acc(c,i,2*kp)+r}")
                A(f"v_accvgpr_read_b32 v{b+4+r}, a{acc(c,i,2*kp+1)+r}")
            gelu_n(A, list(range(b, b + 8)), b + 8)
            for q in range(4): A(f"v_cvt_pk_bf16_f32 v{b+20+q}, v{b+2*q}, v{b+2*q+1}")
            A(f"s_add_u32 s{G_ST+1}, s{G_ST}, {i*28672}")
            A(f"buffer_store_dwordx4 {vr(b+20,4)}, v{G_VL16}, s[{G_SP}:{G_SP+3}], s{G_ST+1} offen offset:{kp*1024} {st}")

C_Z2 = GemmCfg(np=4, nw=14, wp=1, ww=4, orient="PW", BK=32, NS=2, early=False, RW=4, PD=2)
Z2_LDS_STAT = 2 * 57344
def z2_tile(A, st=""):
    c = C_Z2
    A(f"""
    s_lshl_b32 s{G_SPOFF}, s{S_RB}, 16
    s_add_u32 s{G_SPOFF}, s{G_SPOFF}, {WS_XN}
    s_mov_b32 s{G_SWOFF}, 1792
    """)
    gemm_mainloop(A, c, 16, 16384, 3584)
    A("s_nop 7")
    SUM = 48; SQ = 64; X = 80; T = 96
    for j in range(14):
        for i in range(4):
            for r in range(4): A(f"v_accvgpr_read_b32 v{X+i*4+r}, a{acc(c,i,j)+r}")
        gelu_n(A, list(range(X, X + 16)), T)
        for q in range(16):
            if j == 0:
                A(f"v_mov_b32 v{SUM+q}, v{X+q}")
                A(f"v_mul_f32 v{SQ+q}, v{X+q}, v{X+q}")
            else:
                A(f"v_add_f32 v{SUM+q}, v{SUM+q}, v{X+q}")
                A(f"v_fmac_f32 v{SQ+q}, v{X+q}, v{X+q}")
            A(f"v_accvgpr_write_b32 a{acc(c,q//4,j)+q%4}, v{X+q}")
    for ctl in ("quad_perm:[1,0,3,2]", "quad_perm:[2,3,0,1]", "row_half_mirror", "row_mirror"):
        for q in range(32):
            A(f"v_add_f32_dpp v{SUM+q}, v{SUM+q}, v{SUM+q} {ctl} row_mask:0xf bank_mask:0xf")
    A(f"v_and_b32 v{T}, 15, v0")
    A(f"v_mov_b32 v{X}, v{SUM}\nv_mov_b32 v{X+1}, v{SQ}")
    for q in range(1, 16):
        A(f"v_cmp_eq_u32 vcc, {q}, v{T}")
        A("s_nop 1")
        A(f"v_cndmask_b32 v{X}, v{X}, v{SUM+q}, vcc")
        A(f"v_cndmask_b32 v{X+1}, v{X+1}, v{SQ+q}, vcc")
    A(f"""
    v_lshlrev_b32 v{T}, 3, v0
    v_add_u32 v{T}, {Z2_LDS_STAT}, v{T}
    ds_write_b64 v{T}, {vr(X,2)}
    v_lshrrev_b32 v{T+1}, 1, v{G_VL16}
    v_add_u32 v{T+1}, {Z2_LDS_STAT}, v{T+1}
    s_waitcnt lgkmcnt(0)
    s_barrier
    ds_read_b64 {vr(X,2)}, v{T+1}
    ds_read_b64 {vr(X+2,2)}, v{T+1} offset:512
    ds_read_b64 {vr(X+4,2)}, v{T+1} offset:1024
    ds_read_b64 {vr(X+6,2)}, v{T+1} offset:1536
    s_mov_b32 s{G_ST}, {f32(1.0/896):#x}
    s_waitcnt lgkmcnt(0)
    v_add_f32 v{X}, v{X}, v{X+2}
    v_add_f32 v{X+1}, v{X+1}, v{X+3}
    v_add_f32 v{X+4}, v{X+4}, v{X+6}
    v_add_f32 v{X+5}, v{X+5}, v{X+7}
    v_add_f32 v{X}, v{X}, v{X+4}
    v_add_f32 v{X+1}, v{X+1}, v{X+5}
    v_mul_f32 v{X}, s{G_ST}, v{X}            ; mean
    v_mul_f32 v{X+1}, s{G_ST}, v{X+1}        ; E[x2]
    v_fma_f32 v{X+1}, -v{X}, v{X}, v{X+1}    ; var
    v_max_f32 v{X+1}, 0, v{X+1}
    v_add_f32 v{X+1}, 0x3727c5ac, v{X+1}
    v_rsq_f32 v{X+1}, v{X+1}
    s_nop 0
    v_mul_f32 v{X}, v{X}, v{X+1}             ; mean*rstd
    s_nop 1
    """)
    for q in range(16):
        A(f"v_mov_b32_dpp v{SUM+q}, v{X} row_newbcast:{q} row_mask:0xf bank_mask:0xf")
        A(f"v_mov_b32_dpp v{SQ+q}, v{X+1} row_newbcast:{q} row_mask:0xf bank_mask:0xf")
    A(f"""
    s_mul_i32 s{G_ST}, s{G_SWV}, {14*65536}
    s_lshl_b32 s{G_ST+1}, s{S_RB}, 11
    s_add_u32 s{G_ST}, s{G_ST}, s{G_ST+1}
    s_add_u32 s{G_ST}, s{G_ST}, {WS_Z2}
    """)
    n = 0
    for j in range(14):
        A(f"s_add_u32 s{G_ST+1}, s{G_ST}, {j*65536}")
        for ip in range(2):
            b = X + (n % 3) * 12; n += 1
            for e in range(8):
                q = ip * 8 + e
                A(f"v_accvgpr_read_b32 v{b+e}, a{acc(c,q//4,j)+q%4}")
            for e in range(8):
                q = ip * 8 + e
                A(f"v_fma_f32 v{b+e}, v{b+e}, v{SQ+q}, -v{SUM+q}")
            for q in range(4): A(f"v_cvt_pk_bf16_f32 v{b+8+q}, v{b+2*q}, v{b+2*q+1}")
            A(f"buffer_store_dwordx4 {vr(b+8,4)}, v{G_VL16}, s[{G_SP}:{G_SP+3}], s{G_ST+1} offen offset:{ip*1024} {st}")

def z_kernel(A):
    A.raw(kernel_head("z_kernel"))
    A("s_cmp_ge_u32 s2, 88\ns_cbranch_scc1 L_z_exit")
    load_ptr(A, 4, "ws"); load_ptr(A, 16, "win")
    wave_id(A); gelu_consts(A)
    A("s_waitcnt lgkmcnt(0)")
    srd(A, G_SP, 4, WS_SIZE); srd(A, G_SW, 16, 512 * 3584)
    A("s_cmp_ge_u32 s2, 32\ns_cbranch_scc1 L_z_1")
    gemm_setup_addr(A, C_Z2, 3584)
    A(f"s_mov_b32 s{S_RB}, s2")
    z2_tile(A)
    A("s_branch L_z_exit")
    A.label("L_z_1")
    gemm_setup_addr(A, C_Z1, 3584)
    A(f"s_sub_u32 s3, s2, 32\ns_and_b32 s{S_RB}, s3, 7\ns_lshr_b32 s{S_HD}, s3, 3")
    z1_tile(A)
    A.label("L_z_exit")
    A("s_waitcnt vmcnt(0)\ns_endpgm")
    return kernel_desc("z_kernel", 480, 64, 256)

C_SP = GemmCfg(np=2, nw=16, wp=4, ww=1, orient="PW", wkind="rm", BK=64, NS=4, RW=4, PD=3)
S_BSP = 56
def sp_tile(A, st="", ld=""):
    c = C_SP
    A(f"""
    s_lshl_b32 s{G_SPOFF}, s{S_HD}, 2
    s_add_u32 s{G_SPOFF}, s{G_SPOFF}, s{G_SWV}
    s_lshl_b32 s{G_SPOFF}, s{G_SPOFF}, 17        ; 2 f tiles * 65536
    s_add_u32 s{G_SPOFF}, s{G_SPOFF}, {WS_Z2}
    s_lshl_b32 s{G_SWOFF}, s{S_RB}, 20           ; 256 rows * 4096
    """)
    gemm_mainloop(A, c, 64, 65536, 4096, sc=ld)
    A(f"""
    s_mul_i32 s{G_ST}, s{S_RB}, {16*28672}
    s_lshl_b32 s{G_ST+1}, s{S_HD}, 2
    s_add_u32 s{G_ST+1}, s{G_ST+1}, s{G_SWV}
    s_lshl_b32 s{G_ST+1}, s{G_ST+1}, 10
    s_add_u32 s{G_ST}, s{G_ST}, s{G_ST+1}
    v_and_b32 v{G_VT}, 15, v0
    v_lshlrev_b32 v{G_VT}, 1, v{G_VT}
    s_lshl_b32 s{G_ST+2}, s{S_RB}, 9
    s_mov_b32 s{G_ST+3}, 0xffff0000
    """)
    Z = 48; Bv = 112; X = 128
    for j in range(16):
        A(f"s_add_u32 s{G_ST+1}, s{G_ST}, {WS_Z1 + j*28672}")
        A(f"buffer_load_dwordx4 {vr(Z+4*j,4)}, v{G_VL16}, s[{G_SP}:{G_SP+3}], s{G_ST+1} offen {ld}")
        A(f"buffer_load_ushort v{Bv+j}, v{G_VT}, s[{S_BSP}:{S_BSP+3}], s{G_ST+2} offen offset:{j*32}")
    for j in range(16):
        b = X + (j % 3) * 20
        A(f"s_waitcnt vmcnt({2*(15-j) + j})")
        for r in range(4):
            A(f"v_accvgpr_read_b32 v{b+r}, a{acc(c,0,j)+r}")
            A(f"v_accvgpr_read_b32 v{b+4+r}, a{acc(c,1,j)+r}")
        A(f"v_lshlrev_b32 v{Bv+j}, 16, v{Bv+j}")
        for q in range(4):
            A(f"v_lshlrev_b32 v{b+8+2*q}, 16, v{Z+4*j+q}")
            A(f"v_and_b32 v{b+9+2*q}, s{G_ST+3}, v{Z+4*j+q}")
        for e in range(8): A(f"v_add_f32 v{b+e}, v{b+e}, v{Bv+j}")
        for e in range(8): A(f"v_mul_f32 v{b+e}, v{b+e}, v{b+8+e}")
        for q in range(4): A(f"v_cvt_pk_bf16_f32 v{b+16+q}, v{b+2*q}, v{b+2*q+1}")
        A(f"s_add_u32 s{G_ST+1}, s{G_ST}, {WS_U + j*28672}")
        A(f"buffer_store_dwordx4 {vr(b+16,4)}, v{G_VL16}, s[{G_SP}:{G_SP+3}], s{G_ST+1} offen {st}")

def sp_kernel(A):
    A.raw(kernel_head("sp_kernel"))
    A("s_cmp_ge_u32 s2, 56\ns_cbranch_scc1 L_sp_exit")
    load_ptr(A, 4, "ws"); load_ptr(A, 16, "wsp"); load_ptr(A, 18, "bsp")
    wave_id(A)
    A("s_waitcnt lgkmcnt(0)")
    srd(A, G_SP, 4, WS_SIZE); srd(A, G_SW, 16, 2048 * 4096); srd(A, S_BSP, 18, 4096)
    gemm_setup_addr(A, C_SP, 4096)
    A(f"s_and_b32 s{S_RB}, s2, 7\ns_lshr_b32 s{S_HD}, s2, 3")
    sp_tile(A)
    A.label("L_sp_exit")
    A("s_waitcnt vmcnt(0)\ns_endpgm")
    return kernel_desc("sp_kernel", 384, 64, 256)

def attn_task(A, s_seg, s_head, ld="", st=""):
    Qf, Kf, KM, Vf, VM, S, O, T = 8, 40, 72, 88, 120, 136, 160, 192
    A(f"""
    s_lshl_b32 s42, s{s_seg}, 5
    s_add_u32 s42, s42, s{s_head}          ; sh
    s_lshl_b32 s43, s42, 13
    s_add_u32 s43, s43, {WS_Q}
    s_add_u32 s44, s43, 4096
    s_lshl_b32 s45, s42, 14
    s_add_u32 s45, s45, {WS_KV}
    s_add_u32 s46, s45, 4096
    s_lshl_b32 s47, s42, 11
    s_add_u32 s47, s47, {WS_KM}
    """)
    for f in range(8): A(f"buffer_load_dwordx4 {vr(Qf+4*f,4)}, v1, s[8:11], s{43 + f//4} offen offset:{(f%4)*1024} {ld}")
    for f in range(4): A(f"buffer_load_dwordx4 {vr(KM+4*f,4)}, v2, s[8:11], s47 offen offset:{f*512} {ld}")
    for f in range(8): A(f"buffer_load_dwordx4 {vr(Kf+4*f,4)}, v1, s[8:11], s{45 + f//4} offen offset:{(f%4)*1024} {ld}")
    A(f"""
    s_add_u32 s45, s45, 8192
    s_add_u32 s46, s46, 8192
    s_lshl_b32 s47, s42, 12
    s_add_u32 s47, s47, {WS_VM}
    """)
    for f in range(8): A(f"buffer_load_dwordx4 {vr(Vf+4*f,4)}, v1, s[8:11], s{45 + f//4} offen offset:{(f%4)*1024} {ld}")
    for f in range(4): A(f"buffer_load_dwordx4 {vr(VM+4*f,4)}, v1, s[8:11], s47 offen offset:{f*1024} {ld}")
    A("s_waitcnt vmcnt(20)")
    def mm(d, a, b, first):
        A(f"v_mfma_f32_16x16x32_bf16 {vr(d,4)}, {vr(a,4)}, {vr(b,4)}, {'0' if first else vr(d,4)}")
    for kp in range(4):
        for Tq in range(2): mm(S + Tq * 12, KM + 4 * kp, Qf + (Tq * 4 + kp) * 4, kp == 0)
    A("s_waitcnt vmcnt(12)")
    for kp in range(4):
        mm(S + 4, Kf + 4 * kp, Qf + 4 * kp, kp == 0)
        mm(S + 16, Kf + 4 * kp, Qf + (4 + kp) * 4, kp == 0)
        mm(S + 20, Kf + (4 + kp) * 4, Qf + (4 + kp) * 4, kp == 0)
    A(f"v_mov_b32 v{T+8}, 0xf149f2ca\ns_nop 7")
    A(f"""
    s_lshl_b32 s43, s{s_seg}, 18
    s_lshl_b32 s44, s{s_head}, 12
    s_add_u32 s43, s43, s44
    s_add_u32 s43, s43, {WS_OX}
    """)
    for Tq in range(2):
        Sb = S + Tq * 12
        dg = Sb + 4 + 4 * Tq
        for r in range(4): A(f"v_cndmask_b32 v{dg+r}, v{T+8}, v{dg+r}, s[{60+2*r}:{61+2*r}]")
        nv = 8 if Tq == 0 else 12
        M, M2, L, L2 = T, T + 1, T + 2, T + 3
        A(f"v_max3_f32 v{M}, v{Sb}, v{Sb+1}, v{Sb+2}")
        A(f"v_max3_f32 v{M2}, v{Sb+3}, v{Sb+4}, v{Sb+5}")
        A(f"v_max3_f32 v{M}, v{M}, v{Sb+6}, v{Sb+7}")
        if nv == 12:
            A(f"v_max3_f32 v{M2}, v{M2}, v{Sb+8}, v{Sb+9}")
            A(f"v_max3_f32 v{M}, v{M}, v{Sb+10}, v{Sb+11}")
        A(f"""
        v_max_f32 v{M}, v{M}, v{M2}
        v_mov_b32 v{M2}, v{M}
        s_nop 1
        v_permlane16_swap_b32 v{M}, v{M2}
        v_max_f32 v{M}, v{M}, v{M2}
        v_mov_b32 v{M2}, v{M}
        s_nop 1
        v_permlane32_swap_b32 v{M}, v{M2}
        v_max_f32 v{M}, v{M}, v{M2}
        v_mul_f32 v{M}, s68, v{M}
        """)
        for i in range(nv): A(f"v_fma_f32 v{Sb+i}, v{Sb+i}, s68, -v{M}")
        for i in range(nv): A(f"v_exp_f32 v{Sb+i}, v{Sb+i}")
        A(f"""
        s_nop 0
        v_add_f32 v{L}, v{Sb}, v{Sb+1}
        v_add_f32 v{L2}, v{Sb+2}, v{Sb+3}
        v_add_f32 v{L}, v{L}, v{L2}
        v_mul_f32 v{L}, 0.5, v{L}
        """)
        for i in range(4, nv): A(f"v_add_f32 v{L}, v{L}, v{Sb+i}")
        A(f"""
        v_mov_b32 v{L2}, v{L}
        s_nop 1
        v_permlane16_swap_b32 v{L}, v{L2}
        v_add_f32 v{L}, v{L}, v{L2}
        v_mov_b32 v{L2}, v{L}
        s_nop 1
        v_permlane32_swap_b32 v{L}, v{L2}
        v_add_f32 v{L}, v{L}, v{L2}
        v_rcp_f32 v{L}, v{L}
        s_nop 0
        """)
        for i in range(nv): A(f"v_mul_f32 v{Sb+i}, v{Sb+i}, v{L}")
        PM, PX = T + 4, T + 12
        A(f"v_cvt_pk_bf16_f32 v{PM}, v{Sb}, v{Sb+1}\nv_cvt_pk_bf16_f32 v{PM+1}, v{Sb+2}, v{Sb+3}")
        A(f"v_cvt_pk_bf16_f32 v{PX}, v{Sb+4}, v{Sb+5}\nv_cvt_pk_bf16_f32 v{PX+1}, v{Sb+6}, v{Sb+7}")
        if nv == 12:
            A(f"v_cvt_pk_bf16_f32 v{PX+2}, v{Sb+8}, v{Sb+9}\nv_cvt_pk_bf16_f32 v{PX+3}, v{Sb+10}, v{Sb+11}")
        else:
            A(f"v_mov_b32 v{PX+2}, 0\nv_mov_b32 v{PX+3}, 0")
        A("s_waitcnt vmcnt(0)" if Tq == 0 else "s_nop 1")
        for f in range(8):
            A(f"v_mfma_f32_16x16x32_bf16 {vr(O+4*f,4)}, {vr(Vf+4*f,4)}, {vr(PX,4)}, 0")
        for f in range(8):
            A(f"v_mfma_f32_16x16x16_bf16 {vr(O+4*f,4)}, {vr(VM+2*f,2)}, {vr(PM,2)}, {vr(O+4*f,4)}")
        A("s_nop 7")
        for w in range(4):
            d = T + 16 + 4 * w
            for r in range(4): A(f"v_cvt_pk_bf16_f32 v{d+r}, v{O+8*w+r}, v{O+8*w+4+r}")
            A(f"buffer_store_dwordx4 {vr(d,4)}, v1, s[8:11], s43 offen offset:{w*1024} {st}")
        if Tq == 0: A("s_add_u32 s43, s43, 131072")

def attn_setup(A):
    A(f"""
    v_and_b32 v3, 63, v0
    v_lshlrev_b32 v1, 4, v3
    v_and_b32 v4, 7, v0
    v_bfe_u32 v5, v0, 4, 2            ; g
    v_lshlrev_b32 v2, 6, v4
    v_lshl_add_u32 v2, v5, 4, v2
    v_and_b32 v4, 15, v0
    v_lshlrev_b32 v5, 2, v5
    s_mov_b32 s68, 0x3e0293ee
    """)
    for r in range(4):
        A(f"v_add_u32 v6, {r}, v5")
        A(f"v_cmp_le_u32 s[{60+2*r}:{61+2*r}], v6, v4")

def attn_kernel(A):
    A.raw(kernel_head("attn_kernel"))
    A("s_cmp_ge_u32 s2, 512\ns_cbranch_scc1 L_at_exit")
    load_ptr(A, 4, "ws")
    A(f"v_lshrrev_b32 v7, 6, v0\ns_nop 0\nv_readfirstlane_b32 s{G_SWV}, v7")
    attn_setup(A)
    A(f"""
    s_lshr_b32 s30, s2, 3
    s_and_b32 s31, s2, 7
    s_lshl_b32 s31, s31, 2
    s_add_u32 s31, s31, s{G_SWV}
    s_waitcnt lgkmcnt(0)
    """)
    srd(A, 8, 4, WS_SIZE)
    attn_task(A, 30, 31)
    A.label("L_at_exit")
    A("s_waitcnt vmcnt(0)\ns_endpgm")
    return kernel_desc("attn_kernel", 224, 80, 224)

C_F1 = GemmCfg(np=1, nw=4, wp=4, ww=1, orient="WP", BK=128, NS=4, RW=4, PD=7, kpat="nat")
C_F2 = GemmCfg(np=1, nw=4, wp=4, ww=1, orient="WP", BK=128, NS=4, RW=4, PD=7, kpat="dd")
def final_kernel(A):
    A.raw(kernel_head("final_kernel"))
    A("s_cmp_ge_u32 s2, 256\ns_cbranch_scc1 L_f_exit")
    load_ptr(A, 4, "ws"); load_ptr(A, 16, "wo"); load_ptr(A, 18, "wout"); load_ptr(A, 20, "x"); load_ptr(A, 22, "out")
    wave_id(A)
    A(f"s_lshr_b32 s{S_RB}, s2, 3\ns_and_b32 s{S_HD}, s2, 7\ns_waitcnt lgkmcnt(0)")
    srd(A, G_SP, 4, WS_SIZE); srd(A, G_SW, 16, 4 << 20)
    gemm_setup_addr(A, C_F1, 1024)
    A(f"""
    s_lshl_b32 s60, s{S_RB}, 2
    s_add_u32 s60, s60, s{G_SWV}             ; tt
    s_lshl_b32 s{G_SPOFF}, s60, 17
    s_add_u32 s{G_SPOFF}, s{G_SPOFF}, {WS_OX}
    s_lshl_b32 s{G_SWOFF}, s{S_HD}, 7
    """)
    gemm_mainloop(A, C_F1, 128, 0, 1024)
    A("s_barrier")
    srd(A, G_SW, 18, 896 * 1024)
    gemm_setup_addr(A, C_F2, 1024)
    A(f"""
    s_mul_i32 s{G_SPOFF}, s60, 28672
    s_add_u32 s{G_SPOFF}, s{G_SPOFF}, {WS_U}
    s_lshl_b32 s{G_SWOFF}, s{S_HD}, 7
    """)
    gemm_mainloop(A, C_F2, 28, 0, 1024, first=False)
    srd(A, 64, 20, 2 << 20); srd(A, 68, 22, 2 << 20)
    A(f"""
    v_and_b32 v{G_VT}, 15, v0
    v_bfe_u32 v{G_VT+1}, v0, 4, 2
    v_lshlrev_b32 v{G_VT}, 10, v{G_VT}
    v_lshl_add_u32 v{G_VT}, v{G_VT+1}, 3, v{G_VT}
    s_lshl_b32 s61, s60, 14
    s_lshl_b32 s62, s{S_HD}, 7
    s_add_u32 s61, s61, s62
    s_mov_b32 s62, 0xffff0000
    """)
    X = 48
    for j in range(4): A(f"buffer_load_dwordx2 {vr(X+2*j,2)}, v{G_VT}, s[64:67], s61 offen offset:{j*32}")
    A("s_nop 7")
    for j in range(4):
        b = 60 + j * 10
        for r in range(4): A(f"v_accvgpr_read_b32 v{b+r}, a{4*j+r}")
        A(f"s_waitcnt vmcnt({3-j + j})" if False else f"s_waitcnt vmcnt(3)" if j == 0 else "s_waitcnt vmcnt(3)")
        A(f"""
        v_lshlrev_b32 v{b+4}, 16, v{X+2*j}
        v_and_b32 v{b+5}, s62, v{X+2*j}
        v_lshlrev_b32 v{b+6}, 16, v{X+2*j+1}
        v_and_b32 v{b+7}, s62, v{X+2*j+1}
        v_add_f32 v{b}, v{b}, v{b+4}
        v_add_f32 v{b+1}, v{b+1}, v{b+5}
        v_add_f32 v{b+2}, v{b+2}, v{b+6}
        v_add_f32 v{b+3}, v{b+3}, v{b+7}
        v_cvt_pk_bf16_f32 v{b+8}, v{b}, v{b+1}
        v_cvt_pk_bf16_f32 v{b+9}, v{b+2}, v{b+3}
        buffer_store_dwordx2 {vr(b+8,2)}, v{G_VT}, s[68:71], s61 offen offset:{j*32}
        """)
    A.label("L_f_exit")
    A("s_waitcnt vmcnt(0)\ns_endpgm")
    return kernel_desc("final_kernel", 128, 80, 112)

def build(launches, kernel_fns, path):
    A = Asm()
    for name, grid, lds in launches:
        A.raw(f"; @launch kernel={name} grid=({grid},1,1) block=(256,1,1) lds={lds}")
    A.raw('.amdgcn_target "amdgcn-amd-amdhsa--gfx950"\n.text')
    descs = []
    for fn in kernel_fns:
        descs.append(fn(A))
    for d in descs: A.raw(d)
    open(path, "w").write(A.text())

if __name__ == "__main__":
    build([("prep_kernel", 160, 0), ("qkv_kernel", 768, 65536)], [prep_kernel, qkv_kernel], "k1.s")
    build([("prep_kernel", 160, 0), ("qkv_kernel", 768, 65536), ("z_kernel", 88, Z2_LDS_STAT + 2048), ("sp_kernel", 56, 131072), ("attn_kernel", 512, 0), ("final_kernel", 256, 65536)],
          [prep_kernel, qkv_kernel, z_kernel, sp_kernel, attn_kernel, final_kernel], "k2.s")
```

```python
WS_XN   = 0x0000000
WS_MEMF = 0x0200000
WS_PART = 0x0300000
WS_FLAG = 0x0400000
WS_KM   = 0x0500000
WS_VM   = 0x0900000
WS_KV   = 0x2000000
WS_Q    = 0x4000000
WS_OX   = 0x5000000
WS_Z1   = 0x6000000
WS_Z2   = 0x6400000
WS_U    = 0x6800000
WS_YB   = 0x7000000
WS_SIZE = 0x10000000

def mem_col(u, ga, t, hf, e):
    return 64 * u + 16 * ga + 8 * (t // 2) + 4 * hf + 2 * (t % 2) + e
```

```python
from kernels import *
import chain as CH

def chain_kernel_simple(st):
    def fn(A):
        A.raw(kernel_head("chain_kernel"))
        A(f"""
        s_and_b32 s3, s2, 7
        s_cmp_lg_u32 s3, 0
        s_cbranch_scc1 L_ch_exit
        s_cmp_ge_u32 s2, 256
        s_cbranch_scc1 L_ch_exit
        s_lshr_b32 s{CH.S_H}, s2, 3
        s_load_dwordx4 s[72:75], s[0:1], 16
        s_load_dwordx4 s[76:79], s[0:1], 32
        s_load_dwordx2 s[80:81], s[0:1], 112
        s_waitcnt lgkmcnt(0)
        """)
        CH.chain_setup(A)
        CH.chain_load_weights(A)
        CH.chain_loop(A, st=st, timeout=2000000)
        A.label("L_ch_exit")
        A("s_waitcnt vmcnt(0)\ns_endpgm")
        return kernel_desc("chain_kernel", 512, 102, 256)
    return fn

HDR = open("parallel_sum__memory_aug_recurrent_mem_tr__mixer_gmlp__prompt.s.ref").read().split("; Override launch")[0]
def build_full(path, st):
    build([("prep_kernel", 160, 0), ("qkv_kernel", 768, 65536), ("chain_kernel", 256, CH.LDS_END), ("z_kernel", 88, Z2_LDS_STAT + 2048), ("sp_kernel", 56, 131072), ("attn_kernel", 512, 0), ("final_kernel", 256, 65536)],
          [prep_kernel, qkv_kernel, chain_kernel_simple(st), z_kernel, sp_kernel, attn_kernel, final_kernel], path)
    t = open(path).read()
    open(path, "w").write(HDR + t)
if __name__ == "__main__":
    build_full("parallel_sum__memory_aug_recurrent_mem_tr__mixer_gmlp__prompt.s", "sc1")
    build_full("full_f.s", "")
```

```python
from chain import *
import chain as C1

MEMF = 16
QA, KA, VA = 48, 56, 64
QF = 72
KX = 88
VX = 120

def interleave(A, mains, fills, per=1, start=0):
    fi = 0
    for i, m in enumerate(mains):
        A(m)
        if i >= start:
            for _ in range(per):
                if fi < len(fills):
                    A(fills[fi]); fi += 1
    while fi < len(fills):
        A(fills[fi]); fi += 1

def smf_s(acc, a, b):
    return f"v_smfmac_f32_16x16x64_bf16 {vr(acc,4)}, {vr(a,4)}, {b}, v{V_IDX}"
def mf_s(d, a, b, c):
    return f"v_mfma_f32_16x16x32_bf16 {vr(d,4)}, {vr(a,4)}, {vr(b,4)}, {c}"

def chain_loop2(A, st="", nsteps=64, timeout=20000, timing=False, stamps=False, pw=40, rw=40, rw2=30, pw0=0, kvld="", kv_wait=None, exp_st="", prog=None):
    def stamp(i):
        if stamps: A(f"s_memtime s[{82+2*i}:{83+2*i}]")
    def warm(n, r=QF):
        for i in range(n): A(f"v_mov_b32 v{r}, 0")
    L_step = A.newlabel("CH_step"); L_poll = A.newlabel("CH_poll"); L_red = A.newlabel("CH_red")
    L_done = A.newlabel("CH_done"); L_pok = A.newlabel("CH_pok"); L_rok = A.newlabel("CH_rok"); L_next = A.newlabel("CH_next")
    WS = f"s[{S_WS}:{S_WS+3}]"
    A(f"""
    s_mov_b32 s{S_STEP}, 0
    s_mov_b32 s{S_PHASE}, 0
    s_mov_b32 s{S_MEMOFF}, {WS_MEMF}
    s_mov_b32 s{S_PARTOFF}, {WS_PART}
    s_lshl_b32 s{S_T0}, s{S_H}, 14
    s_lshl_b32 s{S_T1}, s{S_W}, 11
    s_add_u32 s{S_T0}, s{S_T0}, s{S_T1}
    s_add_u32 s{S_KVOFF}, s{S_T0}, {WS_KV}
    s_lshl_b32 s{S_T0}, s{S_H}, 11
    s_add_u32 s{S_KMOFF}, s{S_T0}, {WS_KM}
    s_lshl_b32 s{S_T0}, s{S_H}, 12
    s_lshl_b32 s{S_T1}, s{S_W}, 10
    s_add_u32 s{S_T0}, s{S_T0}, s{S_T1}
    s_add_u32 s{S_VMOFF}, s{S_T0}, {WS_VM}
    s_lshl_b32 s{S_T0}, s{S_W}, 11
    s_add_u32 s{S_KXB}, s{S_T0}, {LDS_KX}
    s_add_u32 s{S_KXN}, s{S_T0}, {LDS_KX2}
    """)
    if kv_wait: kv_wait(A, 0)
    A(f"""
    s_mov_b32 m0, s{S_KXB}
    s_nop 0
    buffer_load_dwordx4 v{V_LANE16}, {WS}, s{S_KVOFF} offen {kvld} lds
    buffer_load_dwordx4 v{V_LANE16}, {WS}, s{S_KVOFF} offen offset:1024 {kvld} lds
    s_waitcnt vmcnt(0)
    s_barrier
    """)
    if timing: A(f"s_memtime s[{S_TM}:{S_TM+1}]")
    for i in range(24): A(f"v_mov_b32 v{QA+i}, 0")
    A.label(L_step)
    stamp(0)
    A(f"s_mov_b32 s{S_CNT2}, 0")
    A.label(L_poll)
    T = QF
    A(f"""
    buffer_load_dwordx4 {vr(MEMF,4)}, v{V_POLL}, {WS}, s{S_MEMOFF} offen sc1
    buffer_load_dwordx4 {vr(MEMF+4,4)}, v{V_POLL}, {WS}, s{S_MEMOFF} offen offset:1024 sc1
    s_add_u32 s{S_CNT2}, s{S_CNT2}, 1
    """)
    warm(pw)
    A(f"""
    s_cmp_gt_u32 s{S_CNT2}, {timeout}
    s_waitcnt vmcnt(0)
    v_max3_u32 v{T}, v{MEMF}, v{MEMF+1}, v{MEMF+2}
    v_max3_u32 v{T+1}, v{MEMF+3}, v{MEMF+4}, v{MEMF+5}
    v_max3_u32 v{T}, v{T}, v{MEMF+6}, v{MEMF+7}
    v_max_u32 v{T}, v{T}, v{T+1}
    v_cmp_eq_u32 vcc, -1, v{T}
    s_cbranch_scc1 {L_pok}
    s_nop 0
    s_cbranch_vccnz {L_poll}
    """)
    A.label(L_pok)
    stamp(1)
    A(f"""
    ds_write_b128 v{V_MEMW}, {vr(MEMF,4)}
    ds_write_b128 v{V_MEMW}, {vr(MEMF+4,4)} offset:1024
    """)
    Q0, Q1, K0, K1, V0, V1 = QA, QA + 4, KA, KA + 4, VA, VA + 4
    A(smf_s(Q0, MEMF, wreg(0, 0, 0))); A(smf_s(Q1, MEMF, wreg(0, 1, 0)))
    A(smf_s(Q0, MEMF + 4, wreg(0, 0, 1))); A(smf_s(Q1, MEMF + 4, wreg(0, 1, 1)))
    A("s_waitcnt lgkmcnt(0)\ns_barrier")
    stamp(2)
    for jj in range(3):
        A(f"ds_read_b128 {vr(MEMF+8+8*jj,4)}, v{V_MEMR+jj}")
        A(f"ds_read_b128 {vr(MEMF+12+8*jj,4)}, v{V_MEMR+jj} offset:1024")
    if kv_wait: kv_wait(A, 1)
    if prog: prog(A, 0)
    fills = [f"s_add_u32 s{S_T0}, s{S_KVOFF}, 8192\nbuffer_load_dwordx4 {vr(VX,4)}, v{V_LANE16}, {WS}, s{S_T0} offen {kvld}\nbuffer_load_dwordx4 {vr(VX+4,4)}, v{V_LANE16}, {WS}, s{S_T0} offen offset:1024 {kvld}",
             f"s_mov_b32 m0, s{S_KXN}\ns_add_u32 s{S_T0}, s{S_KVOFF}, {32*16384}\nbuffer_load_dwordx4 v{V_LANE16}, {WS}, s{S_T0} offen {kvld} lds\nbuffer_load_dwordx4 v{V_LANE16}, {WS}, s{S_T0} offen offset:1024 {kvld} lds",
             f"s_lshl_b32 s{S_T0}, s{S_W}, 11\ns_sub_u32 s{S_T0}, s{S_KXB}, s{S_T0}\nv_add_u32 v{QF}, s{S_T0}, v{V_LANE16}"]
    mains = [smf_s(K0 + 4 * p, MEMF + 4 * j, wreg(1, p, j)) for j in range(2) for p in range(2)]
    interleave(A, mains, fills)
    for j in range(2, 8):
        A(f"s_waitcnt lgkmcnt({7-j + max(0, 2*(j-2)-0) if False else 0})" if False else "")
    kxr = [f"ds_read_b128 {vr(KX+4*f,4)}, v{QF} offset:{f*1024}" for f in range(8)]
    ki = 0
    for j in range(2, 8):
        A(f"s_waitcnt lgkmcnt({7 - j + ki})")
        A(smf_s(Q0, MEMF + 4 * j, wreg(0, 0, j)))
        if j >= 4 and ki < 8: A(kxr[ki]); ki += 1
        A(smf_s(Q1, MEMF + 4 * j, wreg(0, 1, j)))
        if j >= 4 and ki < 8: A(kxr[ki]); ki += 1
    stamp(3)
    def fold_list(X0, X1, off, export):
        L = [f"v_permlane32_swap_b32 v{X0}, v{X0+1}", f"v_permlane32_swap_b32 v{X1}, v{X1+1}",
             f"v_permlane32_swap_b32 v{X0+2}, v{X0+3}", f"v_permlane32_swap_b32 v{X1+2}, v{X1+3}",
             f"v_add_f32 v{X0}, v{X0}, v{X0+1}", f"v_add_f32 v{X1}, v{X1}, v{X1+1}",
             f"v_add_f32 v{X0+2}, v{X0+2}, v{X0+3}", f"v_add_f32 v{X1+2}, v{X1+2}, v{X1+3}",
             f"v_cvt_pk_bf16_f32 v{X0}, v{X0}, v{X1}\nds_write_b32 v{V_QW}, v{X0} offset:{off}",
             f"v_cvt_pk_bf16_f32 v{X0+2}, v{X0+2}, v{X1+2}\nds_write_b32 v{V_QW}, v{X0+2} offset:{off+2*QP}"]
        return L
    mains = [smf_s(K0 + 4 * p, MEMF + 4 * j, wreg(1, p, j)) for j in range(2, 8) for p in range(2)]
    interleave(A, mains, fold_list(Q0, Q1, 0, False), per=1, start=1)
    A(smf_s(V0, MEMF, wreg(2, 0, 0)))
    A("s_waitcnt lgkmcnt(0)\ns_barrier")
    for kp in range(4): A(f"ds_read_b128 {vr(QF+4*kp,4)}, v{V_QR} offset:{kp*64}")
    A(smf_s(V1, MEMF, wreg(2, 1, 0)))
    stamp(4)
    mains = [smf_s(V0 + 4 * p, MEMF + 4 * j, wreg(2, p, j)) for j in range(1, 4) for p in range(2)]
    kf = fold_list(K0, K1, LDS_K2, True)
    interleave(A, mains, kf, per=2, start=0)
    A(f"""
    buffer_store_dword v{K0}, v{V_KMX}, {WS}, s{S_KMOFF} offen {exp_st}
    buffer_store_dword v{K0+2}, v{V_KMX}, {WS}, s{S_KMOFF} offen offset:128 {exp_st}
    """)
    S1, S2, S0 = QA, QA + 4, KA + 4
    A("s_waitcnt lgkmcnt(2)")
    for kp in range(4):
        A(mf_s(S1, KX + 4 * kp, QF + 4 * kp, "0" if kp == 0 else vr(S1, 4)))
        A(mf_s(S2, KX + 16 + 4 * kp, QF + 4 * kp, "0" if kp == 0 else vr(S2, 4)))
        if kp == 1:
            A("s_waitcnt lgkmcnt(0)\ns_barrier")
    KMF = KX
    for kp in range(4): A(f"ds_read_b128 {vr(KMF+4*kp,4)}, v{V_QR} offset:{LDS_K2+kp*64}")
    MX, M2, LX, L2 = KA, KA + 1, KA + 2, KA + 3
    xs = [f"v_max3_f32 v{MX}, v{S1}, v{S1+1}, v{S1+2}",
          f"v_max3_f32 v{M2}, v{S1+3}, v{S2}, v{S2+1}",
          f"v_max3_f32 v{MX}, v{MX}, v{S2+2}, v{S2+3}",
          f"v_max_f32 v{MX}, v{MX}, v{M2}",
          f"v_mov_b32 v{M2}, v{MX}",
          f"s_nop 1\nv_permlane16_swap_b32 v{MX}, v{M2}",
          f"v_max_f32 v{MX}, v{MX}, v{M2}",
          f"v_mov_b32 v{M2}, v{MX}",
          f"s_nop 1\nv_permlane32_swap_b32 v{MX}, v{M2}",
          f"v_max_f32 v{MX}, v{MX}, v{M2}",
          f"v_mul_f32 v{MX}, s{S_C}, v{MX}"]
    xs += [f"v_fma_f32 v{S1+i}, v{S1+i}, s{S_C}, -v{MX}" for i in range(8)]
    mains = [smf_s(V0 + 4 * p, MEMF + 4 * j, wreg(2, p, j)) for j in range(4, 8) for p in range(2)]
    interleave(A, mains, xs, per=2, start=1)
    stamp(5)
    ex = [f"v_exp_f32 v{S1+i}, v{S1+i}" for i in range(8)]
    A("s_waitcnt lgkmcnt(0)")
    mains = [mf_s(S0, KMF + 4 * kp, QF + 4 * kp, "0" if kp == 0 else vr(S0, 4)) for kp in range(4)]
    interleave(A, mains, ex, per=2, start=0)
    VM = MEMF + 28
    VM = VA
    A(f"""
    v_cvt_pk_bf16_f32 v{VM}, v{V0}, v{V0+1}
    v_cvt_pk_bf16_f32 v{VM+1}, v{V0+2}, v{V0+3}
    v_cvt_pk_bf16_f32 v{VM+2}, v{V1}, v{V1+1}
    v_cvt_pk_bf16_f32 v{VM+3}, v{V1+2}, v{V1+3}
    buffer_store_dwordx4 {vr(VM,4)}, v{V_LANE16}, {WS}, s{S_VMOFF} offen {exp_st}
    s_cmp_eq_u32 s{S_STEP}, {nsteps-1}
    s_cbranch_scc1 {L_done}
    """)
    MM, MT = VA + 4, VA + 5
    AL, LM = VA + 6, VA + 7
    AX, AM = KX + 16, KX + 24
    A(f"""
    v_max3_f32 v{MM}, v{S0}, v{S0+1}, v{S0+2}
    v_add_f32 v{LX}, v{S1}, v{S1+1}
    v_max_f32 v{MM}, v{MM}, v{S0+3}
    v_add_f32 v{L2}, v{S1+2}, v{S1+3}
    v_mov_b32 v{MT}, v{MM}
    v_add_f32 v{LX}, v{LX}, v{L2}
    v_add_f32 v{L2}, v{S2}, v{S2+1}
    v_permlane16_swap_b32 v{MM}, v{MT}
    v_add_f32 v{LX}, v{LX}, v{L2}
    v_max_f32 v{MM}, v{MM}, v{MT}
    v_add_f32 v{L2}, v{S2+2}, v{S2+3}
    v_mul_f32 v{MM}, s{S_C}, v{MM}
    v_add_f32 v{LX}, v{LX}, v{L2}
    v_max_f32 v{MM}, v{MM}, v{MX}
    v_fma_f32 v{S0}, v{S0}, s{S_C}, -v{MM}
    v_fma_f32 v{S0+1}, v{S0+1}, s{S_C}, -v{MM}
    v_fma_f32 v{S0+2}, v{S0+2}, s{S_C}, -v{MM}
    v_fma_f32 v{S0+3}, v{S0+3}, s{S_C}, -v{MM}
    v_exp_f32 v{S0}, v{S0}
    v_exp_f32 v{S0+1}, v{S0+1}
    v_exp_f32 v{S0+2}, v{S0+2}
    v_exp_f32 v{S0+3}, v{S0+3}
    v_sub_f32 v{AL}, v{MX}, v{MM}
    v_cvt_pk_bf16_f32 v{MX}, v{S0}, v{S0+1}
    v_cvt_pk_bf16_f32 v{M2}, v{S0+2}, v{S0+3}
    """)
    A(f"""
    v_exp_f32 v{AL}, v{AL}
    v_cvt_pk_bf16_f32 v{S1}, v{S1}, v{S1+1}
    v_mfma_f32_16x16x16_bf16 {vr(AM,4)}, {vr(VM,2)}, {vr(KA,2)}, 0
    v_cvt_pk_bf16_f32 v{S1+1}, v{S1+2}, v{S1+3}
    v_add_f32 v{LM}, v{S0}, v{S0+1}
    v_mfma_f32_16x16x16_bf16 {vr(AM+4,4)}, {vr(VM+2,2)}, {vr(KA,2)}, 0
    v_cvt_pk_bf16_f32 v{S1+2}, v{S2}, v{S2+1}
    v_cvt_pk_bf16_f32 v{S1+3}, v{S2+2}, v{S2+3}
    v_add_f32 v{L2}, v{S0+2}, v{S0+3}
    v_add_f32 v{LM}, v{LM}, v{L2}
    s_waitcnt vmcnt(5)
    v_mfma_f32_16x16x32_bf16 {vr(AX,4)}, {vr(VX,4)}, {vr(S1,4)}, 0
    v_mul_f32 v{LM}, 0.5, v{LM}
    v_fma_f32 v{LM}, v{LX}, v{AL}, v{LM}
    v_mfma_f32_16x16x32_bf16 {vr(AX+4,4)}, {vr(VX+4,4)}, {vr(S1,4)}, 0
    v_mov_b32 v{L2}, v{LM}
    """)
    WA = MEMF
    z = [f"v_mov_b32 v{WA+i}, 0" for i in range(32)]
    order = [(Tt, ups) for Tt in range(8) for ups in range(2)]
    WB = [QF, QF + 8, KX, KX + 8, AX, AM]
    def wo_read(i, buf):
        Tt, ups = order[i]
        A(f"ds_read_b128 {vr(buf,4)}, v{V_WOR} offset:{((Tt*2+ups)*2)*1024}")
        A(f"ds_read_b128 {vr(buf+4,4)}, v{V_WOR} offset:{((Tt*2+ups)*2+1)*1024}")
    for i in range(4): wo_read(i, WB[i])
    A(f"""
    v_permlane16_swap_b32 v{LM}, v{L2}
    v_cndmask_b32 v{S0}, v{AM+1}, v{AM}, s[{S_LO}:{S_LO+1}]
    v_add_f32 v{LM}, v{LM}, v{L2}
    v_cndmask_b32 v{S0+1}, v{AM+5}, v{AM+4}, s[{S_LO}:{S_LO+1}]
    v_mov_b32 v{L2}, v{LM}
    v_cndmask_b32 v{S0+2}, v{AM+3}, v{AM+2}, s[{S_LO}:{S_LO+1}]
    v_cndmask_b32 v{S0+3}, v{AM+7}, v{AM+6}, s[{S_LO}:{S_LO+1}]
    v_permlane32_swap_b32 v{LM}, v{L2}
    v_cndmask_b32 v{S2}, v{AX+1}, v{AX}, s[{S_LO}:{S_LO+1}]
    v_add_f32 v{LM}, v{LM}, v{L2}
    v_cndmask_b32 v{S2+1}, v{AX+5}, v{AX+4}, s[{S_LO}:{S_LO+1}]
    v_rcp_f32 v{LM}, v{LM}
    v_cndmask_b32 v{S2+2}, v{AX+3}, v{AX+2}, s[{S_LO}:{S_LO+1}]
    v_cndmask_b32 v{S2+3}, v{AX+7}, v{AX+6}, s[{S_LO}:{S_LO+1}]
    v_fma_f32 v{S0}, v{S2}, v{AL}, v{S0}
    v_fma_f32 v{S0+1}, v{S2+1}, v{AL}, v{S0+1}
    v_fma_f32 v{S0+2}, v{S2+2}, v{AL}, v{S0+2}
    v_fma_f32 v{S0+3}, v{S2+3}, v{AL}, v{S0+3}
    v_mul_f32 v{S0}, v{S0}, v{LM}
    v_mul_f32 v{S0+1}, v{S0+1}, v{LM}
    v_mul_f32 v{S0+2}, v{S0+2}, v{LM}
    v_mul_f32 v{S0+3}, v{S0+3}, v{LM}
    v_cvt_pk_bf16_f32 v{S0}, v{S0}, v{S0+1}
    v_cvt_pk_bf16_f32 v{S0+1}, v{S0+2}, v{S0+3}
    ds_write_b64 v{V_OW}, {vr(S0,2)}
    v_add_u32 v{MM}, {LDS_O}, v{V_LANE16}
    """)
    for zz in z[:12]: A(zz)
    A("s_waitcnt lgkmcnt(0)\ns_barrier")
    stamp(6)
    OF = VX
    A(f"ds_read_b128 {vr(OF,4)}, v{MM}\nds_read_b128 {vr(OF+4,4)}, v{MM} offset:1024")
    wo_read(4, WB[4]); wo_read(5, WB[5])
    A(f"""
    s_add_u32 s{S_KVOFF}, s{S_KVOFF}, {32*16384}
    s_mov_b32 s{S_T0}, s{S_KXB}
    s_mov_b32 s{S_KXB}, s{S_KXN}
    s_mov_b32 s{S_KXN}, s{S_T0}
    s_add_u32 s{S_T0}, s{S_PARTOFF}, 65536
    """)
    for zz in z[12:]: A(zz)
    A("s_waitcnt lgkmcnt(4)")
    PK = QA
    nb = 6
    def fold_tile(Tt):
        a = WA + 4 * Tt
        L = [f"v_permlane32_swap_b32 v{a}, v{a+1}", f"v_permlane32_swap_b32 v{a+2}, v{a+3}",
             f"v_add_f32 v{a}, v{a}, v{a+1}", f"v_add_f32 v{a+2}, v{a+2}, v{a+3}"]
        if Tt % 2 == 1:
            L += [f"v_cvt_pk_bf16_f32 v{PK+Tt//2}, v{a-4}, v{a}", f"v_cvt_pk_bf16_f32 v{PK+4+Tt//2}, v{a-2}, v{a+2}"]
            if Tt == 1:
                L += [f"v_bfi_b32 v{PK}, 1, s{S_PHASE}, v{PK}", f"v_bfi_b32 v{PK+4}, 1, s{S_PHASE}, v{PK+4}"]
        return L
    pend = []
    for i in range(16):
        Tt, ups = order[i]
        buf = WB[i % nb]
        if i >= 4:
            later = min(15, i + nb - 1) - i
            A(f"s_waitcnt lgkmcnt({min(15, 2*later)})")
        A(smf_s(WA + 4 * Tt, OF + 4 * ups, vr(buf, 8)))
        if i + nb < 16: wo_read(i + nb, buf)
        if ups == 1 and Tt >= 1: pend += fold_tile(Tt - 1)
        for _ in range(2):
            if pend: A(pend.pop(0))
    for x in pend: A(x)
    A("s_nop 3")
    for x in fold_tile(7): A(x)
    def mstore(lines):
        if st != "MODE":
            for l in lines: A(l + " " + st)
            return
        La = A.newlabel("MS"); Lb = A.newlabel("MS")
        A(f"s_cmp_lg_u32 s31, 0\ns_cbranch_scc1 {La}")
        for l in lines: A(l)
        A(f"s_branch {Lb}")
        A.label(La)
        for l in lines: A(l + " sc1")
        A.label(Lb)
    mstore([f"buffer_store_dwordx4 {vr(PK,4)}, v{V_PST}, {WS}, s{S_PARTOFF} offen",
            f"buffer_store_dwordx4 {vr(PK+4,4)}, v{V_PST}, {WS}, s{S_T0} offen"])
    A(f"""
    s_add_u32 s{S_MEMOFF}, s{S_MEMOFF}, 8192
    s_and_b32 s{S_MEMOFF}, s{S_MEMOFF}, {0xffff7fff:#x}
    s_xor_b32 s{S_T2}, s{S_MEMOFF}, 0x4000
    """)
    stamp(7)
    A(f"""
    s_add_u32 s{S_KMOFF}, s{S_KMOFF}, {32*2048}
    s_add_u32 s{S_VMOFF}, s{S_VMOFF}, {32*4096}
    s_add_u32 s{S_STEP}, s{S_STEP}, 1
    """)
    for i in range(8, 24): A(f"v_mov_b32 v{QA+i}, 0")
    for i in range(8): A(f"v_mov_b32 v{QA+i}, 0")
    A(f"s_cmp_lg_u32 s{S_W}, 0\ns_cbranch_scc1 {L_next}")
    R = 72; SEL = 104; D = 108; TT = 112
    A(f"""
    s_mov_b32 s{S_EXEC}, 0x00030003
    s_mov_b32 s{S_EXEC+1}, 0x00030003
    s_lshl_b32 s{S_T0}, s{S_H}, 13
    s_add_u32 s{S_T0}, s{S_T0}, s{S_PARTOFF}
    s_add_u32 s{S_T1}, s{S_T0}, 4096
    s_mov_b32 s{S_CNT}, 0
    """)
    for r in range(4):
        A(f"v_cndmask_b32 v{SEL+r}, 0, v{V_SELV}, s[{S_EXEC}:{S_EXEC+1}]")
        if r < 3: A(f"s_lshl_b64 s[{S_EXEC}:{S_EXEC+1}], s[{S_EXEC}:{S_EXEC+1}], 2")
    warm(rw, TT)
    A.label(L_red)
    for jj in range(8):
        A(f"buffer_load_dwordx4 {vr(R+4*jj,4)}, v{V_LANE16}, {WS}, s{S_T0 + jj//4} offen offset:{(jj%4)*1024} sc1")
    A(f"s_add_u32 s{S_CNT}, s{S_CNT}, 1")
    warm(rw2, TT)
    for jj in range(8):
        A(f"s_waitcnt vmcnt({7-jj})")
        A(mf_s(D, SEL, R + 4 * jj, "0" if jj == 0 else vr(D, 4)))
        if jj % 2 == 1:
            A(f"v_bitop3_b32 v{TT + jj//2}, v{R+4*jj-4}, v{R+4*jj}, s{S_PHASE} bitop3:0x7e")
    A(f"""
    v_or3_b32 v{TT}, v{TT}, v{TT+1}, v{TT+2}
    v_or_b32 v{TT}, v{TT}, v{TT+3}
    v_and_b32 v{TT}, 1, v{TT}
    v_cmp_ne_u32 vcc, 0, v{TT}
    s_cmp_gt_u32 s{S_CNT}, {timeout}
    s_cbranch_scc1 {L_rok}
    s_cbranch_vccnz {L_red}
    """)
    A.label(L_rok)
    stamp(8)
    A(f"""
    s_mov_b64 exec, 0xffffffff
    v_cvt_pk_bf16_f32 v{D}, v{D}, v{D+1}
    v_cvt_pk_bf16_f32 v{D+1}, v{D+2}, v{D+3}
    v_min_u32 v{D}, s{S_SENT}, v{D}
    v_min_u32 v{D+1}, s{S_SENT}, v{D+1}
    """)
    A(f"v_mov_b32 v{D+2}, -1\nv_mov_b32 v{D+3}, -1")
    mstore([f"buffer_store_dwordx2 {vr(D,2)}, v{V_MST}, {WS}, s{S_MEMOFF} offen",
            f"buffer_store_dwordx2 {vr(D+2,2)}, v{V_MST}, {WS}, s{S_T2} offen"])
    A("s_mov_b64 exec, -1")
    if pw0:
        L_n2 = A.newlabel("CH_n2")
        A(f"s_branch {L_n2}")
        A.label(L_next)
        warm(pw0)
        A.label(L_n2)
    else:
        A.label(L_next)
    if stamps:
        stamp(9)
        A("s_waitcnt lgkmcnt(0)")
        for i in range(1, NST):
            A(f"s_sub_u32 s{S_T0}, s{82+2*i}, s{82+2*(i-1)}")
            A(f"v_writelane_b32 v0, s{S_T0}, {i}")
        A(f"v_writelane_b32 v0, s{S_CNT}, 10")
        A(f"v_writelane_b32 v0, s{S_CNT2}, 11")
    A(f"""
    s_xor_b32 s{S_PARTOFF}, s{S_PARTOFF}, {0x40000}
    s_bfe_i32 s{S_PHASE}, s{S_STEP}, 0x10001
    s_branch {L_step}
    """)
    A.label(L_done)
    if prog: prog(A, 1)
    if timing:
        A(f"""
        s_memtime s[{S_TM+2}:{S_TM+3}]
        s_waitcnt lgkmcnt(0)
        s_sub_u32 s{S_TM+2}, s{S_TM+2}, s{S_TM}
        """)

def tk(path, **kw):
    C1.chain_loop = chain_loop2
    open(path, "w").write(C1.test_kernel(**kw))

if __name__ == "__main__":
    tk("c2_t.s", stamps=True)
    tk("c2_a.s")
    tk("c2_b.s", pw=50, rw=60, rw2=40, pw0=100)
    tk("c2_c.s", pw=50, rw=20, rw2=50, pw0=140)
    tk("c2_d.s", pw=0, rw=0, rw2=0, pw0=0)
```

```python
from kernels import *
import chain as CH
import chain2 as CH2

F_XCC = 0
F_DEC = 8 * 128
F_TICK = 9 * 128
F_ZD = 10 * 128
F_CH2 = 11 * 128
F_KV = 16 * 128
LDS_MBOX = CH.LDS_END
LDS_MAIN = LDS_MBOX + 64
S_MODE = 31
S_FL = 84
S_TK = 88
S_GO = 89

def wg_atomic(A, off, val, dst, op="add", val2=None):
    L = A.newlabel("AT")
    A(f"s_cmp_lg_u32 s{G_SWV}, 0\ns_cbranch_scc1 {L}")
    A(f"v_mov_b32 v2, {off}" if isinstance(off, int) else f"v_mov_b32 v2, {off}")
    A(f"v_mov_b32 v4, {val}")
    if op == "cas": A(f"v_mov_b32 v5, {val2}")
    A(f"s_mov_b32 s{dst}, {WS_FLAG}")
    A("s_mov_b64 exec, 1")
    if op == "add":
        A(f"buffer_atomic_add v4, v2, s[{S_FL}:{S_FL+3}], s{dst} offen sc0 sc1")
    elif op == "cas":
        A(f"buffer_atomic_cmpswap v[4:5], v2, s[{S_FL}:{S_FL+3}], s{dst} offen sc0 sc1")
    elif op == "load":
        A(f"buffer_load_dword v4, v2, s[{S_FL}:{S_FL+3}], s{dst} offen sc1")
    A(f"v_mov_b32 v3, {LDS_MBOX}")
    A("s_waitcnt vmcnt(0)")
    A("ds_write_b32 v3, v4")
    A("s_mov_b64 exec, -1")
    A("s_waitcnt lgkmcnt(0)")
    A.label(L)
    A(f"""
    s_barrier
    v_mov_b32 v3, {LDS_MBOX}
    ds_read_b32 v4, v3
    s_waitcnt lgkmcnt(0)
    v_readfirstlane_b32 s{dst}, v4
    s_barrier
    """)

def signal(A, off_sgpr_or_int):
    L = A.newlabel("SG")
    A("s_waitcnt vmcnt(0)\ns_barrier")
    A(f"s_cmp_lg_u32 s{G_SWV}, 0\ns_cbranch_scc1 {L}")
    A(f"v_mov_b32 v2, {off_sgpr_or_int}")
    A(f"v_mov_b32 v4, 1\ns_mov_b32 s{G_ST}, {WS_FLAG}\ns_mov_b64 exec, 1")
    A(f"buffer_atomic_add v4, v2, s[{S_FL}:{S_FL+3}], s{G_ST} offen sc1")
    A("s_mov_b64 exec, -1")
    A.label(L)

def wait_flag(A, off, target, tmp_v, tmp_s, srd_s, sleep=2, timeout=4000000):
    L = A.newlabel("WF"); L2 = A.newlabel("WFd")
    A(f"v_mov_b32 v{tmp_v}, {off}")
    A(f"s_mov_b32 s{tmp_s+1}, 0")
    A.label(L)
    A(f"""
    buffer_load_dword v{tmp_v+1}, v{tmp_v}, s[{srd_s}:{srd_s+3}], 0 offen sc1
    s_add_u32 s{tmp_s+1}, s{tmp_s+1}, 1
    s_waitcnt vmcnt(0)
    v_readfirstlane_b32 s{tmp_s}, v{tmp_v+1}
    s_cmp_ge_u32 s{tmp_s}, {target}
    s_cbranch_scc1 {L2}
    s_cmp_gt_u32 s{tmp_s+1}, {timeout}
    s_cbranch_scc1 {L2}
    s_sleep {sleep}
    s_branch {L}
    """)
    A.label(L2)

def order_ranges():
    R = []
    R.append((64, "KV", 0)); R.append((32, "Z2", 0)); R.append((64, "KV", 1)); R.append((56, "Z1", 0))
    R.append((384, "KV", 2)); R.append((96, "Q", 0)); R.append((56, "SP", 0)); R.append((160, "Q", 96))
    return R

def main_kernel(chain_kw={}, force_abort=False):
    def fn(A):
        A.raw(kernel_head("main_kernel"))
        A("s_cmp_ge_u32 s2, 256\ns_cbranch_scc1 L_m_exit")
        load_ptr(A, 80, "ws")
        wave_id(A)
        A(f"s_getreg_b32 s3, hwreg(HW_REG_XCC_ID)\ns_and_b32 s3, s3, 7\ns_mov_b32 s{S_GO}, 0\ns_waitcnt lgkmcnt(0)")
        srd(A, S_FL, 80, WS_SIZE)
        A("s_cmp_lg_u32 s3, 0\ns_cbranch_scc1 L_m_work")
        wg_atomic(A, F_XCC, 1, CH.S_H)
        A(f"s_cmp_ge_u32 s{CH.S_H}, 32\ns_cbranch_scc1 L_m_work")
        A(f"s_mov_b32 s{S_MODE}, 0")
        A.label("L_m_chain")
        A(f"""
        s_load_dwordx4 s[72:75], s[0:1], 16
        s_load_dwordx4 s[76:79], s[0:1], 32
        s_waitcnt lgkmcnt(0)
        """)
        CH.chain_setup(A)
        CH.chain_load_weights(A)
        A(f"s_cmp_lg_u32 s{S_MODE}, 0\ns_cbranch_scc1 L_m_go")
        A(f"""
        v_mov_b32 v16, {WS_FLAG + F_XCC}
        s_mov_b32 s{CH.S_CNT}, 0
        """)
        A.label("L_m_cnt")
        A(f"""
        buffer_load_dword v17, v16, s[{S_FL}:{S_FL+3}], 0 offen sc1
        s_add_u32 s{CH.S_CNT}, s{CH.S_CNT}, 1
        s_waitcnt vmcnt(0)
        v_readfirstlane_b32 s{CH.S_T0}, v17
        s_mov_b32 s{CH.S_T1}, 1
        s_cmp_ge_u32 s{CH.S_T0}, {33 if force_abort else 32}
        s_cbranch_scc1 L_m_dec
        s_mov_b32 s{CH.S_T1}, 2
        s_cmp_gt_u32 s{CH.S_CNT}, 200
        s_cbranch_scc1 L_m_dec
        s_sleep 8
        s_branch L_m_cnt
        """)
        A.label("L_m_dec")
        A(f"""
        v_mov_b32 v16, {WS_FLAG + F_DEC}
        v_mov_b32 v18, s{CH.S_T1}
        v_mov_b32 v19, 0
        s_mov_b64 exec, 1
        buffer_atomic_cmpswap v[18:19], v16, s[{S_FL}:{S_FL+3}], 0 offen sc0 sc1
        s_waitcnt vmcnt(0)
        v_readfirstlane_b32 s{CH.S_T0}, v18
        s_mov_b64 exec, -1
        s_cmp_eq_u32 s{CH.S_T0}, 0
        s_cselect_b32 s{CH.S_T0}, s{CH.S_T1}, s{CH.S_T0}
        s_cmp_eq_u32 s{CH.S_T0}, 1
        s_cbranch_scc1 L_m_go
        s_barrier
        s_branch L_m_work
        """)
        A.label("L_m_go")
        def kv_wait(A, which):
            if which == 0:
                wait_flag(A, WS_FLAG + F_KV, 64, CH2.QF, CH.S_T0, CH.S_WS, sleep=1)
            else:
                L = A.newlabel("KW")
                A(f"""
                s_add_u32 s{CH.S_T2}, s{CH.S_STEP}, 1
                s_and_b32 s{CH.S_T0}, s{CH.S_T2}, 7
                s_cmp_lg_u32 s{CH.S_T0}, 0
                s_cbranch_scc1 {L}
                s_cmp_ge_u32 s{CH.S_T2}, 64
                s_cbranch_scc1 {L}
                s_lshl_b32 s{CH.S_T2}, s{CH.S_T2}, 4
                s_add_u32 s{CH.S_T2}, s{CH.S_T2}, {WS_FLAG + F_KV}
                """)
                wait_flag(A, f"s{CH.S_T2}", 64, CH2.QF, CH.S_T0, CH.S_WS, sleep=1)
                A.label(L)
        CH2.chain_loop2(A, st="MODE", timeout=2000000, kvld="sc1", kv_wait=kv_wait, **chain_kw)
        A("s_branch L_m_exit")
        A.label("L_m_work")
        wave_id(A)
        gelu_consts(A)
        A.label("L_m_next")
        A(f"s_cmp_eq_u32 s{S_GO}, 1\ns_cbranch_scc1 L_m_tick")
        wg_atomic(A, F_DEC, 0, S_GO, op="load")
        A(f"s_cmp_lg_u32 s{S_GO}, 2\ns_cbranch_scc1 L_m_tick")
        wg_atomic(A, F_CH2, 1, CH.S_H)
        A(f"s_mov_b32 s{S_GO}, 1\ns_mov_b32 s{S_MODE}, 1\ns_cmp_lt_u32 s{CH.S_H}, 32\ns_cbranch_scc1 L_m_chain")
        A.label("L_m_tick")
        wg_atomic(A, F_TICK, 1, S_TK)
        srd(A, G_SP, 80, WS_SIZE)
        start = 0
        for n, kind, base in order_ranges():
            L = A.newlabel("RG")
            A(f"s_cmp_ge_u32 s{S_TK}, {start + n}\ns_cbranch_scc1 {L}")
            A(f"s_sub_u32 s3, s{S_TK}, {start}")
            if kind == "KV":
                A(f"s_add_u32 s3, s3, {base*64}\ns_branch L_w_KV")
            elif kind == "Q":
                A(f"s_add_u32 s3, s3, {base}\ns_branch L_w_Q")
            else:
                A(f"s_branch L_w_{kind}")
            A.label(L)
            start += n
        A(f"s_cmp_eq_u32 s{S_GO}, 1\ns_cbranch_scc1 L_m_exit\ns_sleep 20\ns_branch L_m_next")
        A.label("L_w_KV")
        A("s_load_dwordx4 s[16:19], s[0:1], 24")
        gemm_setup_addr(A, C_QK, 8192); qkv_epi_addr(A)
        A(f"s_and_b32 s{S_HD}, s3, 31\ns_lshr_b32 s{S_RB}, s3, 6\ns_bitcmp1_b32 s3, 5\ns_waitcnt lgkmcnt(0)\ns_cbranch_scc1 L_w_V")
        srd(A, G_SW, 16, 4 << 20)
        qkv_tile(A, "K", st="sc1")
        A("s_branch L_w_KVd")
        A.label("L_w_V")
        srd(A, G_SW, 18, 4 << 20)
        qkv_tile(A, "V", st="sc1")
        A.label("L_w_KVd")
        A(f"s_lshl_b32 s3, s{S_RB}, 7\ns_add_u32 s3, s3, {F_KV}")
        signal(A, "s3")
        A("s_branch L_m_next")
        A.label("L_w_Q")
        load_ptr(A, 16, "wq")
        gemm_setup_addr(A, C_QK, 8192)
        A(f"s_and_b32 s{S_HD}, s3, 31\ns_lshr_b32 s{S_RB}, s3, 5\ns_waitcnt lgkmcnt(0)")
        srd(A, G_SW, 16, 4 << 20)
        qkv_tile(A, "Q")
        A("s_barrier\ns_branch L_m_next")
        A.label("L_w_Z2")
        load_ptr(A, 16, "win")
        gemm_setup_addr(A, C_Z2, 3584)
        A(f"s_mov_b32 s{S_RB}, s3\ns_waitcnt lgkmcnt(0)")
        srd(A, G_SW, 16, 512 * 3584)
        z2_tile(A, st="sc1")
        signal(A, F_ZD)
        A("s_branch L_m_next")
        A.label("L_w_Z1")
        load_ptr(A, 16, "win")
        gemm_setup_addr(A, C_Z1, 3584)
        A(f"s_and_b32 s{S_RB}, s3, 7\ns_lshr_b32 s{S_HD}, s3, 3\ns_waitcnt lgkmcnt(0)")
        srd(A, G_SW, 16, 512 * 3584)
        z1_tile(A, st="sc1")
        signal(A, F_ZD)
        A("s_branch L_m_next")
        A.label("L_w_SP")
        load_ptr(A, 16, "wsp"); load_ptr(A, 18, "bsp")
        gemm_setup_addr(A, C_SP, 4096)
        A(f"s_and_b32 s{S_RB}, s3, 7\ns_lshr_b32 s{S_HD}, s3, 3\ns_waitcnt lgkmcnt(0)")
        srd(A, G_SW, 16, 2048 * 4096); srd(A, S_BSP, 18, 4096)
        wait_flag(A, WS_FLAG + F_ZD, 88, G_VT, G_ST, S_FL, sleep=8)
        A("s_barrier")
        sp_tile(A, ld="sc1")
        A("s_barrier\ns_branch L_m_next")
        A.label("L_m_exit")
        A("s_waitcnt vmcnt(0)\ns_endpgm")
        return kernel_desc("main_kernel", 512, 102, 256)
    return fn

HDR = open("parallel_sum__memory_aug_recurrent_mem_tr__mixer_gmlp__prompt.s.ref").read().split("; Override launch")[0]
def build_main(path, **kw):
    build([("prep_kernel", 160, 0), ("main_kernel", 256, LDS_MAIN), ("attn_kernel", 512, 0), ("final_kernel", 256, 65536)],
          [prep_kernel, main_kernel(**kw), attn_kernel, final_kernel], path)
    t = open(path).read()
    open(path, "w").write(HDR + t)
if __name__ == "__main__":
    ck = dict(pw=50, rw=60, rw2=40, pw0=100)
    build_main("m1.s", chain_kw=ck)
    build_main("m1_abort.s", chain_kw=ck, force_abort=True)
```

```python
from dsl import *
from layout import *

LDS_WO = 0
LDS_KX = 131072
LDS_MEM = LDS_KX + 8192
LDS_QK = LDS_MEM + 8192
QP = 272
LDS_K2 = 8 * QP
LDS_O = LDS_QK + 4608
LDS_KX2 = LDS_O + 2048
LDS_DUMMY = LDS_KX2 + 8192
LDS_END = LDS_DUMMY + 256

S_WQ, S_WK, S_WV, S_WO, S_WS = 8, 12, 16, 20, 24
S_H, S_W, S_STEP = 28, 29, 30
S_SLOT = 32
S_SELLO, S_SELHI = 40, 41
S_T0, S_T1, S_T2 = 42, 43, 44
S_MEMOFF, S_PARTOFF, S_KVOFF, S_KMOFF, S_VMOFF = 45, 46, 47, 48, 49
S_LO = 50
S_CNT = 52
S_C = 53
S_SENT = 54
S_EXEC = 56
S_TM = 58
S_DBG = 66
S_KXB = 68
S_KXN = 69
S_PHASE = 70
S_CNT2 = 71

V_LANE16 = 1
V_POLL = 2
V_MEMW = 3
V_MEMR = 4
V_IDX = 7
V_QW = 8
V_QR = 9
V_KMX = 10
V_OW = 11
V_PST = 12
V_SELV = 13
V_MST = 14
V_WOR = 15
V_A = 16
V_ACC = 48
V_QF = 72
V_KF = 88
V_S = 104
V_VX = 116
V_T = 124
V_WV = 128

def wreg(mat, par, j, n=8):
    idx = (par * 8 + j) * 8
    if mat == 0: return ar(idx, n)
    if mat == 1: return ar(128 + idx, n)
    return vr(V_WV + idx, n)

def chain_setup(A):
    srd(A, S_WQ, 72, 4 << 20)
    srd(A, S_WK, 74, 4 << 20)
    srd(A, S_WV, 76, 4 << 20)
    srd(A, S_WO, 78, 4 << 20)
    srd(A, S_WS, 80, WS_SIZE)
    A(f"""
    v_lshrrev_b32 v124, 6, v0
    v_and_b32 v125, 63, v0            ; lane
    s_nop 0
    v_readfirstlane_b32 s{S_W}, v124
    v_and_b32 v126, 15, v125          ; n16
    v_lshrrev_b32 v127, 4, v125       ; g
    v_lshlrev_b32 v{V_LANE16}, 4, v125
    s_mov_b32 s{S_SELLO}, 0x05040100
    s_mov_b32 s{S_SELHI}, 0x07060302
    s_mov_b32 s{S_LO}, 0x33333333
    s_mov_b32 s{S_LO+1}, 0x33333333
    s_mov_b32 s{S_C}, 0x3e0293ee
    s_mov_b32 s{S_SENT}, 0xfffffffe
    """)
    A(f"""
    s_lshl_b32 s{S_T0}, s{S_W}, 11
    v_lshlrev_b32 v{V_POLL}, 6, v126
    v_lshl_add_u32 v{V_POLL}, v127, 4, v{V_POLL}
    v_add_u32 v{V_POLL}, s{S_T0}, v{V_POLL}
    """)
    A(f"""
    s_lshl_b32 s{S_T0}, s{S_W}, 11
    s_add_u32 s{S_T0}, s{S_T0}, {LDS_MEM}
    v_add_u32 v{V_MEMW}, s{S_T0}, v{V_LANE16}
    """)
    for jj in range(3):
        A(f"""
        s_lshl_b32 s{S_T0}, s{S_W}, 1
        s_add_u32 s{S_T0}, s{S_T0}, {2*jj+2}
        s_and_b32 s{S_T0}, s{S_T0}, 7
        s_lshl_b32 s{S_T0}, s{S_T0}, 10
        s_add_u32 s{S_T0}, s{S_T0}, {LDS_MEM}
        v_add_u32 v{V_MEMR+jj}, s{S_T0}, v{V_LANE16}
        """)
    A(f"""
    v_mov_b32 v{V_IDX}, 0xeeee
    v_mov_b32 v120, 0x4444
    v_cndmask_b32 v{V_IDX}, v{V_IDX}, v120, s[{S_LO}:{S_LO+1}]
    """)
    A(f"""
    v_lshlrev_b32 v120, 1, v127        ; ra = 2g
    v_and_b32 v121, 7, v126
    v_lshrrev_b32 v121, 1, v121
    v_lshlrev_b32 v121, 4, v121        ; gq*16
    v_lshrrev_b32 v122, 3, v126
    v_lshl_add_u32 v121, v122, 3, v121 ; + half*8
    v_and_b32 v122, 1, v126
    v_lshl_add_u32 v121, v122, 2, v121 ; + (n16&1)*4
    v_mul_u32_u24 v{V_QW}, {QP}, v120
    v_add_u32 v{V_QW}, v{V_QW}, v121
    s_lshl_b32 s{S_T0}, s{S_W}, 6
    s_add_u32 s{S_T0}, s{S_T0}, {LDS_QK}
    v_add_u32 v{V_QW}, s{S_T0}, v{V_QW}
    v_lshl_add_u32 v{V_KMX}, v120, 6, v121
    s_lshl_b32 s{S_T0}, s{S_W}, 9
    v_add_u32 v{V_KMX}, s{S_T0}, v{V_KMX}
    v_lshrrev_b32 v122, 2, v126
    v_lshlrev_b32 v122, 1, v122
    v_and_b32 v123, 1, v126
    v_add_u32 v122, v122, v123
    v_mul_u32_u24 v{V_QR}, {QP}, v122
    v_lshl_add_u32 v{V_QR}, v127, 4, v{V_QR}
    v_add_u32 v{V_QR}, {LDS_QK}, v{V_QR}
    s_lshr_b32 s{S_T0}, s{S_W}, 1
    s_lshl_b32 s{S_T0}, s{S_T0}, 10
    s_and_b32 s{S_T1}, s{S_W}, 1
    s_lshl_b32 s{S_T1}, s{S_T1}, 3
    s_add_u32 s{S_T0}, s{S_T0}, s{S_T1}
    s_add_u32 s{S_T0}, s{S_T0}, {LDS_O}
    v_add_u32 v{V_OW}, s{S_T0}, v{V_LANE16}
    v_lshlrev_b32 v{V_PST}, 15, v120
    v_lshl_add_u32 v{V_PST}, v126, 4, v{V_PST}
    s_lshl_b32 s{S_T0}, s{S_W}, 13
    s_lshl_b32 s{S_T1}, s{S_H}, 8
    s_add_u32 s{S_T0}, s{S_T0}, s{S_T1}
    v_add_u32 v{V_PST}, s{S_T0}, v{V_PST}
    ; SELV = 0x3f80 << (16*(n16&1))
    v_and_b32 v122, 1, v126
    v_lshlrev_b32 v122, 4, v122
    v_mov_b32 v{V_SELV}, 0x3f80
    v_lshlrev_b32 v{V_SELV}, v122, v{V_SELV}
    ; MST = (2w' + n16/8)*1024 + (i + 8*(g&1))*64 + ((n16/2)&3)*16 + (n16&1)*8 ; i = h>>2, w' = h&3
    v_lshrrev_b32 v122, 3, v126
    v_lshlrev_b32 v{V_MST}, 10, v122
    v_and_b32 v122, 1, v127
    v_lshl_add_u32 v{V_MST}, v122, 7, v{V_MST}
    v_bfe_u32 v122, v126, 1, 2
    v_lshl_add_u32 v{V_MST}, v122, 4, v{V_MST}
    v_and_b32 v122, 1, v126
    v_lshl_add_u32 v{V_MST}, v122, 3, v{V_MST}
    s_and_b32 s{S_T0}, s{S_H}, 3
    s_lshl_b32 s{S_T0}, s{S_T0}, 11
    s_lshr_b32 s{S_T1}, s{S_H}, 3
    s_lshl_b32 s{S_T1}, s{S_T1}, 8
    s_add_u32 s{S_T0}, s{S_T0}, s{S_T1}
    s_bfe_u32 s{S_T1}, s{S_H}, 0x10002
    s_lshl_b32 s{S_T1}, s{S_T1}, 6
    s_add_u32 s{S_T0}, s{S_T0}, s{S_T1}
    v_add_u32 v{V_MST}, s{S_T0}, v{V_MST}
    s_lshl_b32 s{S_T0}, s{S_W}, 15
    v_add_u32 v{V_WOR}, s{S_T0}, v{V_LANE16}
    """)
    for j in range(8):
        A(f"""
        s_lshl_b32 s{S_T0}, s{S_W}, 1
        s_add_u32 s{S_T0}, s{S_T0}, {j}
        s_and_b32 s{S_T0}, s{S_T0}, 7
        s_lshl_b32 s{S_SLOT+j}, s{S_T0}, 19     ; 64*u*8192
        """)
    A(f"""
    v_lshlrev_b32 v120, 16, v127
    v_lshl_add_u32 v120, v126, 2, v120
    s_lshl_b32 s{S_T0}, s{S_H}, 8
    s_lshl_b32 s{S_T1}, s{S_W}, 6
    s_add_u32 s{S_T0}, s{S_T0}, s{S_T1}
    v_add_u32 v120, s{S_T0}, v120
    ; v121 = (h*128 + 32*(g&1) + 8*(g>>1))*1024 + (128w + 8 n16)*2   (Wo)
    v_and_b32 v121, 1, v127
    v_lshlrev_b32 v121, 15, v121
    v_lshrrev_b32 v122, 1, v127
    v_lshl_add_u32 v121, v122, 13, v121
    v_lshl_add_u32 v121, v126, 4, v121
    s_lshl_b32 s{S_T0}, s{S_H}, 17
    s_lshl_b32 s{S_T1}, s{S_W}, 8
    s_add_u32 s{S_T0}, s{S_T0}, s{S_T1}
    v_add_u32 v121, s{S_T0}, v121
    """)

def chain_load_weights(A):
    batches = [(m, j) for m in range(3) for j in range(8)]
    NB = 3
    def bank(b): return 16 + (b % 4) * 16
    srds = [S_WQ, S_WK, S_WV]
    def issue(b):
        m, j = batches[b]
        for rr in range(8):
            for e in range(2):
                rowoff = 32 * (rr // 4) + 4 * (rr % 2) + 2 * ((rr % 4) // 2) + e
                A(f"s_add_u32 s{S_T0 + (rr*2+e) % 3}, s{S_SLOT+j}, {rowoff*8192}")
                A(f"buffer_load_dword v{bank(b) + rr*2 + e}, v120, s[{srds[m]}:{srds[m]+3}], s{S_T0 + (rr*2+e) % 3} offen")
    def process(b):
        m, j = batches[b]
        for rr in range(8):
            e0 = bank(b) + rr * 2; e1 = e0 + 1
            for par in range(2):
                sel = S_SELLO if par == 0 else S_SELHI
                idx = (par * 8 + j) * 8 + rr
                if m == 2:
                    A(f"v_perm_b32 v{V_WV+idx}, v{e1}, v{e0}, s{sel}")
                else:
                    t = 84 + (rr * 2 + par) % 8
                    A(f"v_perm_b32 v{t}, v{e1}, v{e0}, s{sel}")
                    A(f"v_accvgpr_write_b32 a{m*128+idx}, v{t}")
    n = len(batches)
    for b in range(NB): issue(b)
    for b in range(n):
        if b + NB < n:
            issue(b + NB)
            A(f"s_waitcnt vmcnt({16*NB})")
        else:
            A(f"s_waitcnt vmcnt({16*(n-1-b)})")
        process(b)
    groups = [(ups, half) for ups in range(2) for half in range(2)]
    def obank(gi): return 16 + (gi % 2) * 32
    def oissue(gi):
        ups, half = groups[gi]
        for q in range(4):
            rr = 4 * half + q
            for e in range(2):
                row = 64 * ups + 16 * (rr // 4) + 4 * ((rr % 4) // 2) + 2 * (rr % 2) + e
                st = S_T0 + (q * 2 + e) % 3
                A(f"s_mov_b32 s{st}, {row*1024}")
                A(f"buffer_load_dwordx4 {vr(obank(gi) + (q*2+e)*4, 4)}, v121, s[{S_WO}:{S_WO+3}], s{st} offen")
    def oprocess(gi):
        ups, half = groups[gi]
        for T in range(8):
            o = 84 + (T % 2) * 4
            for q in range(4):
                e0 = obank(gi) + (q * 2) * 4 + T // 2
                e1 = obank(gi) + (q * 2 + 1) * 4 + T // 2
                sel = S_SELLO if T % 2 == 0 else S_SELHI
                A(f"v_perm_b32 v{o+q}, v{e1}, v{e0}, s{sel}")
            A(f"ds_write_b128 v{V_WOR}, {vr(o,4)} offset:{((T*2+ups)*2+half)*1024}")
    oissue(0); oissue(1)
    for gi in range(4):
        A(f"s_waitcnt vmcnt({8 if gi < 3 else 0})")
        oprocess(gi)
        if gi + 2 < 4:
            A("s_nop 1")
            oissue(gi + 2)
    A("s_waitcnt lgkmcnt(0)")

def smf(A, acc, a, b):
    A(f"v_smfmac_f32_16x16x64_bf16 {vr(acc,4)}, {vr(a,4)}, {b}, v{V_IDX}")

def kx_prefetch(A, sbase, kvoff_extra, ldflags=""):
    A(f"""
    s_lshl_b32 s{S_T0}, s{S_W}, 11
    s_add_u32 s{S_T1}, s{S_T0}, s{sbase}
    s_mov_b32 m0, s{S_T1}
    s_add_u32 s{S_T0}, s{S_T0}, s{S_KVOFF}
    s_add_u32 s{S_T0}, s{S_T0}, {kvoff_extra}
    buffer_load_dwordx4 v{V_LANE16}, s[{S_WS}:{S_WS+3}], s{S_T0} offen lds {ldflags}
    buffer_load_dwordx4 v{V_LANE16}, s[{S_WS}:{S_WS+3}], s{S_T0} offen offset:1024 lds {ldflags}
    """)
def vx_load(A, ldflags=""):
    A(f"""
    s_lshl_b32 s{S_T0}, s{S_W}, 11
    s_add_u32 s{S_T0}, s{S_T0}, s{S_KVOFF}
    s_add_u32 s{S_T0}, s{S_T0}, 8192
    buffer_load_dwordx4 {vr(V_VX,4)}, v{V_LANE16}, s[{S_WS}:{S_WS+3}], s{S_T0} offen {ldflags}
    buffer_load_dwordx4 {vr(V_VX+4,4)}, v{V_LANE16}, s[{S_WS}:{S_WS+3}], s{S_T0} offen offset:1024 {ldflags}
    """)

NST = 10
def chain_loop(A, st="", nsteps=64, timeout=20000, timing=False, stamps=False, rsleep=0, msleep=0):
    def stamp(i):
        if stamps: A(f"s_memtime s[{82+2*i}:{83+2*i}]")
    Q0, Q1, K0, K1, V0, V1 = [V_ACC + 4 * i for i in range(6)]
    L_step = A.newlabel("CH_step"); L_poll = A.newlabel("CH_poll"); L_red = A.newlabel("CH_red")
    L_done = A.newlabel("CH_done"); L_pok = A.newlabel("CH_pok"); L_rok = A.newlabel("CH_rok")
    A(f"""
    s_mov_b32 s{S_STEP}, 0
    s_mov_b32 s{S_PHASE}, 0
    s_mov_b32 s{S_MEMOFF}, {WS_MEMF}
    s_mov_b32 s{S_PARTOFF}, {WS_PART}
    s_lshl_b32 s{S_T0}, s{S_H}, 14
    s_add_u32 s{S_KVOFF}, s{S_T0}, {WS_KV}
    s_lshl_b32 s{S_T0}, s{S_H}, 11
    s_add_u32 s{S_KMOFF}, s{S_T0}, {WS_KM}
    s_lshl_b32 s{S_T0}, s{S_H}, 12
    s_lshl_b32 s{S_T1}, s{S_W}, 10
    s_add_u32 s{S_T0}, s{S_T0}, s{S_T1}
    s_add_u32 s{S_VMOFF}, s{S_T0}, {WS_VM}
    """)
    A(f"s_mov_b32 s{S_KXB}, {LDS_KX}\ns_mov_b32 s{S_KXN}, {LDS_KX2}")
    kx_prefetch(A, S_KXB, 0)
    A("s_barrier")
    if timing:
        A(f"s_memtime s[{S_TM}:{S_TM+1}]")
    A.label(L_step)
    stamp(0)
    for i in range(24):
        A(f"v_mov_b32 v{V_ACC+i}, 0")
    A(f"s_mov_b32 s{S_CNT2}, 0")
    if msleep:
        L_ns = A.newlabel("CH_ns")
        A(f"s_cmp_eq_u32 s{S_W}, 0\ns_cbranch_scc1 {L_ns}\ns_sleep {msleep}")
        A.label(L_ns)
    A.label(L_poll)
    A(f"""
    buffer_load_dwordx4 {vr(V_A,4)}, v{V_POLL}, s[{S_WS}:{S_WS+3}], s{S_MEMOFF} offen sc1
    buffer_load_dwordx4 {vr(V_A+4,4)}, v{V_POLL}, s[{S_WS}:{S_WS+3}], s{S_MEMOFF} offen offset:1024 sc1
    s_add_u32 s{S_CNT2}, s{S_CNT2}, 1
    s_cmp_gt_u32 s{S_CNT2}, {timeout}
    s_cbranch_scc1 {L_pok}
    s_waitcnt vmcnt(0)
    v_max3_u32 v{V_T}, v{V_A}, v{V_A+1}, v{V_A+2}
    v_max3_u32 v{V_T+1}, v{V_A+3}, v{V_A+4}, v{V_A+5}
    v_max3_u32 v{V_T}, v{V_T}, v{V_A+6}, v{V_A+7}
    v_max_u32 v{V_T}, v{V_T}, v{V_T+1}
    v_cmp_eq_u32 vcc, -1, v{V_T}
    s_nop 1
    s_cbranch_vccnz {L_poll}
    """)
    A.label(L_pok)
    stamp(1)
    A(f"""
    s_waitcnt vmcnt(0)
    ds_write_b128 v{V_MEMW}, {vr(V_A,4)}
    ds_write_b128 v{V_MEMW}, {vr(V_A+4,4)} offset:1024
    """)
    smf(A, Q0, V_A, wreg(0, 0, 0)); smf(A, Q1, V_A, wreg(0, 1, 0))
    A("s_waitcnt lgkmcnt(0)\ns_barrier")
    vx_load(A)
    kx_prefetch(A, S_KXN, 32 * 16384)
    A(f"""
    s_mov_b32 m0, {LDS_DUMMY}
    s_add_u32 s{S_T0}, s{S_MEMOFF}, 8192
    buffer_load_dword v{V_POLL}, s[{S_WS}:{S_WS+3}], s{S_T0} offen lds
    s_add_u32 s{S_T0}, s{S_T0}, 1024
    buffer_load_dword v{V_POLL}, s[{S_WS}:{S_WS+3}], s{S_T0} offen lds
    """)
    stamp(2)
    for jj in range(3):
        A(f"ds_read_b128 {vr(V_A+8+8*jj,4)}, v{V_MEMR+jj}")
        A(f"ds_read_b128 {vr(V_A+12+8*jj,4)}, v{V_MEMR+jj} offset:1024")
    smf(A, Q0, V_A + 4, wreg(0, 0, 1)); smf(A, Q1, V_A + 4, wreg(0, 1, 1))
    for j in range(2):
        smf(A, K0, V_A + 4 * j, wreg(1, 0, j)); smf(A, K1, V_A + 4 * j, wreg(1, 1, j))
    for j in range(2, 8):
        A(f"s_waitcnt lgkmcnt({7-j})")
        smf(A, Q0, V_A + 4 * j, wreg(0, 0, j)); smf(A, Q1, V_A + 4 * j, wreg(0, 1, j))
    for j in range(2, 8):
        smf(A, K0, V_A + 4 * j, wreg(1, 0, j)); smf(A, K1, V_A + 4 * j, wreg(1, 1, j))
    def fold(X0, X1, off, export):
        A(f"""
        v_permlane32_swap_b32 v{X0}, v{X0+1}
        v_permlane32_swap_b32 v{X0+2}, v{X0+3}
        v_permlane32_swap_b32 v{X1}, v{X1+1}
        v_permlane32_swap_b32 v{X1+2}, v{X1+3}
        v_add_f32 v{X0}, v{X0}, v{X0+1}
        v_add_f32 v{X0+2}, v{X0+2}, v{X0+3}
        v_add_f32 v{X1}, v{X1}, v{X1+1}
        v_add_f32 v{X1+2}, v{X1+2}, v{X1+3}
        v_cvt_pk_bf16_f32 v{X0}, v{X0}, v{X1}
        v_cvt_pk_bf16_f32 v{X0+2}, v{X0+2}, v{X1+2}
        ds_write_b32 v{V_QW}, v{X0} offset:{off}
        ds_write_b32 v{V_QW}, v{X0+2} offset:{off+2*QP}
        """)
        if export:
            A(f"""
            buffer_store_dword v{X0}, v{V_KMX}, s[{S_WS}:{S_WS+3}], s{S_KMOFF} offen
            buffer_store_dword v{X0+2}, v{V_KMX}, s[{S_WS}:{S_WS+3}], s{S_KMOFF} offen offset:128
            """)
    stamp(3)
    fold(Q0, Q1, 0, False)
    fold(K0, K1, LDS_K2, True)
    smf(A, V0, V_A, wreg(2, 0, 0)); smf(A, V1, V_A, wreg(2, 1, 0))
    A("s_waitcnt lgkmcnt(0)\ns_barrier")
    stamp(4)
    for kp in range(4):
        A(f"ds_read_b128 {vr(V_QF+4*kp,4)}, v{V_QR} offset:{kp*64}")
    for kp in range(4):
        A(f"ds_read_b128 {vr(V_KF+4*kp,4)}, v{V_QR} offset:{LDS_K2+kp*64}")
    A(f"v_add_u32 v{V_T}, s{S_KXB}, v{V_LANE16}")
    A(f"ds_read_b128 {vr(V_A,4)}, v{V_T}")
    for j in range(1, 8):
        smf(A, V0, V_A + 4 * j, wreg(2, 0, j)); smf(A, V1, V_A + 4 * j, wreg(2, 1, j))
        if j == 7: A("s_waitcnt lgkmcnt(7)")
        A(f"ds_read_b128 {vr(V_A+4*j,4)}, v{V_T} offset:{j*1024}")
    S0, S1, S2 = V_S, V_S + 4, V_S + 8
    for kp in range(4):
        c = "0" if kp == 0 else vr(S0, 4)
        A(f"v_mfma_f32_16x16x32_bf16 {vr(S0,4)}, {vr(V_KF+4*kp,4)}, {vr(V_QF+4*kp,4)}, {c}")
    A("s_nop 3")
    VM = V_ACC
    A(f"""
    v_cvt_pk_bf16_f32 v{VM}, v{V0}, v{V0+1}
    v_cvt_pk_bf16_f32 v{VM+1}, v{V0+2}, v{V0+3}
    v_cvt_pk_bf16_f32 v{VM+2}, v{V1}, v{V1+1}
    v_cvt_pk_bf16_f32 v{VM+3}, v{V1+2}, v{V1+3}
    buffer_store_dwordx4 {vr(VM,4)}, v{V_LANE16}, s[{S_WS}:{S_WS+3}], s{S_VMOFF} offen
    s_cmp_eq_u32 s{S_STEP}, {nsteps-1}
    s_cbranch_scc1 {L_done}
    """)
    for T in range(2):
        Sx = S1 if T == 0 else S2
        for kp in range(4):
            f = T * 4 + kp
            A(f"s_waitcnt lgkmcnt({7-f})")
            c = "0" if kp == 0 else vr(Sx, 4)
            A(f"v_mfma_f32_16x16x32_bf16 {vr(Sx,4)}, {vr(V_A+4*f,4)}, {vr(V_QF+4*kp,4)}, {c}")
    WB = [56, 64, 72, 80, 88, 96]
    order = [(T, ups) for T in range(8) for ups in range(2)]
    def wo_read(i, buf):
        T, ups = order[i]
        A(f"ds_read_b128 {vr(buf,4)}, v{V_WOR} offset:{((T*2+ups)*2)*1024}")
        A(f"ds_read_b128 {vr(buf+4,4)}, v{V_WOR} offset:{((T*2+ups)*2+1)*1024}")
    wo_read(0, WB[0]); wo_read(1, WB[1])
    A("s_nop 7")
    for i in range(2, 6): wo_read(i, WB[i])
    stamp(5)
    M, M2, LS, L2 = V_T, V_T + 1, V_T + 2, V_T + 3
    A(f"""
    v_max3_f32 v{M}, v{S0}, v{S0+1}, v{S0+2}
    v_max3_f32 v{M2}, v{S0+3}, v{S1}, v{S1+1}
    v_max3_f32 v{M}, v{M}, v{S1+2}, v{S1+3}
    v_max3_f32 v{M2}, v{M2}, v{S2}, v{S2+1}
    v_max3_f32 v{M}, v{M}, v{S2+2}, v{S2+3}
    v_max_f32 v{M}, v{M}, v{M2}
    v_mov_b32 v{M2}, v{M}
    s_nop 1
    v_permlane16_swap_b32 v{M}, v{M2}
    v_max_f32 v{M}, v{M}, v{M2}
    v_mov_b32 v{M2}, v{M}
    s_nop 1
    v_permlane32_swap_b32 v{M}, v{M2}
    v_max_f32 v{M}, v{M}, v{M2}
    v_mul_f32 v{M}, s{S_C}, v{M}
    """)
    for i in range(12):
        A(f"v_fma_f32 v{V_S+i}, v{V_S+i}, s{S_C}, -v{M}")
    for i in range(12):
        A(f"v_exp_f32 v{V_S+i}, v{V_S+i}")
    for i in range(32):
        A(f"v_mov_b32 v{V_A+i}, 0")
    PM, PX = 52, None
    A(f"""
    v_add_f32 v{LS}, v{S0}, v{S0+1}
    v_add_f32 v{L2}, v{S0+2}, v{S0+3}
    v_add_f32 v{LS}, v{LS}, v{L2}
    v_add_f32 v{L2}, v{S1}, v{S1+1}
    v_fma_f32 v{LS}, v{LS}, 0.5, v{L2}
    v_add_f32 v{L2}, v{S1+2}, v{S1+3}
    v_add_f32 v{LS}, v{LS}, v{L2}
    v_add_f32 v{L2}, v{S2}, v{S2+1}
    v_add_f32 v{LS}, v{LS}, v{L2}
    v_add_f32 v{L2}, v{S2+2}, v{S2+3}
    v_add_f32 v{LS}, v{LS}, v{L2}
    v_cvt_pk_bf16_f32 v{PM}, v{S0}, v{S0+1}
    v_cvt_pk_bf16_f32 v{PM+1}, v{S0+2}, v{S0+3}
    v_cvt_pk_bf16_f32 v{S0}, v{S1}, v{S1+1}
    v_cvt_pk_bf16_f32 v{S0+1}, v{S1+2}, v{S1+3}
    v_cvt_pk_bf16_f32 v{S0+2}, v{S2}, v{S2+1}
    v_cvt_pk_bf16_f32 v{S0+3}, v{S2+2}, v{S2+3}
    v_mov_b32 v{L2}, v{LS}
    s_waitcnt vmcnt(7)
    v_mfma_f32_16x16x32_bf16 {vr(S1,4)}, {vr(V_VX,4)}, {vr(S0,4)}, 0
    v_mfma_f32_16x16x32_bf16 {vr(S2,4)}, {vr(V_VX+4,4)}, {vr(S0,4)}, 0
    v_permlane16_swap_b32 v{LS}, v{L2}
    v_add_f32 v{LS}, v{LS}, v{L2}
    v_mov_b32 v{L2}, v{LS}
    s_nop 3
    v_mfma_f32_16x16x16_bf16 {vr(S1,4)}, {vr(VM,2)}, {vr(PM,2)}, {vr(S1,4)}
    v_mfma_f32_16x16x16_bf16 {vr(S2,4)}, {vr(VM+2,2)}, {vr(PM,2)}, {vr(S2,4)}
    v_permlane32_swap_b32 v{LS}, v{L2}
    v_add_f32 v{LS}, v{LS}, v{L2}
    v_rcp_f32 v{LS}, v{LS}
    s_nop 7
    v_cndmask_b32 v{S0}, v{S1+1}, v{S1}, s[{S_LO}:{S_LO+1}]
    v_cndmask_b32 v{S0+1}, v{S2+1}, v{S2}, s[{S_LO}:{S_LO+1}]
    v_cndmask_b32 v{S0+2}, v{S1+3}, v{S1+2}, s[{S_LO}:{S_LO+1}]
    v_cndmask_b32 v{S0+3}, v{S2+3}, v{S2+2}, s[{S_LO}:{S_LO+1}]
    v_mul_f32 v{S0}, v{S0}, v{LS}
    v_mul_f32 v{S0+1}, v{S0+1}, v{LS}
    v_mul_f32 v{S0+2}, v{S0+2}, v{LS}
    v_mul_f32 v{S0+3}, v{S0+3}, v{LS}
    v_cvt_pk_bf16_f32 v{S0}, v{S0}, v{S0+1}
    v_cvt_pk_bf16_f32 v{S0+1}, v{S0+2}, v{S0+3}
    ds_write_b64 v{V_OW}, {vr(S0,2)}
    v_add_u32 v{V_T}, {LDS_O}, v{V_LANE16}
    s_waitcnt lgkmcnt(0)
    s_barrier
    ds_read_b128 {vr(S1,4)}, v{V_T}
    ds_read_b128 {vr(S2,4)}, v{V_T} offset:1024
    """)
    stamp(6)
    A(f"s_add_u32 s{S_KVOFF}, s{S_KVOFF}, {32*16384}")
    A(f"s_mov_b32 s{S_T0}, s{S_KXB}\ns_mov_b32 s{S_KXB}, s{S_KXN}\ns_mov_b32 s{S_KXN}, s{S_T0}")
    A("s_waitcnt lgkmcnt(0)")
    OF = [S1, S2]
    nb = len(WB)
    for i in range(16):
        T, ups = order[i]
        buf = WB[i % nb]
        if i >= nb:
            later = min(15, i + nb - 1) - i
            A(f"s_waitcnt lgkmcnt({min(15, 2*later)})")
        smf(A, V_A + 4 * T, OF[ups], vr(buf, 8))
        if i + nb < 16:
            wo_read(i + nb, buf)
    FO = 72; PK = 104
    L_next = A.newlabel("CH_next")
    A("s_nop 3")
    for T in range(8):
        a = V_A + 4 * T
        if T == 7: A("s_nop 3")
        A(f"v_permlane32_swap_b32 v{a}, v{a+1}")
        A(f"v_permlane32_swap_b32 v{a+2}, v{a+3}")
        A(f"v_add_f32 v{FO+T}, v{a}, v{a+1}")
        A(f"v_add_f32 v{FO+8+T}, v{a+2}, v{a+3}")
        if T % 2 == 1:
            for rs in range(2):
                A(f"v_cvt_pk_bf16_f32 v{PK+rs*4+T//2}, v{FO+rs*8+T-1}, v{FO+rs*8+T}")
            if T == 1:
                for rs in range(2):
                    A(f"v_bfi_b32 v{PK+rs*4}, 1, s{S_PHASE}, v{PK+rs*4}")
    A(f"""
    s_add_u32 s{S_T0}, s{S_PARTOFF}, 65536
    buffer_store_dwordx4 {vr(PK,4)}, v{V_PST}, s[{S_WS}:{S_WS+3}], s{S_PARTOFF} offen {st}
    buffer_store_dwordx4 {vr(PK+4,4)}, v{V_PST}, s[{S_WS}:{S_WS+3}], s{S_T0} offen {st}
    s_add_u32 s{S_MEMOFF}, s{S_MEMOFF}, 8192
    """)
    stamp(7)
    A(f"""
    s_cmp_lg_u32 s{S_W}, 0
    s_cbranch_scc1 {L_next}
    """)
    R = 72; SEL = 112; D = 48
    A(f"""
    s_mov_b32 s{S_EXEC}, 0x00030003
    s_mov_b32 s{S_EXEC+1}, 0x00030003
    s_lshl_b32 s{S_T0}, s{S_H}, 13
    s_add_u32 s{S_T0}, s{S_T0}, s{S_PARTOFF}
    s_add_u32 s{S_T1}, s{S_T0}, 4096
    s_mov_b32 s{S_CNT}, 0
    """)
    for r in range(4):
        A(f"v_cndmask_b32 v{SEL+r}, 0, v{V_SELV}, s[{S_EXEC}:{S_EXEC+1}]")
        if r < 3: A(f"s_lshl_b64 s[{S_EXEC}:{S_EXEC+1}], s[{S_EXEC}:{S_EXEC+1}], 2")
    if rsleep: A(f"s_sleep {rsleep}")
    A.label(L_red)
    for jj in range(8):
        A(f"buffer_load_dwordx4 {vr(R+4*jj,4)}, v{V_LANE16}, s[{S_WS}:{S_WS+3}], s{S_T0 + jj//4} offen offset:{(jj%4)*1024} sc1")
    A(f"""
    s_add_u32 s{S_CNT}, s{S_CNT}, 1
    """)
    for jj in range(8):
        A(f"s_waitcnt vmcnt({7-jj})")
        c = "0" if jj == 0 else vr(D, 4)
        A(f"v_mfma_f32_16x16x32_bf16 {vr(D,4)}, {vr(SEL,4)}, {vr(R+4*jj,4)}, {c}")
        if jj % 2 == 1:
            A(f"v_bitop3_b32 v{V_T + jj//2}, v{R+4*jj-4}, v{R+4*jj}, s{S_PHASE} bitop3:0x7e")
    A(f"""
    v_or3_b32 v{V_T}, v{V_T}, v{V_T+1}, v{V_T+2}
    v_or_b32 v{V_T}, v{V_T}, v{V_T+3}
    v_and_b32 v{V_T}, 1, v{V_T}
    v_cmp_ne_u32 vcc, 0, v{V_T}
    s_cmp_gt_u32 s{S_CNT}, {timeout}
    s_cbranch_scc1 {L_rok}
    s_cbranch_vccnz {L_red}
    """)
    A.label(L_rok)
    stamp(8)
    A(f"""
    s_nop 2
    v_cvt_pk_bf16_f32 v{D}, v{D}, v{D+1}
    v_cvt_pk_bf16_f32 v{D+1}, v{D+2}, v{D+3}
    v_min_u32 v{D}, s{S_SENT}, v{D}
    v_min_u32 v{D+1}, s{S_SENT}, v{D+1}
    s_mov_b64 exec, 0xffffffff
    buffer_store_dwordx2 {vr(D,2)}, v{V_MST}, s[{S_WS}:{S_WS+3}], s{S_MEMOFF} offen {st}
    s_mov_b64 exec, -1
    """)
    A.label(L_next)
    if stamps:
        stamp(9)
        A("s_waitcnt lgkmcnt(0)")
        for i in range(1, NST):
            A(f"s_sub_u32 s{S_T0}, s{82+2*i}, s{82+2*(i-1)}")
            A(f"v_writelane_b32 v0, s{S_T0}, {i}")
        A(f"v_writelane_b32 v0, s{S_CNT}, 10")
        A(f"v_writelane_b32 v0, s{S_CNT2}, 11")
    A(f"""
    s_xor_b32 s{S_PARTOFF}, s{S_PARTOFF}, {0x40000}
    s_add_u32 s{S_KMOFF}, s{S_KMOFF}, {32*2048}
    s_add_u32 s{S_VMOFF}, s{S_VMOFF}, {32*4096}
    s_add_u32 s{S_STEP}, s{S_STEP}, 1
    s_bfe_i32 s{S_PHASE}, s{S_STEP}, 0x10001
    s_branch {L_step}
    """)
    A.label(L_done)
    if timing:
        A(f"""
        s_memtime s[{S_TM+2}:{S_TM+3}]
        s_waitcnt lgkmcnt(0)
        s_sub_u32 s{S_TM+2}, s{S_TM+2}, s{S_TM}
        """)

def test_kernel(st="", stamps=False, **kw):
    A = Asm()
    A.raw(f"; @launch grid=(256,1,1) block=(256,1,1) lds={LDS_END}")
    A.raw('.amdgcn_target "amdgcn-amd-amdhsa--gfx950"\n.text')
    A.raw(kernel_head("chain_kernel"))
    A(f"""
    s_and_b32 s3, s2, 7
    s_cmp_lg_u32 s3, 0
    s_cbranch_scc1 L_exit
    s_cmp_ge_u32 s2, 256
    s_cbranch_scc1 L_exit
    s_lshr_b32 s{S_H}, s2, 3
    s_load_dwordx4 s[72:75], s[0:1], 16
    s_load_dwordx4 s[76:79], s[0:1], 32
    s_load_dwordx2 s[80:81], s[0:1], 112
    s_load_dwordx2 s[{S_DBG}:{S_DBG+1}], s[0:1], 104
    s_memtime s[{S_TM+4}:{S_TM+5}]
    s_waitcnt lgkmcnt(0)
    """)
    chain_setup(A)
    chain_load_weights(A)
    chain_loop(A, st=st, timing=True, stamps=stamps, **kw)
    A(f"""
    s_sub_u32 s{S_TM+4}, s{S_TM}, s{S_TM+4}
    s_getreg_b32 s3, hwreg(HW_REG_XCC_ID)
    v_mov_b32 v20, s{S_TM+2}
    v_mov_b32 v21, s{S_TM+4}
    s_cmp_lg_u32 s{S_H}, 0
    s_cbranch_scc1 L_exit
    v_mov_b32 v22, 0
    s_mov_b64 exec, 1
    global_store_dwordx2 v22, v[20:21], s[{S_DBG}:{S_DBG+1}]
    s_mov_b64 exec, -2
    s_cmp_lg_u32 s{S_W}, 0
    s_cbranch_scc1 L_exit
    v_lshrrev_b32 v22, 2, v{V_LANE16}
    global_store_dword v22, v0, s[{S_DBG}:{S_DBG+1}] offset:4
    """)
    A.label("L_exit")
    A("s_waitcnt vmcnt(0)\ns_endpgm")
    A.raw(kernel_desc("chain_kernel", 512, 102, 256))
    return A.text()

if __name__ == "__main__":
    import sys
    open("chain_f.s", "w").write(test_kernel(""))
    open("chain_s.s", "w").write(test_kernel("sc1"))
    open("chain_ft.s", "w").write(test_kernel("", True))
    open("chain_f2.s", "w").write(test_kernel("", msleep=4))
    open("chain_f3.s", "w").write(test_kernel("", msleep=6, rsleep=2))
```

```python
from chain import *
import chain as C1
from chain2 import smf_s, mf_s

MEMF = 16
QA, KA, VA = 48, 56, 64
QF = 72
KX = 88
VX = 120
S_C2 = 32

def slots(A, mains, *fill_lists):
    n = max([len(mains)] + [len(f) for f in fill_lists])
    for i in range(n):
        if i < len(mains): A(mains[i])
        for f in fill_lists:
            if i < len(f) and f[i]: A(f[i])

def chain_loop7(A, st="", nsteps=64, timeout=20000, timing=False, stamps=False, pw=40, rw=40, rw2=30, pw0=0, kvld="", kv_wait=None, exp_st="", prog=None, ow=8, ow2=6, wo2=4, pr=0, trace=None):
    OA = KX + 12
    def stamp(i):
        if stamps and trace:
            if i == trace[0]: A("s_memtime s[98:99]")
            if i == trace[1]: A("s_memtime s[100:101]")
        elif stamps: A(f"s_memtime s[{82+2*i}:{83+2*i}]")
    def warm(n, r=QF):
        for i in range(n): A(f"v_mov_b32 v{r}, 0")
    L_step = A.newlabel("CH_step"); L_poll = A.newlabel("CH_poll"); L_red = A.newlabel("CH_red")
    L_done = A.newlabel("CH_done"); L_pok = A.newlabel("CH_pok"); L_rok = A.newlabel("CH_rok"); L_next = A.newlabel("CH_next")
    WS = f"s[{S_WS}:{S_WS+3}]"
    def mstore(lines):
        if st != "MODE":
            for l in lines: A(l + " " + st)
            return
        La = A.newlabel("MS"); Lb = A.newlabel("MS")
        A(f"s_cmp_lg_u32 s31, 0\ns_cbranch_scc1 {La}")
        for l in lines: A(l)
        A(f"s_branch {Lb}")
        A.label(La)
        for l in lines: A(l + " sc1")
        A.label(Lb)
    A(f"""
    s_mov_b32 s{S_STEP}, 0
    s_mov_b32 s{S_C2}, s{S_C}
    s_mov_b32 s{S_C2+1}, s{S_C}
    s_mov_b32 s{S_PHASE}, 0
    s_mov_b32 s{S_MEMOFF}, {WS_MEMF}
    s_mov_b32 s{S_PARTOFF}, {WS_PART}
    s_lshl_b32 s{S_T0}, s{S_H}, 14
    s_lshl_b32 s{S_T1}, s{S_W}, 11
    s_add_u32 s{S_T0}, s{S_T0}, s{S_T1}
    s_add_u32 s{S_KVOFF}, s{S_T0}, {WS_KV}
    s_lshl_b32 s{S_T0}, s{S_H}, 11
    s_add_u32 s{S_KMOFF}, s{S_T0}, {WS_KM}
    s_lshl_b32 s{S_T0}, s{S_H}, 12
    s_lshl_b32 s{S_T1}, s{S_W}, 10
    s_add_u32 s{S_T0}, s{S_T0}, s{S_T1}
    s_add_u32 s{S_VMOFF}, s{S_T0}, {WS_VM}
    s_lshl_b32 s{S_T0}, s{S_W}, 11
    s_add_u32 s{S_KXB}, s{S_T0}, {LDS_KX}
    s_add_u32 s{S_KXN}, s{S_T0}, {LDS_KX2}
    """)
    if kv_wait: kv_wait(A, 0)
    A(f"""
    s_mov_b32 m0, s{S_KXB}
    s_nop 0
    buffer_load_dwordx4 v{V_LANE16}, {WS}, s{S_KVOFF} offen {kvld} lds
    buffer_load_dwordx4 v{V_LANE16}, {WS}, s{S_KVOFF} offen offset:1024 {kvld} lds
    s_waitcnt vmcnt(0)
    s_barrier
    """)
    if timing: A(f"s_memtime s[{S_TM}:{S_TM+1}]")
    for i in range(12): A(f"v_mov_b64 {vr(QA+2*i,2)}, 0")
    A.label(L_step)
    stamp(0)
    FA, FB = 4, 6
    A(f"s_mov_b32 s{S_CNT2}, 0\ns_mov_b64 s[{FA}:{FA+1}], -1\ns_mov_b64 s[{FB}:{FB+1}], -1")
    A.label(L_poll)
    T = QF
    A(f"""
    s_mov_b64 exec, s[{FA}:{FA+1}]
    buffer_load_dwordx4 {vr(MEMF,4)}, v{V_POLL}, {WS}, s{S_MEMOFF} offen sc1
    s_mov_b64 exec, s[{FB}:{FB+1}]
    buffer_load_dwordx4 {vr(MEMF+4,4)}, v{V_POLL}, {WS}, s{S_MEMOFF} offen offset:1024 sc1
    s_mov_b64 exec, -1
    s_add_u32 s{S_CNT2}, s{S_CNT2}, 1
    """)
    warm(pw)
    A(f"""
    s_waitcnt vmcnt(1)
    v_max3_u32 v{T}, v{MEMF}, v{MEMF+1}, v{MEMF+2}
    v_max_u32 v{T}, v{T}, v{MEMF+3}
    v_cmp_eq_u32 s[{FA}:{FA+1}], -1, v{T}
    s_waitcnt vmcnt(0)
    v_max3_u32 v{T+1}, v{MEMF+4}, v{MEMF+5}, v{MEMF+6}
    v_max_u32 v{T+1}, v{T+1}, v{MEMF+7}
    v_cmp_eq_u32 s[{FB}:{FB+1}], -1, v{T+1}
    s_cmp_gt_u32 s{S_CNT2}, {timeout}
    s_cbranch_scc1 {L_pok}
    s_or_b64 vcc, s[{FA}:{FA+1}], s[{FB}:{FB+1}]
    s_cbranch_scc1 {L_poll}
    """)
    A.label(L_pok)
    stamp(1)
    A(f"""
    ds_write_b128 v{V_MEMW}, {vr(MEMF,4)}
    ds_write_b128 v{V_MEMW}, {vr(MEMF+4,4)} offset:1024
    """)
    Q0, Q1, K0, K1, V0, V1 = QA, QA + 4, KA, KA + 4, VA, VA + 4
    def W(m, js):
        base = [QA, KA, VA][m]
        return [smf_s(base + 4 * p, MEMF + 4 * j, wreg(m, p, j)) for j in js for p in range(2)]
    slots(A, W(0, [0, 1]), [f"s_lshl_b32 s{S_T0}, s{S_W}, 11\ns_sub_u32 s{S_T0}, s{S_KXB}, s{S_T0}\nv_add_u32 v{QF}, s{S_T0}, v{V_LANE16}",
                            f"s_add_u32 s{S_T0}, s{S_KVOFF}, 8192\ns_add_u32 s{S_T1}, s{S_KVOFF}, {32*16384}\ns_mov_b32 m0, s{S_KXN}"])
    A("s_waitcnt lgkmcnt(0)\ns_barrier")
    stamp(2)
    memr = [f"ds_read_b128 {vr(MEMF+8+4*i,4)}, v{V_MEMR+i//2} offset:{(i%2)*1024}" for i in range(6)]
    vm1 = [f"buffer_load_dwordx4 {vr(VX,4)}, v{V_LANE16}, {WS}, s{S_T0} offen {kvld}",
           f"buffer_load_dwordx4 {vr(VX+4,4)}, v{V_LANE16}, {WS}, s{S_T0} offen offset:1024 {kvld}"]
    vm2 = [f"buffer_load_dwordx4 v{V_LANE16}, {WS}, s{S_T1} offen {kvld} lds",
           f"buffer_load_dwordx4 v{V_LANE16}, {WS}, s{S_T1} offen offset:1024 {kvld} lds"]
    slots(A, W(1, [0, 1]) + W(2, [0, 1]), (memr + vm1) if memr else [None, vm1[0], None, vm1[1]])
    kxr = [f"ds_read_b128 {vr(KX+4*f,4)}, v{QF} offset:{f*1024}" for f in range(8)]
    A("s_waitcnt lgkmcnt(0)")
    slots(A, W(0, range(2, 8)), kxr + [vm2[0], None, vm2[1]])
    if prog: prog(A, 0)
    stamp(3)
    def fold_list(X0, X1, off):
        return [f"v_pk_add_f32 {vr(X0,2)}, {vr(X0,2)}, {vr(X0+2,2)}", f"v_pk_add_f32 {vr(X1,2)}, {vr(X1,2)}, {vr(X1+2,2)}",
                f"v_cvt_pk_bf16_f32 v{X0}, v{X0}, v{X1}\nds_write_b32 v{V_QW}, v{X0} offset:{off}",
                f"v_cvt_pk_bf16_f32 v{X0+1}, v{X0+1}, v{X1+1}\nds_write_b32 v{V_QW}, v{X0+1} offset:{off+QP}"]
    ks = W(1, range(2, 8))
    slots(A, ks[:8], [None] + fold_list(Q0, Q1, 0))
    A("s_waitcnt lgkmcnt(0)\ns_barrier")
    qfr = [f"ds_read_b128 {vr(QF+4*kp,4)}, v{V_QR} offset:{kp*64}" for kp in range(4)]
    slots(A, ks[8:], qfr)
    stamp(4)
    vs = W(2, range(2, 8))
    S1, S2, S0 = QA, QA + 4, KA + 4
    KMF = KX
    WA = KX
    order = []
    for tp in range(4):
        order += [(2 * tp, 0), (2 * tp + 1, 0), (2 * tp, 1), (2 * tp + 1, 1)]
    bufs = [MEMF, MEMF + 8, MEMF + 16, MEMF + 24, QF, QF + 8, KA, VA]
    def wo_rd(i):
        Tt, ups = order[i]; buf = bufs[i % 8]
        return [f"ds_read_b128 {vr(buf,4)}, v{V_WOR} offset:{((Tt*2+ups)*2)*1024}",
                f"ds_read_b128 {vr(buf+4,4)}, v{V_WOR} offset:{((Tt*2+ups)*2+1)*1024}"]
    kf = fold_list(K0, K1, LDS_K2)
    slots(A, vs[:7], wo_rd(0), [None] + kf)
    A("s_waitcnt lgkmcnt(0)\ns_barrier")
    kexp = [None, f"buffer_store_dword v{K0}, v{V_KMX}, {WS}, s{S_KMOFF} offen {exp_st}",
            None,
            f"buffer_store_dword v{K0+1}, v{V_KMX}, {WS}, s{S_KMOFF} offen offset:64 {exp_st}"]
    slots(A, vs[7:], wo_rd(1) + wo_rd(2), kexp)
    stamp(5)
    sx = [mf_s(S1, KX + 4 * kp, QF + 4 * kp, "0" if kp == 0 else vr(S1, 4)) for kp in range(4)]
    sx += [mf_s(S2, KX + 16 + 4 * kp, QF + 4 * kp, "0" if kp == 0 else vr(S2, 4)) for kp in range(4)]
    kmr = [f"ds_read_b128 {vr(KMF+4*kp,4)}, v{V_QR} offset:{LDS_K2+kp*64}" for kp in range(4)]
    VM = VA
    M, M2, LS, L2 = VA + 4, VA + 5, VA + 6, VA + 7
    zlo = [f"v_mov_b64 {vr(KX+2*i,2)}, 0" for i in range(8)]
    zhi = [f"v_mov_b64 {vr(KX+16+2*i,2)}, 0" for i in range(8)]
    vmp = [None, None,
           f"v_cvt_pk_bf16_f32 v{VM}, v{V0}, v{V0+1}\nv_cvt_pk_bf16_f32 v{VM+1}, v{V0+2}, v{V0+3}",
           f"v_cvt_pk_bf16_f32 v{VM+2}, v{V1}, v{V1+1}\nv_cvt_pk_bf16_f32 v{VM+3}, v{V1+2}, v{V1+3}",
           None, None,
           f"v_max3_f32 v{M}, v{S1}, v{S1+1}, v{S1+2}",
           f"buffer_store_dwordx4 {vr(VM,4)}, v{V_LANE16}, {WS}, s{S_VMOFF} offen {exp_st}"]
    slots(A, sx, kmr + wo_rd(3), vmp)
    A(f"s_cmp_eq_u32 s{S_STEP}, {nsteps-1}\ns_cbranch_scc1 {L_done}")
    A("s_waitcnt lgkmcnt(2)")
    sm = [mf_s(S0, KMF + 4 * kp, QF + 4 * kp, "0" if kp == 0 else vr(S0, 4)) for kp in range(4)]
    slots(A, sm, [zhi[0] + "\n" + zhi[1], zhi[2] + "\n" + zhi[3],
                  f"v_max3_f32 v{M2}, v{S1+3}, v{S2}, v{S2+1}\nv_max3_f32 v{M}, v{M}, v{S2+2}, v{S2+3}",
                  f"v_max_f32 v{M}, v{M}, v{M2}\n" + zhi[4]])
    r2 = wo_rd(4) + wo_rd(5)
    PM = KA
    CC = f"s[{S_C2}:{S_C2+1}]"
    def pkf(r): return f"v_pk_fma_f32 {vr(r,2)}, {vr(r,2)}, {CC}, {vr(M,2)} op_sel_hi:[1,1,0] neg_lo:[0,0,1] neg_hi:[0,0,1]"
    A(f"""
    {zhi[5]}
    {zhi[6]}
    {zhi[7]}
    {zlo[0]}
    {zlo[1]}
    {zlo[2]}
    v_max3_f32 v{M}, v{M}, v{S0}, v{S0+1}
    v_mov_b32 v{M2}, v{M}
    {zlo[3]}
    {zlo[4]}
    v_permlane16_swap_b32 v{M}, v{M2}
    v_max_f32 v{M}, v{M}, v{M2}
    v_mov_b32 v{M2}, v{M}
    {zlo[5]}
    {zlo[6]}
    v_permlane32_swap_b32 v{M}, v{M2}
    v_max_f32 v{M}, v{M}, v{M2}
    v_mul_f32 v{M}, s{S_C}, v{M}
    {pkf(S0)}
    {pkf(S1)}
    {pkf(S1+2)}
    v_exp_f32 v{S0}, v{S0}
    v_exp_f32 v{S0+1}, v{S0+1}
    {pkf(S2)}
    {pkf(S2+2)}
    v_cvt_pk_bf16_f32 v{PM}, v{S0}, v{S0+1}
    v_cvt_pk_bf16_f32 v{PM+1}, v{S0}, v{S0+1}
    v_exp_f32 v{S1}, v{S1}
    v_exp_f32 v{S1+1}, v{S1+1}
    v_mfma_f32_16x16x16_bf16 {vr(OA,4)}, {vr(VM,2)}, {vr(PM,2)}, 0
    {r2[0]}
    v_exp_f32 v{S1+2}, v{S1+2}
    v_exp_f32 v{S1+3}, v{S1+3}
    v_pk_add_f32 {vr(LS,2)}, {vr(S0,2)}, {vr(S1,2)}
    v_mfma_f32_16x16x16_bf16 {vr(S0,4)}, {vr(VM+2,2)}, {vr(PM,2)}, 0
    {r2[1]}
    v_exp_f32 v{S2}, v{S2}
    v_exp_f32 v{S2+1}, v{S2+1}
    v_exp_f32 v{S2+2}, v{S2+2}
    v_exp_f32 v{S2+3}, v{S2+3}
    v_pk_add_f32 {vr(M,2)}, {vr(S1+2,2)}, {vr(S2,2)}
    v_cvt_pk_bf16_f32 v{S1}, v{S1}, v{S1+1}
    v_cvt_pk_bf16_f32 v{S1+1}, v{S1+2}, v{S1+3}
    v_cvt_pk_bf16_f32 v{S1+2}, v{S2}, v{S2+1}
    v_cvt_pk_bf16_f32 v{S1+3}, v{S2+2}, v{S2+3}
    v_pk_add_f32 {vr(LS,2)}, {vr(LS,2)}, {vr(S2+2,2)}
    s_waitcnt vmcnt(5)
    v_mfma_f32_16x16x32_bf16 {vr(OA,4)}, {vr(VX,4)}, {vr(S1,4)}, {vr(OA,4)}
    {r2[2]}
    v_pk_add_f32 {vr(LS,2)}, {vr(LS,2)}, {vr(M,2)}
    v_mfma_f32_16x16x32_bf16 {vr(S0,4)}, {vr(VX+4,4)}, {vr(S1,4)}, {vr(S0,4)}
    {r2[3]}
    v_add_f32 v{LS}, v{LS}, v{L2}
    v_mov_b32 v{L2}, v{LS}
    v_add_u32 v{S2}, {LDS_O}, v{V_LANE16}
    s_add_u32 s{S_KVOFF}, s{S_KVOFF}, {32*16384}
    v_permlane16_swap_b32 v{LS}, v{L2}
    v_add_f32 v{LS}, v{LS}, v{L2}
    v_mov_b32 v{L2}, v{LS}
    v_cndmask_b32 v{PM}, v{OA+1}, v{OA}, s[{S_LO}:{S_LO+1}]
    v_cndmask_b32 v{PM+2}, v{OA+3}, v{OA+2}, s[{S_LO}:{S_LO+1}]
    v_permlane32_swap_b32 v{LS}, v{L2}
    v_add_f32 v{LS}, v{LS}, v{L2}
    v_rcp_f32 v{LS}, v{LS}
    v_cndmask_b32 v{PM+1}, v{S0+1}, v{S0}, s[{S_LO}:{S_LO+1}]
    v_cndmask_b32 v{PM+3}, v{S0+3}, v{S0+2}, s[{S_LO}:{S_LO+1}]
    v_pk_mul_f32 {vr(PM,2)}, {vr(PM,2)}, {vr(LS,2)} op_sel_hi:[1,0]
    v_pk_mul_f32 {vr(PM+2,2)}, {vr(PM+2,2)}, {vr(LS,2)} op_sel_hi:[1,0]
    v_cvt_pk_bf16_f32 v{S1}, v{PM}, v{PM+1}
    v_cvt_pk_bf16_f32 v{S1+1}, v{PM+2}, v{PM+3}
    ds_write_b64 v{V_OW}, {vr(S1,2)}
    v_mov_b64 {vr(OA,2)}, 0
    v_mov_b64 {vr(OA+2,2)}, 0
    s_mov_b32 s{S_T0}, s{S_KXB}
    s_mov_b32 s{S_KXB}, s{S_KXN}
    s_mov_b32 s{S_KXN}, s{S_T0}
    s_add_u32 s{S_T0}, s{S_PARTOFF}, 32768
    """)
    for x in wo_rd(6) + wo_rd(7): A(x)
    A("s_waitcnt lgkmcnt(4)\ns_barrier")
    stamp(6)
    OF = VX
    A(f"ds_read_b128 {vr(OF,4)}, v{S2}\nds_read_b128 {vr(OF+4,4)}, v{S2} offset:1024")
    warm(ow2, S2 + 1)
    PK = QA
    def fold_pair(tp):
        a = WA + 8 * tp
        L = [f"v_pk_add_f32 {vr(a,2)}, {vr(a,2)}, {vr(a+2,2)}", f"v_pk_add_f32 {vr(a+4,2)}, {vr(a+4,2)}, {vr(a+6,2)}",
             f"v_cvt_pk_bf16_f32 v{PK+tp}, v{a}, v{a+4}", f"v_cvt_pk_bf16_f32 v{PK+4+tp}, v{a+1}, v{a+5}"]
        if tp == 0:
            L += [f"v_bfi_b32 v{PK}, 1, s{S_PHASE}, v{PK}", f"v_bfi_b32 v{PK+4}, 1, s{S_PHASE}, v{PK+4}"]
        return L
    pend = []
    outq = ["o0", "o1"]
    rdl = [(f, hh) for f in range(8, 16) for hh in range(2)]
    for i in range(16):
        Tt, ups = order[i]
        need = [i, "o0" if ups == 0 else "o1"]
        idx = [k for k, v in enumerate(outq) if v in need]
        if idx:
            last = max(idx)
            A(f"s_waitcnt lgkmcnt({len(outq) - 1 - last})")
            outq = outq[last + 1:]
        A(smf_s(WA + 4 * Tt, OF + 4 * ups, vr(bufs[i % 8], 8)))
        nrd = 2 if i < wo2 else 1
        for _ in range(nrd):
            if rdl and rdl[0][0] - 8 <= i:
                f, hh = rdl.pop(0)
                A(wo_rd(f)[hh]); outq.append(f)
        if i % 4 == 1 and i >= 5: pend += fold_pair(i // 4 - 1)
        if pend: A(pend.pop(0))
    assert not rdl
    for x in pend: A(x)
    A("s_nop 5")
    for x in fold_pair(3): A(x)
    mstore([f"buffer_store_dwordx4 {vr(PK,4)}, v{V_PST}, {WS}, s{S_PARTOFF} offen",
            f"buffer_store_dwordx4 {vr(PK+4,4)}, v{V_PST}, {WS}, s{S_T0} offen"])
    A(f"""
    s_add_u32 s{S_MEMOFF}, s{S_MEMOFF}, 8192
    s_and_b32 s{S_MEMOFF}, s{S_MEMOFF}, {0xffff7fff:#x}
    s_xor_b32 s{S_T2}, s{S_MEMOFF}, 0x4000
    """)
    stamp(7)
    A(f"""
    s_add_u32 s{S_KMOFF}, s{S_KMOFF}, {32*2048}
    s_add_u32 s{S_VMOFF}, s{S_VMOFF}, {32*4096}
    s_add_u32 s{S_STEP}, s{S_STEP}, 1
    """)
    A(f"s_cmp_lg_u32 s{S_W}, 0\ns_cbranch_scc1 {L_next}")
    R = 72; SEL = 104; D = 108; TT = 112
    A(f"""
    s_mov_b32 s{S_EXEC}, 0x00030003
    s_mov_b32 s{S_EXEC+1}, 0x00030003
    s_lshl_b32 s{S_T0}, s{S_H}, 13
    s_add_u32 s{S_T0}, s{S_T0}, s{S_PARTOFF}
    s_add_u32 s{S_T1}, s{S_T0}, 4096
    s_mov_b32 s{S_CNT}, 0
    """)
    for r in range(4):
        A(f"v_cndmask_b32 v{SEL+r}, 0, v{V_SELV}, s[{S_EXEC}:{S_EXEC+1}]")
        if r < 3: A(f"s_lshl_b64 s[{S_EXEC}:{S_EXEC+1}], s[{S_EXEC}:{S_EXEC+1}], 2")
    for i in range(4, 12): A(f"v_mov_b64 {vr(QA+2*i,2)}, 0")
    for i in range(4): A(f"v_mov_b64 {vr(QA+2*i,2)}, 0")
    warm(rw, TT)
    A("s_mov_b64 vcc, -1")
    A.label(L_red)
    A("s_mov_b64 exec, vcc")
    for jj in range(8):
        A(f"buffer_load_dwordx4 {vr(R+4*jj,4)}, v{V_LANE16}, {WS}, s{S_T0 + jj//4} offen offset:{(jj%4)*1024} sc1")
    A(f"s_mov_b64 exec, -1\ns_add_u32 s{S_CNT}, s{S_CNT}, 1")
    warm(rw2, TT)
    for jj in range(8):
        A(f"s_waitcnt vmcnt({7-jj})")
        A(mf_s(D, SEL, R + 4 * jj, "0" if jj == 0 else vr(D, 4)))
        if jj % 2 == 1:
            A(f"v_bitop3_b32 v{TT + jj//2}, v{R+4*jj-4}, v{R+4*jj}, s{S_PHASE} bitop3:0x7e")
    A(f"""
    v_or3_b32 v{TT}, v{TT}, v{TT+1}, v{TT+2}
    v_or_b32 v{TT}, v{TT}, v{TT+3}
    v_and_b32 v{TT}, 1, v{TT}
    v_cmp_ne_u32 vcc, 0, v{TT}
    s_cmp_gt_u32 s{S_CNT}, {timeout}
    s_cbranch_scc1 {L_rok}
    s_cbranch_vccnz {L_red}
    """)
    A.label(L_rok)
    stamp(8)
    A(f"""
    s_mov_b64 exec, 0xffffffff
    v_cvt_pk_bf16_f32 v{D}, v{D}, v{D+1}
    v_cvt_pk_bf16_f32 v{D+1}, v{D+2}, v{D+3}
    v_min_u32 v{D}, s{S_SENT}, v{D}
    v_min_u32 v{D+1}, s{S_SENT}, v{D+1}
    v_mov_b32 v{D+2}, -1
    v_mov_b32 v{D+3}, -1
    """)
    mstore([f"buffer_store_dwordx2 {vr(D,2)}, v{V_MST}, {WS}, s{S_MEMOFF} offen",
            f"buffer_store_dwordx2 {vr(D+2,2)}, v{V_MST}, {WS}, s{S_T2} offen"])
    A("s_mov_b64 exec, -1")
    warm(pr)
    L_n2 = A.newlabel("CH_n2")
    A(f"s_branch {L_n2}")
    A.label(L_next)
    A("s_nop 1")
    if kv_wait: kv_wait(A, 1)
    for i in range(4, 12): A(f"v_mov_b64 {vr(QA+2*i,2)}, 0")
    for i in range(4): A(f"v_mov_b64 {vr(QA+2*i,2)}, 0")
    warm(pw0)
    A.label(L_n2)
    if stamps and trace:
        stamp(9)
        A("s_waitcnt lgkmcnt(0)")
        A(f"s_sub_u32 s{S_T0}, s100, s98")
        A(f"s_mov_b32 m0, s{S_STEP}\ns_nop 0\nv_writelane_b32 v0, s{S_T0}, m0")
    elif stamps:
        stamp(9)
        A("s_waitcnt lgkmcnt(0)")
        for i in range(1, NST):
            A(f"s_sub_u32 s{S_T0}, s{82+2*i}, s{82+2*(i-1)}")
            A(f"v_writelane_b32 v0, s{S_T0}, {i}")
        A(f"v_writelane_b32 v0, s{S_CNT}, 10")
        A(f"v_writelane_b32 v0, s{S_CNT2}, 11")
    A(f"""
    s_xor_b32 s{S_PARTOFF}, s{S_PARTOFF}, {0x40000}
    s_bfe_i32 s{S_PHASE}, s{S_STEP}, 0x10001
    s_branch {L_step}
    """)
    A.label(L_done)
    if prog: prog(A, 1)
    if timing:
        A(f"""
        s_memtime s[{S_TM+2}:{S_TM+3}]
        s_waitcnt lgkmcnt(0)
        s_sub_u32 s{S_TM+2}, s{S_TM+2}, s{S_TM}
        """)

def tk(path, **kw):
    C1.chain_loop = chain_loop7
    open(path, "w").write(C1.test_kernel(**kw))

if __name__ == "__main__":
    V = [dict(rw=0, pr=0, pw0=100, pw=30, rw2=30), dict(rw=20, pr=0, pw0=150, pw=30, rw2=30), dict(rw=40, pr=20, pw0=200, pw=30, rw2=30), dict(rw=20, pr=0, pw0=150, pw=0, rw2=0),
         dict(rw=60, pr=20, pw0=200, pw=40, rw2=40), dict(rw=20, pr=0, pw0=50, pw=30, rw2=30), dict(rw=40, pr=0, pw0=150, pw=45, rw2=45), dict(rw=30, pr=10, pw0=180, pw=20, rw2=20)]
    for i, v in enumerate(V):
        tk(f"c6_{i}.s", **v)
    kw = dict(rw=60, pr=20, pw0=200, pw=40, rw2=40)
    for a, b in [(0, 9), (0, 2), (2, 5), (5, 6), (6, 7), (7, 9)]:
        tk(f"c6_tr{a}{b}.s", stamps=True, trace=(a, b), **kw)
```

```python
class Asm:
    def __init__(self):
        self.L = []
        self.nlab = 0
    def __call__(self, s):
        for line in s.strip("\n").split("\n"):
            line = line.split(";")[0].strip()
            if line: self.L.append(line)
    def label(self, name):
        self.L.append(name + ":")
    def newlabel(self, base="L"):
        self.nlab += 1
        return f"{base}_{self.nlab}"
    def comment(self, s):
        self.L.append("    ; " + s)
    def raw(self, s):
        self.L.append(s)
    def text(self):
        return "\n".join(self.L) + "\n"

def vr(b, n=1):
    return f"v{b}" if n == 1 else f"v[{b}:{b+n-1}]"
def ar(b, n=1):
    return f"a{b}" if n == 1 else f"a[{b}:{b+n-1}]"
def sr(b, n=1):
    return f"s{b}" if n == 1 else f"s[{b}:{b+n-1}]"

def srd(A, d, base, nbytes):
    A(f"s_mov_b32 s{d}, s{base}")
    A(f"s_and_b32 s{d+1}, s{base+1}, 0xffff")
    A(f"s_mov_b32 s{d+2}, {nbytes:#x}")
    A(f"s_mov_b32 s{d+3}, 0x00020000")

def kernel_desc(name, vgpr, sgpr, accum, kernarg=120):
    return f"""
.section .rodata,"a"
.p2align 6
.amdhsa_kernel {name}
  .amdhsa_next_free_vgpr {vgpr}
  .amdhsa_next_free_sgpr {sgpr}
  .amdhsa_accum_offset {accum}
  .amdhsa_group_segment_fixed_size 0
  .amdhsa_kernarg_size {kernarg}
  .amdhsa_user_sgpr_count 2
  .amdhsa_user_sgpr_kernarg_segment_ptr 1
  .amdhsa_system_sgpr_workgroup_id_x 1
.end_amdhsa_kernel
.text
"""
def kernel_head(name):
    return f""".globl {name}
.p2align 8
.type {name},@function
{name}:
"""

def ljump(A, label, fwd=True, s=90):
    L = A.newlabel("LJ")
    A(f"s_getpc_b64 s[{s}:{s+1}]")
    A.label(L)
    A(f"s_add_u32 s{s}, s{s}, {label}-{L}")
    A(f"s_addc_u32 s{s+1}, s{s+1}, {0 if fwd else -1}")
    A(f"s_setpc_b64 s[{s}:{s+1}]")
```

```python
from dsl import *
from layout import *

class Q:
    def __init__(self, A, name, maxc):
        self.A, self.name, self.maxc = A, name, maxc
        self.q = []
    def issue(self, tag):
        self.q.append(tag)
        if len(self.q) > self.maxc:
            raise RuntimeError(f"{self.name} overflow {len(self.q)}")
    def wait(self, tag):
        idx = [i for i, t in enumerate(self.q) if t == tag]
        if not idx: return
        last = idx[-1]
        n = len(self.q) - 1 - last
        self.A(f"s_waitcnt {self.name}({n})")
        self.q = self.q[last + 1:]
    def drain(self):
        if self.q:
            self.A(f"s_waitcnt {self.name}(0)")
            self.q = []
    def room(self, n):
        over = len(self.q) + n - self.maxc
        if over > 0:
            keep = len(self.q) - over
            self.A(f"s_waitcnt {self.name}({keep})")
            self.q = self.q[over:]

class GemmCfg:
    def __init__(self, **kw):
        self.np = 4; self.nw = 8; self.wp = 4; self.ww = 1
        self.BK = 64; self.NS = 4; self.PD = 2; self.RW = 4
        self.wkind = "tr"
        self.kpat = "nat"
        self.orient = "WP"
        self.lds_base = 0
        self.early = True
        self.__dict__.update(kw)
        self.BN = self.nw * self.ww * 16
        self.BM = self.np * self.wp * 16
        self.stage_bytes = self.BK * self.BN * 2
        self.dma_per_wave = self.stage_bytes // 4096
        self.kshift = 0 if self.BN >= 128 else 1
        self.nsets = (self.NS * self.stage_bytes + 65535) // 65536 if self.stage_bytes <= 32768 else 1
        assert self.stage_bytes % 4096 == 0

G_VL16 = 1
G_VDMA = 2
G_VRD = 18
G_VT = 34
G_VE = 40
G_VP = 48
G_SP = 8
G_SW = 12
G_SWV = 29
G_ST = 42
G_SPOFF = 48
G_SWOFF = 49
G_SLOOP = 50
G_SM0 = 51

def key8(row):
    return (row % 4) | ((((row // 4) ^ (row // 8)) % 2) << 2)

def gemm_setup_addr(A, c, wpitch):
    T0, T1, T2, T3 = G_VT, G_VT + 1, G_VT + 2, G_VT + 3
    A(f"v_and_b32 v{T0}, 63, v0")
    A(f"v_lshlrev_b32 v{G_VL16}, 4, v{T0}")
    rowbytes = c.BN * 2 if c.wkind == "tr" else c.BK * 2
    lanes_per_row = rowbytes // 16
    rows_per_instr = max(1, 64 // lanes_per_row)
    c.rows_per_instr = rows_per_instr
    if c.wkind == "tr":
        assert c.dma_per_wave <= 8 or True
        c.dma_v = []
        nuniq = min(c.dma_per_wave, 8)
        assert c.dma_per_wave <= 16
        for i in range(c.dma_per_wave):
            r = G_VDMA + i
            c.dma_v.append(r)
            A(f"s_mul_i32 s{G_ST}, s{G_SWV}, {c.dma_per_wave*64}")
            A(f"s_add_u32 s{G_ST}, s{G_ST}, {i*64}")
            A(f"v_add_u32 v{T1}, s{G_ST}, v{T0}")
            if lanes_per_row & (lanes_per_row - 1) == 0:
                sh = lanes_per_row.bit_length() - 1
                A(f"v_lshrrev_b32 v{T2}, {sh}, v{T1}")
                A(f"v_and_b32 v{T3}, {lanes_per_row-1}, v{T1}")
            else:
                magic = (1 << 20) // lanes_per_row + 1
                A(f"v_mul_u32_u24 v{T2}, {magic}, v{T1}")
                A(f"v_lshrrev_b32 v{T2}, 20, v{T2}")
                A(f"v_mul_u32_u24 v{T3}, {lanes_per_row}, v{T2}")
                A(f"v_sub_u32 v{T3}, v{T1}, v{T3}")
            A(f"v_lshrrev_b32 v{G_VT+4}, 2, v{T2}")
            A(f"v_lshrrev_b32 v{G_VT+5}, 3, v{T2}")
            A(f"v_xor_b32 v{G_VT+4}, v{G_VT+4}, v{G_VT+5}")
            A(f"v_and_b32 v{G_VT+4}, 1, v{G_VT+4}")
            A(f"v_and_b32 v{G_VT+5}, 3, v{T2}")
            A(f"v_lshl_or_b32 v{G_VT+4}, v{G_VT+4}, 2, v{G_VT+5}")
            if c.kshift: A(f"v_lshrrev_b32 v{G_VT+4}, {c.kshift}, v{G_VT+4}")
            A(f"v_lshlrev_b32 v{G_VT+4}, 1, v{G_VT+4}")
            A(f"v_xor_b32 v{T3}, v{T3}, v{G_VT+4}")
            A(f"s_mov_b32 s{G_ST}, {wpitch}")
            A(f"v_mul_lo_u32 v{T2}, v{T2}, s{G_ST}")
            A(f"v_lshl_add_u32 v{r}, v{T3}, 4, v{T2}")
        A(f"v_bfe_u32 v{T1}, v{T0}, 2, 2")
        A(f"v_lshrrev_b32 v{T2}, 4, v{T0}")
        for h in range(2):
            if c.kpat == "nat":
                A(f"v_lshl_add_u32 v{T3}, v{T2}, 3, v{T1}")
                if h: A(f"v_add_u32 v{T3}, 4, v{T3}")
            else:
                A(f"v_lshl_add_u32 v{T3}, v{T2}, 2, v{T1}")
                if h: A(f"v_add_u32 v{T3}, 16, v{T3}")
            A(f"v_lshrrev_b32 v{G_VT+4}, 2, v{T3}")
            A(f"v_lshrrev_b32 v{G_VT+5}, 3, v{T3}")
            A(f"v_xor_b32 v{G_VT+4}, v{G_VT+4}, v{G_VT+5}")
            A(f"v_and_b32 v{G_VT+4}, 1, v{G_VT+4}")
            A(f"v_and_b32 v{G_VT+5}, 3, v{T3}")
            A(f"v_lshl_or_b32 v{G_VT+4}, v{G_VT+4}, 2, v{G_VT+5}")
            if c.kshift: A(f"v_lshrrev_b32 v{G_VT+4}, {c.kshift}, v{G_VT+4}")
            A(f"v_mul_u32_u24 v{T3}, {rowbytes}, v{T3}")
            A(f"v_and_b32 v{G_VT+5}, 3, v{T0}")
            A(f"v_lshl_add_u32 v{T3}, v{G_VT+5}, 3, v{T3}")
            for j in range(min(8, c.nw)):
                r = G_VRD + h * 8 + j
                if c.ww == 1:
                    A(f"v_xor_b32 v{G_VT+5}, {j}, v{G_VT+4}")
                    A(f"v_lshl_add_u32 v{r}, v{G_VT+5}, 5, v{T3}")
                    if c.lds_base: A(f"v_add_u32 v{r}, {c.lds_base}, v{r}")
                else:
                    A(f"s_and_b32 s{G_ST}, s{G_SWV}, {c.ww-1}")
                    A(f"s_mul_i32 s{G_ST}, s{G_ST}, {c.nw}")
                    A(f"s_add_u32 s{G_ST}, s{G_ST}, {j}")
                    A(f"s_and_b32 s{G_ST+1}, s{G_ST}, 7")
                    A(f"s_lshr_b32 s{G_ST}, s{G_ST}, 3")
                    A(f"s_lshl_b32 s{G_ST}, s{G_ST}, 8")
                    A(f"s_add_u32 s{G_ST}, s{G_ST}, {c.lds_base}")
                    A(f"v_xor_b32 v{G_VT+5}, s{G_ST+1}, v{G_VT+4}")
                    A(f"v_lshl_add_u32 v{r}, v{G_VT+5}, 5, v{T3}")
                    A(f"v_add_u32 v{r}, s{G_ST}, v{r}")
    else:
        assert c.BK == 64 and c.ww == 1
        A(f"v_lshrrev_b32 v{T1}, 3, v{T0}")
        A(f"v_and_b32 v{T2}, 7, v{T0}")
        c.dma_v = []
        for par in range(2):
            r = G_VDMA + par
            A(f"v_lshrrev_b32 v{T3}, 1, v{T1}")
            if par: A(f"v_add_u32 v{T3}, 4, v{T3}")
            A(f"v_xor_b32 v{T3}, v{T3}, v{T2}")
            A(f"s_mov_b32 s{G_ST}, {wpitch}")
            A(f"v_mul_lo_u32 v{G_VT+4}, v{T1}, s{G_ST}")
            A(f"v_lshl_add_u32 v{r}, v{T3}, 4, v{G_VT+4}")
            A(f"s_mul_i32 s{G_ST}, s{G_SWV}, {c.dma_per_wave*8*wpitch}")
            A(f"v_add_u32 v{r}, s{G_ST}, v{r}")
        A(f"v_and_b32 v{T1}, 15, v{T0}")
        A(f"v_lshrrev_b32 v{T2}, 4, v{T0}")
        for kk in range(2):
            for p in range(2):
                r = G_VRD + kk * 2 + p
                A(f"v_lshrrev_b32 v{T3}, 1, v{T2}")
                A(f"v_add_u32 v{T3}, {4*kk+2*p}, v{T3}")
                A(f"v_lshrrev_b32 v{G_VT+4}, 1, v{T1}")
                A(f"v_xor_b32 v{T3}, v{T3}, v{G_VT+4}")
                A(f"v_lshlrev_b32 v{T3}, 4, v{T3}")
                A(f"v_and_b32 v{G_VT+4}, 1, v{T2}")
                A(f"v_lshl_add_u32 v{T3}, v{G_VT+4}, 3, v{T3}")
                A(f"v_lshl_add_u32 v{r}, v{T1}, 7, v{T3}")
                if c.lds_base: A(f"v_add_u32 v{r}, {c.lds_base}, v{r}")
                for st_ in range(1, c.nsets):
                    A(f"v_add_u32 v{r+4*st_}, {65536*st_}, v{r}")

def acc(c, i, j):
    return (i * c.nw + j) * 4

import math
def gemm_mainloop(A, c, nk32, p_tile_stride, wpitch, first=True, sc="", roll=True, pre_p=None):
    for a0 in (1, 2, 3, 4):
        try:
            _gemm_mainloop(Asm(), c, nk32, p_tile_stride, wpitch, first, None, None, sc, roll, a0, pre_p)
        except AssertionError as e:
            if "not periodic" in str(e): continue
            raise
        return _gemm_mainloop(A, c, nk32, p_tile_stride, wpitch, first, None, None, sc, roll, a0, pre_p)
    raise RuntimeError("no periodic schedule")

def _gemm_mainloop(A, c, nk32, p_tile_stride, wpitch, first, vq, lq, sc, roll, a0, pre_p=None):
    vq = vq or Q(A, "vmcnt", 63); lq = lq or Q(A, "lgkmcnt", 15)
    kps = c.BK // 32
    nst = nk32 // kps
    assert nk32 % kps == 0
    npsets = c.PD + 1
    def preg(t, i): return G_VP + ((t % npsets) * c.np + i) * 4
    WR = G_VP + npsets * c.np * 4
    def wreg(slot): return WR + (slot % c.RW) * 4
    c.vgpr_end = WR + c.RW * 4
    st = dict(pb=0, sb=0, nread=0)
    wadv = c.BK * wpitch if c.wkind == "tr" else c.BK * 2
    def dma(s):
        if s >= nst: return
        buf = c.lds_base + (s % c.NS) * c.stage_bytes
        A(f"s_add_u32 s{G_ST}, s{G_SWOFF}, {(s - st['sb']) * wadv}")
        for i in range(c.dma_per_wave):
            A(f"s_add_u32 m0, s{G_SM0}, {buf + i*1024}")
            if c.wkind == "tr":
                vq.room(1)
                A("s_nop 0")
                A(f"buffer_load_dwordx4 v{c.dma_v[i]}, s[{G_SW}:{G_SW+3}], s{G_ST} offen lds")
            else:
                if i: A(f"s_add_u32 s{G_ST}, s{G_ST}, {8*wpitch}")
                else: A("s_nop 0")
                vq.room(1)
                A(f"buffer_load_dwordx4 v{G_VDMA + (i&1)}, s[{G_SW}:{G_SW+3}], s{G_ST} offen lds")
            vq.issue(("D", s))
    def pload(t):
        if t >= nk32: return
        for i in range(c.np):
            off = i * p_tile_stride + (t - st['pb']) * 1024
            hi = off - off % 4096
            vq.room(1)
            if hi:
                A(f"s_add_u32 s{G_ST+1}, s{G_SPOFF}, {hi}")
                A(f"buffer_load_dwordx4 {vr(preg(t,i),4)}, v{G_VL16}, s[{G_SP}:{G_SP+3}], s{G_ST+1} offen offset:{off % 4096} {sc}")
            else:
                A(f"buffer_load_dwordx4 {vr(preg(t,i),4)}, v{G_VL16}, s[{G_SP}:{G_SP+3}], s{G_SPOFF} offen offset:{off} {sc}")
            vq.issue(("P", t))
    nseq = nk32 * c.nw
    def wread(n):
        t, j = divmod(n, c.nw)
        s, kk = divmod(t, kps)
        buf = (s % c.NS) * c.stage_bytes
        lq.room(2)
        if c.wkind == "tr":
            off = buf + kk * 32 * c.BN * 2 + (j // 8) * 256
            assert off < 65536, off
            for h in range(2):
                A(f"ds_read_b64_tr_b16 {vr(wreg(n)+2*h,2)}, v{G_VRD + h*8 + j%8} offset:{off}")
                lq.issue(("W", n))
        else:
            off = buf % 65536 + j * 2048
            assert off < 65536, off
            for p in range(2):
                A(f"ds_read_b64 {vr(wreg(n)+2*p,2)}, v{G_VRD + kk*2 + p + 4*(buf // 65536)} offset:{off}")
                lq.issue(("W", n))
    A(f"s_mul_i32 s{G_SM0}, s{G_SWV}, {c.dma_per_wave*1024}")
    lead = c.NS - 2 if c.early else c.NS - 1
    assert lead >= 1
    for s in range(lead): dma(s)
    if pre_p:
        pre_p(A)
        vq.q = []
    for t in range(c.PD): pload(t)
    per_stage = kps * c.nw
    def kstep(t):
        pload(t + c.PD)
        for j in range(c.nw):
            n = t * c.nw + j
            lim = min(n + c.RW, nseq)
            if not c.early: lim = min(lim, (n // per_stage + 1) * per_stage)
            while st['nread'] < lim:
                if st['nread'] % per_stage == 0:
                    s = st['nread'] // per_stage
                    vq.wait(("D", s))
                    A("s_barrier")
                    dma(s + lead)
                wread(st['nread']); st['nread'] += 1
            if j == 0: vq.wait(("P", t))
            lq.wait(("W", n))
            for i in range(c.np):
                a = ar(acc(c, i, j), 4)
                cc = "0" if (first and t == 0) else a
                if c.orient == "WP":
                    A(f"v_mfma_f32_16x16x32_bf16 {a}, {vr(wreg(n),4)}, {vr(preg(t,i),4)}, {cc}")
                else:
                    A(f"v_mfma_f32_16x16x32_bf16 {a}, {vr(preg(t,i),4)}, {vr(wreg(n),4)}, {cc}")
    L = c.NS
    while (L * kps) % npsets or (L * per_stage) % c.RW: L += c.NS
    tail = max(lead + 1, (c.PD + kps - 1) // kps + 1)
    nit = (nst - a0 - tail) // L if roll else 0
    if nit < 2:
        for t in range(nk32): kstep(t)
        return vq, lq
    for t in range(a0 * kps): kstep(t)
    def norm(q, t0):
        d = {"D": t0 // kps, "P": t0, "W": t0 * c.nw}
        return [(k, i - d[k]) if k in d else (k, i) for k, i in q]
    t0 = a0 * kps
    lab = A.newlabel("GL")
    A(f"s_mov_b32 s{G_SLOOP}, {nit}")
    sv, sl, sn = norm(vq.q, t0), norm(lq.q, t0), st['nread'] - t0 * c.nw
    A.label(lab)
    for t in range(t0, t0 + L * kps): kstep(t)
    t1 = t0 + L * kps
    assert norm(vq.q, t1) == sv and norm(lq.q, t1) == sl and st['nread'] - t1 * c.nw == sn, ("not periodic", sv, norm(vq.q, t1))
    A(f"s_add_u32 s{G_SPOFF}, s{G_SPOFF}, {L*kps*1024}")
    A(f"s_add_u32 s{G_SWOFF}, s{G_SWOFF}, {L*wadv}")
    A(f"s_sub_u32 s{G_SLOOP}, s{G_SLOOP}, 1")
    A(f"s_cmp_lg_u32 s{G_SLOOP}, 0")
    A(f"s_cbranch_scc1 {lab}")
    t2 = t0 + nit * L * kps
    sh = t2 - t1
    d = {"D": sh // kps, "P": sh, "W": sh * c.nw}
    vq.q = [(k, i + d[k]) if k in d else (k, i) for k, i in vq.q]
    lq.q = [(k, i + d[k]) if k in d else (k, i) for k, i in lq.q]
    st['nread'] += sh * c.nw
    st['pb'] = nit * L * kps; st['sb'] = nit * L
    for t in range(t2, nk32): kstep(t)
    return vq, lq
```

```python
from dsl import *
from layout import *
from gemm import *

KA = dict(x=0, mem0=8, wq=16, wk=24, wv=32, wo=40, seg=48, bx=56, win=64, wsp=72, bsp=80, wout=88, out=96, dbg=104, ws=112)

def load_ptr(A, dst, name):
    A(f"s_load_dwordx2 s[{dst}:{dst+1}], s[0:1], {KA[name]}")

def prep_kernel(A):
    A.raw(kernel_head("prep_kernel"))
    A("s_cmp_ge_u32 s2, 160\ns_cbranch_scc1 L_prep_exit")
    load_ptr(A, 4, "x"); load_ptr(A, 6, "ws"); load_ptr(A, 20, "mem0")
    A("s_waitcnt lgkmcnt(0)")
    srd(A, 8, 4, 2 << 20); srd(A, 12, 6, WS_SIZE); srd(A, 16, 20, 8192)
    A("s_cmp_ge_u32 s2, 128\ns_cbranch_scc1 L_prep_fill")
    A("""
    v_lshrrev_b32 v1, 4, v0
    v_and_b32 v2, 15, v0               ; l16
    s_lshl_b32 s3, s2, 14              ; tile*16*1024
    v_lshlrev_b32 v3, 10, v1
    v_lshl_add_u32 v3, v2, 4, v3       ; token*1024 + l16*16
    buffer_load_dwordx4 v[8:11], v3, s[8:11], s3 offen
    buffer_load_dwordx4 v[12:15], v3, s[8:11], s3 offen offset:256
    buffer_load_dwordx4 v[16:19], v3, s[8:11], s3 offen offset:512
    buffer_load_dwordx4 v[20:23], v3, s[8:11], s3 offen offset:768
    s_mov_b32 s22, 0xffff0000
    s_waitcnt vmcnt(0)
    """)
    for i in range(16):
        A(f"v_lshlrev_b32 v{32+2*i}, 16, v{8+i}")
        A(f"v_and_b32 v{33+2*i}, s22, v{8+i}")
    A("v_add_f32 v4, v32, v33")
    for i in range(2, 32): A(f"v_add_f32 v4, v4, v{32+i}")
    def red16(r):
        for ctl in ("quad_perm:[1,0,3,2]", "quad_perm:[2,3,0,1]", "row_half_mirror", "row_mirror"):
            A("s_nop 1")
            A(f"v_add_f32_dpp v{r}, v{r}, v{r} {ctl} row_mask:0xf bank_mask:0xf")
    red16(4)
    A("v_mul_f32 v4, 0x3b000000, v4")
    for i in range(32): A(f"v_sub_f32 v{32+i}, v{32+i}, v4")
    A("v_mul_f32 v5, v32, v32")
    for i in range(1, 32): A(f"v_fmac_f32 v5, v{32+i}, v{32+i}")
    red16(5)
    A("""
    v_mov_b32 v6, 0x3727c5ac
    v_fmac_f32 v6, 0x3b000000, v5
    v_rsq_f32 v6, v6
    s_nop 0
    """)
    for i in range(16):
        A(f"v_mul_f32 v{32+2*i}, v{32+2*i}, v6")
        A(f"v_mul_f32 v{33+2*i}, v{33+2*i}, v6")
        A(f"v_cvt_pk_bf16_f32 v{8+i}, v{32+2*i}, v{33+2*i}")
    A(f"""
    v_lshrrev_b32 v4, 2, v2
    v_lshlrev_b32 v4, 10, v4
    v_and_b32 v5, 3, v2
    v_lshl_add_u32 v4, v5, 8, v4
    v_lshl_add_u32 v4, v1, 4, v4
    s_add_u32 s3, s3, {WS_XN}
    s_add_u32 s22, s3, 4096
    s_add_u32 s23, s3, 8192
    s_add_u32 s24, s3, 12288
    buffer_store_dwordx4 v[8:11], v4, s[12:15], s3 offen
    buffer_store_dwordx4 v[12:15], v4, s[12:15], s22 offen
    buffer_store_dwordx4 v[16:19], v4, s[12:15], s23 offen
    buffer_store_dwordx4 v[20:23], v4, s[12:15], s24 offen
    v_mov_b32 v24, 0
    v_mov_b32 v25, 0
    v_mov_b32 v26, 0
    v_mov_b32 v27, 0
    v_lshlrev_b32 v5, 4, v0
    s_lshl_b32 s3, s2, 15
    s_add_u32 s3, s3, {WS_YB}
    """)
    for i in range(8):
        A("buffer_store_dwordx4 v[24:27], v5, s[12:15], s3 offen\ns_add_u32 s3, s3, 4096")
    A("s_branch L_prep_exit")
    A.label("L_prep_fill")
    A(f"""
    s_sub_u32 s3, s2, 128
    v_lshlrev_b32 v1, 4, v0
    v_mov_b32 v4, -1
    v_mov_b32 v5, -1
    v_mov_b32 v6, -1
    v_mov_b32 v7, -1
    s_lshl_b32 s22, s3, 14
    s_add_u32 s23, s22, {WS_MEMF + 8192}
    s_add_u32 s22, s22, {WS_PART}
    """)
    for i in range(4):
        A(f"buffer_store_dwordx4 v[4:7], v1, s[12:15], s22 offen")
        A(f"buffer_store_dwordx4 v[4:7], v1, s[12:15], s23 offen")
        A("s_add_u32 s22, s22, 4096\ns_add_u32 s23, s23, 4096")
    A("s_cmp_lg_u32 s3, 0\ns_cbranch_scc1 L_prep_exit")
    A(f"""
    v_mov_b32 v4, 0
    v_mov_b32 v5, 0
    v_mov_b32 v6, 0
    v_mov_b32 v7, 0
    s_mov_b32 s22, {WS_FLAG}
    """)
    for i in range(16):
        A("buffer_store_dwordx4 v[4:7], v1, s[12:15], s22 offen\ns_add_u32 s22, s22, 4096")
    for it in range(4):
        A(f"""
        v_add_u32 v2, {it*256}, v0
        v_and_b32 v3, 1, v2                 ; th
        v_bfe_u32 v8, v2, 1, 2              ; ga
        v_bfe_u32 v9, v2, 5, 2
        v_bfe_u32 v10, v2, 3, 1
        v_lshl_add_u32 v9, v9, 1, v10       ; row
        v_bfe_u32 v10, v2, 4, 1             ; hf
        v_lshrrev_b32 v11, 7, v2            ; u
        v_lshlrev_b32 v12, 10, v9
        v_lshl_add_u32 v12, v11, 7, v12
        v_lshl_add_u32 v12, v8, 5, v12
        v_lshl_add_u32 v12, v3, 4, v12
        v_lshl_add_u32 v12, v10, 3, v12
        buffer_load_dwordx2 v[14:15], v12, s[16:19], 0 offen
        v_lshlrev_b32 v2, 3, v2
        s_mov_b32 s22, {WS_MEMF}
        s_mov_b32 s23, 0xfffffffe
        s_waitcnt vmcnt(0)
        v_min_u32 v14, s23, v14
        v_min_u32 v15, s23, v15
        buffer_store_dwordx2 v[14:15], v2, s[12:15], s22 offen
        """)
    A.label("L_prep_exit")
    A("s_waitcnt vmcnt(0)\ns_endpgm")
    return kernel_desc("prep_kernel", 64, 32, 64)

def wave_id(A):
    A(f"v_lshrrev_b32 v{G_VT}, 6, v0\ns_nop 0\nv_readfirstlane_b32 s{G_SWV}, v{G_VT}\ns_nop 3")

def acc_pack(A, dst, a0, a1, t):
    for r in range(4):
        A(f"v_accvgpr_read_b32 v{t+r}, a{a0+r}")
        A(f"v_accvgpr_read_b32 v{t+4+r}, a{a1+r}")
    A(f"v_cvt_pk_bf16_f32 v{dst}, v{t}, v{t+1}")
    A(f"v_cvt_pk_bf16_f32 v{dst+1}, v{t+2}, v{t+3}")
    A(f"v_cvt_pk_bf16_f32 v{dst+2}, v{t+4}, v{t+5}")
    A(f"v_cvt_pk_bf16_f32 v{dst+3}, v{t+6}, v{t+7}")

C_QK = GemmCfg(np=4, nw=8, wp=4, ww=1, orient="WP")
C_V = GemmCfg(np=4, nw=8, wp=4, ww=1, orient="PW")
S_RB, S_HD = 52, 53

def qkv_tile(A, kind, st=""):
    c = C_V if kind == "V" else C_QK
    c.dma_v = C_QK.dma_v
    A(f"""
    s_lshl_b32 s{G_SPOFF}, s{S_RB}, 2
    s_add_u32 s{G_SPOFF}, s{G_SPOFF}, s{G_SWV}
    s_lshl_b32 s{G_SPOFF}, s{G_SPOFF}, 16
    s_add_u32 s{G_SPOFF}, s{G_SPOFF}, {WS_XN}
    s_lshl_b32 s{G_SWOFF}, s{S_HD}, 8
    """)
    vq, lq = gemm_mainloop(A, c, 16, 16384, 8192)
    A(f"""
    s_lshl_b32 s{G_ST}, s{S_RB}, 2
    s_add_u32 s{G_ST}, s{G_ST}, s{G_SWV}
    s_lshl_b32 s{G_ST}, s{G_ST}, 6              ; seg0*32
    s_add_u32 s{G_ST}, s{G_ST}, s{S_HD}
    """)
    if kind == "Q":
        A(f"s_lshl_b32 s{G_ST}, s{G_ST}, 13\ns_add_u32 s{G_ST}, s{G_ST}, {WS_Q}")
        segstride = 32 * 8192
    else:
        A(f"s_lshl_b32 s{G_ST}, s{G_ST}, 14\ns_add_u32 s{G_ST}, s{G_ST}, {WS_KV + (8192 if kind == 'V' else 0)}")
        segstride = 32 * 16384
    A("s_nop 7")
    E = G_VP
    n = 0
    if kind in "KQ":
        for i in range(4):
            for kp in range(4):
                d = E + (n % 4) * 12; n += 1
                acc_pack(A, d, acc(c, i, 2 * kp), acc(c, i, 2 * kp + 1), d + 4)
                off = (i // 2) * segstride + (i % 2) * 4096 + kp * 1024
                A(f"s_add_u32 s{G_ST+1}, s{G_ST}, {off - off % 4096}")
                A(f"buffer_store_dwordx4 {vr(d,4)}, v{G_VL16}, s[{G_SP}:{G_SP+3}], s{G_ST+1} offen offset:{off % 4096} {st}")
    else:
        for sg in range(2):
            for j in range(8):
                d = E + (n % 4) * 12; n += 1
                acc_pack(A, d, acc(c, 2 * sg, j), acc(c, 2 * sg + 1, j), d + 4)
                off = sg * segstride + (j // 2) * 2048 + (j % 2) * 128
                A(f"s_add_u32 s{G_ST+1}, s{G_ST}, {off - off % 4096}")
                A(f"buffer_store_dwordx4 {vr(d,4)}, v{G_VE}, s[{G_SP}:{G_SP+3}], s{G_ST+1} offen offset:{off % 4096} {st}")

def qkv_epi_addr(A):
    A(f"""
    v_and_b32 v{G_VT}, 1, v0
    v_lshlrev_b32 v{G_VE}, 10, v{G_VT}
    v_bfe_u32 v{G_VT}, v0, 4, 2
    v_lshl_add_u32 v{G_VE}, v{G_VT}, 8, v{G_VE}
    v_bfe_u32 v{G_VT}, v0, 1, 3
    v_lshl_add_u32 v{G_VE}, v{G_VT}, 4, v{G_VE}
    """)

def qkv_kernel(A):
    A.raw(kernel_head("qkv_kernel"))
    A("s_cmp_ge_u32 s2, 768\ns_cbranch_scc1 L_qkv_exit")
    load_ptr(A, 4, "ws")
    A("s_load_dwordx4 s[16:19], s[0:1], 16\ns_load_dwordx2 s[20:21], s[0:1], 32")
    wave_id(A)
    gemm_setup_addr(A, C_QK, 8192)
    qkv_epi_addr(A)
    A(f"""
    s_and_b32 s{S_HD}, s2, 31
    s_bfe_u32 s{S_RB}, s2, 0x30005
    s_lshr_b32 s3, s2, 8
    s_waitcnt lgkmcnt(0)
    """)
    srd(A, G_SP, 4, WS_SIZE)
    A("s_cmp_eq_u32 s3, 1\ns_cbranch_scc1 L_qkv_V\ns_cmp_eq_u32 s3, 2\ns_cbranch_scc1 L_qkv_Q")
    srd(A, G_SW, 18, 4 << 20)
    qkv_tile(A, "K")
    A("s_branch L_qkv_exit")
    A.label("L_qkv_V")
    srd(A, G_SW, 20, 4 << 20)
    qkv_tile(A, "V")
    A("s_branch L_qkv_exit")
    A.label("L_qkv_Q")
    srd(A, G_SW, 16, 4 << 20)
    qkv_tile(A, "Q")
    A.label("L_qkv_exit")
    A("s_waitcnt vmcnt(0)\ns_endpgm")
    return kernel_desc("qkv_kernel", 256, 64, 128)


import math, struct
def f32(x): return struct.unpack("<I", struct.pack("<f", x))[0]
GC0 = -2.0 * 0.7978845608028654 * math.log2(math.e)
GC1 = GC0 * 0.044715
S_GC0, S_GC1 = 54, 55
def gelu_consts(A):
    A(f"s_mov_b32 s{S_GC0}, {f32(GC0):#x}\ns_mov_b32 s{S_GC1}, {f32(GC1):#x}")
def gelu_n(A, regs, t):
    n = len(regs)
    A(f"v_mov_b32 v{t+n}, s{S_GC0}")
    for i, r in enumerate(regs): A(f"v_mul_f32 v{t+i}, v{r}, v{r}")
    for i, r in enumerate(regs): A(f"v_fma_f32 v{t+i}, v{t+i}, s{S_GC1}, v{t+n}")
    for i, r in enumerate(regs): A(f"v_mul_f32 v{t+i}, v{t+i}, v{r}")
    for i, r in enumerate(regs): A(f"v_exp_f32 v{t+i}, v{t+i}")
    for i, r in enumerate(regs): A(f"v_add_f32 v{t+i}, 1.0, v{t+i}")
    for i, r in enumerate(regs): A(f"v_rcp_f32 v{t+i}, v{t+i}")
    A("s_nop 0")
    for i, r in enumerate(regs): A(f"v_mul_f32 v{r}, v{r}, v{t+i}")

C_Z1 = GemmCfg(np=4, nw=8, wp=4, ww=1, orient="WP")
def z1_tile(A, st=""):
    c = C_Z1
    A(f"""
    s_lshl_b32 s{G_SPOFF}, s{S_RB}, 2
    s_add_u32 s{G_SPOFF}, s{G_SPOFF}, s{G_SWV}
    s_lshl_b32 s{G_SPOFF}, s{G_SPOFF}, 16
    s_add_u32 s{G_SPOFF}, s{G_SPOFF}, {WS_XN}
    s_lshl_b32 s{G_SWOFF}, s{S_HD}, 8
    """)
    gemm_mainloop(A, c, 16, 16384, 3584)
    A(f"""
    s_lshl_b32 s{G_ST}, s{S_RB}, 2
    s_add_u32 s{G_ST}, s{G_ST}, s{G_SWV}
    s_mul_i32 s{G_ST}, s{G_ST}, {4*28672}
    s_lshl_b32 s{G_ST+1}, s{S_HD}, 12
    s_add_u32 s{G_ST}, s{G_ST}, s{G_ST+1}
    s_add_u32 s{G_ST}, s{G_ST}, {WS_Z1}
    s_nop 7
    """)
    E = G_VP; n = 0
    for i in range(4):
        for kp in range(4):
            b = E + (n % 2) * 24; n += 1
            for r in range(4):
                A(f"v_accvgpr_read_b32 v{b+r}, a{acc(c,i,2*kp)+r}")
                A(f"v_accvgpr_read_b32 v{b+4+r}, a{acc(c,i,2*kp+1)+r}")
            gelu_n(A, list(range(b, b + 8)), b + 8)
            for q in range(4): A(f"v_cvt_pk_bf16_f32 v{b+20+q}, v{b+2*q}, v{b+2*q+1}")
            A(f"s_add_u32 s{G_ST+1}, s{G_ST}, {i*28672}")
            A(f"buffer_store_dwordx4 {vr(b+20,4)}, v{G_VL16}, s[{G_SP}:{G_SP+3}], s{G_ST+1} offen offset:{kp*1024} {st}")

C_Z2 = GemmCfg(np=4, nw=14, wp=1, ww=4, orient="PW", BK=32, NS=2, early=False, RW=4, PD=2)
Z2_LDS_STAT = 2 * 57344
def z2_tile(A, st=""):
    c = C_Z2
    A(f"""
    s_lshl_b32 s{G_SPOFF}, s{S_RB}, 16
    s_add_u32 s{G_SPOFF}, s{G_SPOFF}, {WS_XN}
    s_mov_b32 s{G_SWOFF}, 1792
    """)
    gemm_mainloop(A, c, 16, 16384, 3584)
    A("s_nop 7")
    SUM = 48; SQ = 64; X = 80; T = 96
    for j in range(14):
        for i in range(4):
            for r in range(4): A(f"v_accvgpr_read_b32 v{X+i*4+r}, a{acc(c,i,j)+r}")
        gelu_n(A, list(range(X, X + 16)), T)
        for q in range(16):
            if j == 0:
                A(f"v_mov_b32 v{SUM+q}, v{X+q}")
                A(f"v_mul_f32 v{SQ+q}, v{X+q}, v{X+q}")
            else:
                A(f"v_add_f32 v{SUM+q}, v{SUM+q}, v{X+q}")
                A(f"v_fmac_f32 v{SQ+q}, v{X+q}, v{X+q}")
            A(f"v_accvgpr_write_b32 a{acc(c,q//4,j)+q%4}, v{X+q}")
    for ctl in ("quad_perm:[1,0,3,2]", "quad_perm:[2,3,0,1]", "row_half_mirror", "row_mirror"):
        for q in range(32):
            A(f"v_add_f32_dpp v{SUM+q}, v{SUM+q}, v{SUM+q} {ctl} row_mask:0xf bank_mask:0xf")
    A(f"v_and_b32 v{T}, 15, v0")
    A(f"v_mov_b32 v{X}, v{SUM}\nv_mov_b32 v{X+1}, v{SQ}")
    for q in range(1, 16):
        A(f"v_cmp_eq_u32 vcc, {q}, v{T}")
        A("s_nop 1")
        A(f"v_cndmask_b32 v{X}, v{X}, v{SUM+q}, vcc")
        A(f"v_cndmask_b32 v{X+1}, v{X+1}, v{SQ+q}, vcc")
    A(f"""
    v_lshlrev_b32 v{T}, 3, v0
    v_add_u32 v{T}, {Z2_LDS_STAT}, v{T}
    ds_write_b64 v{T}, {vr(X,2)}
    v_lshrrev_b32 v{T+1}, 1, v{G_VL16}
    v_add_u32 v{T+1}, {Z2_LDS_STAT}, v{T+1}
    s_waitcnt lgkmcnt(0)
    s_barrier
    ds_read_b64 {vr(X,2)}, v{T+1}
    ds_read_b64 {vr(X+2,2)}, v{T+1} offset:512
    ds_read_b64 {vr(X+4,2)}, v{T+1} offset:1024
    ds_read_b64 {vr(X+6,2)}, v{T+1} offset:1536
    s_mov_b32 s{G_ST}, {f32(1.0/896):#x}
    s_waitcnt lgkmcnt(0)
    v_add_f32 v{X}, v{X}, v{X+2}
    v_add_f32 v{X+1}, v{X+1}, v{X+3}
    v_add_f32 v{X+4}, v{X+4}, v{X+6}
    v_add_f32 v{X+5}, v{X+5}, v{X+7}
    v_add_f32 v{X}, v{X}, v{X+4}
    v_add_f32 v{X+1}, v{X+1}, v{X+5}
    v_mul_f32 v{X}, s{G_ST}, v{X}            ; mean
    v_mul_f32 v{X+1}, s{G_ST}, v{X+1}        ; E[x2]
    v_fma_f32 v{X+1}, -v{X}, v{X}, v{X+1}    ; var
    v_max_f32 v{X+1}, 0, v{X+1}
    v_add_f32 v{X+1}, 0x3727c5ac, v{X+1}
    v_rsq_f32 v{X+1}, v{X+1}
    s_nop 0
    v_mul_f32 v{X}, v{X}, v{X+1}             ; mean*rstd
    s_nop 1
    """)
    for q in range(16):
        A(f"v_mov_b32_dpp v{SUM+q}, v{X} row_newbcast:{q} row_mask:0xf bank_mask:0xf")
        A(f"v_mov_b32_dpp v{SQ+q}, v{X+1} row_newbcast:{q} row_mask:0xf bank_mask:0xf")
    A(f"""
    s_mul_i32 s{G_ST}, s{G_SWV}, {14*65536}
    s_lshl_b32 s{G_ST+1}, s{S_RB}, 11
    s_add_u32 s{G_ST}, s{G_ST}, s{G_ST+1}
    s_add_u32 s{G_ST}, s{G_ST}, {WS_Z2}
    """)
    n = 0
    for j in range(14):
        A(f"s_add_u32 s{G_ST+1}, s{G_ST}, {j*65536}")
        for ip in range(2):
            b = X + (n % 3) * 12; n += 1
            for e in range(8):
                q = ip * 8 + e
                A(f"v_accvgpr_read_b32 v{b+e}, a{acc(c,q//4,j)+q%4}")
            for e in range(8):
                q = ip * 8 + e
                A(f"v_fma_f32 v{b+e}, v{b+e}, v{SQ+q}, -v{SUM+q}")
            for q in range(4): A(f"v_cvt_pk_bf16_f32 v{b+8+q}, v{b+2*q}, v{b+2*q+1}")
            A(f"buffer_store_dwordx4 {vr(b+8,4)}, v{G_VL16}, s[{G_SP}:{G_SP+3}], s{G_ST+1} offen offset:{ip*1024} {st}")

def z_kernel(A):
    A.raw(kernel_head("z_kernel"))
    A("s_cmp_ge_u32 s2, 88\ns_cbranch_scc1 L_z_exit")
    load_ptr(A, 4, "ws"); load_ptr(A, 16, "win")
    wave_id(A); gelu_consts(A)
    A("s_waitcnt lgkmcnt(0)")
    srd(A, G_SP, 4, WS_SIZE); srd(A, G_SW, 16, 512 * 3584)
    A("s_cmp_ge_u32 s2, 32\ns_cbranch_scc1 L_z_1")
    gemm_setup_addr(A, C_Z2, 3584)
    A(f"s_mov_b32 s{S_RB}, s2")
    z2_tile(A)
    A("s_branch L_z_exit")
    A.label("L_z_1")
    gemm_setup_addr(A, C_Z1, 3584)
    A(f"s_sub_u32 s3, s2, 32\ns_and_b32 s{S_RB}, s3, 7\ns_lshr_b32 s{S_HD}, s3, 3")
    z1_tile(A)
    A.label("L_z_exit")
    A("s_waitcnt vmcnt(0)\ns_endpgm")
    return kernel_desc("z_kernel", 480, 64, 256)

C_SP = GemmCfg(np=2, nw=16, wp=4, ww=1, orient="PW", wkind="rm", BK=64, NS=4, RW=4, PD=3)
S_BSP = 56
def sp_tile(A, st="", ld=""):
    c = C_SP
    A(f"""
    s_lshl_b32 s{G_SPOFF}, s{S_HD}, 2
    s_add_u32 s{G_SPOFF}, s{G_SPOFF}, s{G_SWV}
    s_lshl_b32 s{G_SPOFF}, s{G_SPOFF}, 17        ; 2 f tiles * 65536
    s_add_u32 s{G_SPOFF}, s{G_SPOFF}, {WS_Z2}
    s_lshl_b32 s{G_SWOFF}, s{S_RB}, 20           ; 256 rows * 4096
    """)
    gemm_mainloop(A, c, 64, 65536, 4096, sc=ld)
    A(f"""
    s_mul_i32 s{G_ST}, s{S_RB}, {16*28672}
    s_lshl_b32 s{G_ST+1}, s{S_HD}, 2
    s_add_u32 s{G_ST+1}, s{G_ST+1}, s{G_SWV}
    s_lshl_b32 s{G_ST+1}, s{G_ST+1}, 10
    s_add_u32 s{G_ST}, s{G_ST}, s{G_ST+1}
    v_and_b32 v{G_VT}, 15, v0
    v_lshlrev_b32 v{G_VT}, 1, v{G_VT}
    s_lshl_b32 s{G_ST+2}, s{S_RB}, 9
    s_mov_b32 s{G_ST+3}, 0xffff0000
    """)
    Z = 48; Bv = 112; X = 128
    for j in range(16):
        A(f"s_add_u32 s{G_ST+1}, s{G_ST}, {WS_Z1 + j*28672}")
        A(f"buffer_load_dwordx4 {vr(Z+4*j,4)}, v{G_VL16}, s[{G_SP}:{G_SP+3}], s{G_ST+1} offen {ld}")
        A(f"buffer_load_ushort v{Bv+j}, v{G_VT}, s[{S_BSP}:{S_BSP+3}], s{G_ST+2} offen offset:{j*32}")
    for j in range(16):
        b = X + (j % 3) * 20
        A(f"s_waitcnt vmcnt({2*(15-j) + j})")
        for r in range(4):
            A(f"v_accvgpr_read_b32 v{b+r}, a{acc(c,0,j)+r}")
            A(f"v_accvgpr_read_b32 v{b+4+r}, a{acc(c,1,j)+r}")
        A(f"v_lshlrev_b32 v{Bv+j}, 16, v{Bv+j}")
        for q in range(4):
            A(f"v_lshlrev_b32 v{b+8+2*q}, 16, v{Z+4*j+q}")
            A(f"v_and_b32 v{b+9+2*q}, s{G_ST+3}, v{Z+4*j+q}")
        for e in range(8): A(f"v_add_f32 v{b+e}, v{b+e}, v{Bv+j}")
        for e in range(8): A(f"v_mul_f32 v{b+e}, v{b+e}, v{b+8+e}")
        for q in range(4): A(f"v_cvt_pk_bf16_f32 v{b+16+q}, v{b+2*q}, v{b+2*q+1}")
        A(f"s_add_u32 s{G_ST+1}, s{G_ST}, {WS_U + j*28672}")
        A(f"buffer_store_dwordx4 {vr(b+16,4)}, v{G_VL16}, s[{G_SP}:{G_SP+3}], s{G_ST+1} offen {st}")

def sp_kernel(A):
    A.raw(kernel_head("sp_kernel"))
    A("s_cmp_ge_u32 s2, 56\ns_cbranch_scc1 L_sp_exit")
    load_ptr(A, 4, "ws"); load_ptr(A, 16, "wsp"); load_ptr(A, 18, "bsp")
    wave_id(A)
    A("s_waitcnt lgkmcnt(0)")
    srd(A, G_SP, 4, WS_SIZE); srd(A, G_SW, 16, 2048 * 4096); srd(A, S_BSP, 18, 4096)
    gemm_setup_addr(A, C_SP, 4096)
    A(f"s_and_b32 s{S_RB}, s2, 7\ns_lshr_b32 s{S_HD}, s2, 3")
    sp_tile(A)
    A.label("L_sp_exit")
    A("s_waitcnt vmcnt(0)\ns_endpgm")
    return kernel_desc("sp_kernel", 384, 64, 256)

def attn_task(A, s_seg, s_head, ld="", st="", mid=None):
    Qf, Kf, KM, Vf, VM, S, O, T = 8, 40, 72, 88, 120, 136, 160, 192
    A(f"""
    s_lshl_b32 s42, s{s_seg}, 5
    s_add_u32 s42, s42, s{s_head}          ; sh
    s_lshl_b32 s43, s42, 13
    s_add_u32 s43, s43, {WS_Q}
    s_add_u32 s44, s43, 4096
    s_lshl_b32 s45, s42, 14
    s_add_u32 s45, s45, {WS_KV}
    s_add_u32 s46, s45, 4096
    s_lshl_b32 s47, s42, 11
    s_add_u32 s47, s47, {WS_KM}
    """)
    for f in range(8): A(f"buffer_load_dwordx4 {vr(Qf+4*f,4)}, v1, s[8:11], s{43 + f//4} offen offset:{(f%4)*1024} {ld}")
    for f in range(8): A(f"buffer_load_dwordx4 {vr(Kf+4*f,4)}, v1, s[8:11], s{45 + f//4} offen offset:{(f%4)*1024} {ld}")
    A(f"""
    s_add_u32 s45, s45, 8192
    s_add_u32 s46, s46, 8192
    s_lshl_b32 s44, s42, 12
    s_add_u32 s44, s44, {WS_VM}
    """)
    for f in range(8): A(f"buffer_load_dwordx4 {vr(Vf+4*f,4)}, v1, s[8:11], s{45 + f//4} offen offset:{(f%4)*1024} {ld}")
    def mm(d, a, b, first):
        A(f"v_mfma_f32_16x16x32_bf16 {vr(d,4)}, {vr(a,4)}, {vr(b,4)}, {'0' if first else vr(d,4)}")
    A("s_waitcnt vmcnt(8)")
    for kp in range(4):
        mm(S + 4, Kf + 4 * kp, Qf + 4 * kp, kp == 0)
        mm(S + 16, Kf + 4 * kp, Qf + (4 + kp) * 4, kp == 0)
        mm(S + 20, Kf + (4 + kp) * 4, Qf + (4 + kp) * 4, kp == 0)
    if mid: mid(A)
    for f in range(4): A(f"buffer_load_dwordx4 {vr(KM+4*f,4)}, v2, s[8:11], s47 offen offset:{f*512} {ld}")
    for f in range(4): A(f"buffer_load_dwordx4 {vr(VM+4*f,4)}, v1, s[8:11], s44 offen offset:{f*1024} {ld}")
    for kp in range(4):
        A(f"s_waitcnt vmcnt({7-kp})")
        for Tq in range(2): mm(S + Tq * 12, KM + 4 * kp, Qf + (Tq * 4 + kp) * 4, kp == 0)
    A(f"v_mov_b32 v{T+8}, 0xf149f2ca\ns_nop 7")
    A(f"""
    s_lshl_b32 s43, s{s_seg}, 18
    s_lshl_b32 s44, s{s_head}, 12
    s_add_u32 s43, s43, s44
    s_add_u32 s43, s43, {WS_OX}
    """)
    for Tq in range(2):
        Sb = S + Tq * 12
        dg = Sb + 4 + 4 * Tq
        for r in range(4): A(f"v_cndmask_b32 v{dg+r}, v{T+8}, v{dg+r}, s[{60+2*r}:{61+2*r}]")
        nv = 8 if Tq == 0 else 12
        M, M2, L, L2 = T, T + 1, T + 2, T + 3
        A(f"v_max3_f32 v{M}, v{Sb}, v{Sb+1}, v{Sb+2}")
        A(f"v_max3_f32 v{M2}, v{Sb+3}, v{Sb+4}, v{Sb+5}")
        A(f"v_max3_f32 v{M}, v{M}, v{Sb+6}, v{Sb+7}")
        if nv == 12:
            A(f"v_max3_f32 v{M2}, v{M2}, v{Sb+8}, v{Sb+9}")
            A(f"v_max3_f32 v{M}, v{M}, v{Sb+10}, v{Sb+11}")
        A(f"""
        v_max_f32 v{M}, v{M}, v{M2}
        v_mov_b32 v{M2}, v{M}
        s_nop 1
        v_permlane16_swap_b32 v{M}, v{M2}
        v_max_f32 v{M}, v{M}, v{M2}
        v_mov_b32 v{M2}, v{M}
        s_nop 1
        v_permlane32_swap_b32 v{M}, v{M2}
        v_max_f32 v{M}, v{M}, v{M2}
        v_mul_f32 v{M}, s68, v{M}
        """)
        for i in range(nv): A(f"v_fma_f32 v{Sb+i}, v{Sb+i}, s68, -v{M}")
        for i in range(nv): A(f"v_exp_f32 v{Sb+i}, v{Sb+i}")
        A(f"""
        s_nop 0
        v_add_f32 v{L}, v{Sb}, v{Sb+1}
        v_add_f32 v{L2}, v{Sb+2}, v{Sb+3}
        v_add_f32 v{L}, v{L}, v{L2}
        v_mul_f32 v{L}, 0.5, v{L}
        """)
        for i in range(4, nv): A(f"v_add_f32 v{L}, v{L}, v{Sb+i}")
        A(f"""
        v_mov_b32 v{L2}, v{L}
        s_nop 1
        v_permlane16_swap_b32 v{L}, v{L2}
        v_add_f32 v{L}, v{L}, v{L2}
        v_mov_b32 v{L2}, v{L}
        s_nop 1
        v_permlane32_swap_b32 v{L}, v{L2}
        v_add_f32 v{L}, v{L}, v{L2}
        v_rcp_f32 v{L}, v{L}
        s_nop 0
        """)
        for i in range(nv): A(f"v_mul_f32 v{Sb+i}, v{Sb+i}, v{L}")
        PM, PX = T + 4, T + 12
        A(f"v_cvt_pk_bf16_f32 v{PM}, v{Sb}, v{Sb+1}\nv_cvt_pk_bf16_f32 v{PM+1}, v{Sb+2}, v{Sb+3}")
        A(f"v_cvt_pk_bf16_f32 v{PX}, v{Sb+4}, v{Sb+5}\nv_cvt_pk_bf16_f32 v{PX+1}, v{Sb+6}, v{Sb+7}")
        if nv == 12:
            A(f"v_cvt_pk_bf16_f32 v{PX+2}, v{Sb+8}, v{Sb+9}\nv_cvt_pk_bf16_f32 v{PX+3}, v{Sb+10}, v{Sb+11}")
        else:
            A(f"v_mov_b32 v{PX+2}, 0\nv_mov_b32 v{PX+3}, 0")
        A("s_waitcnt vmcnt(0)" if Tq == 0 else "s_nop 1")
        for f in range(8):
            A(f"v_mfma_f32_16x16x32_bf16 {vr(O+4*f,4)}, {vr(Vf+4*f,4)}, {vr(PX,4)}, 0")
        for f in range(8):
            A(f"v_mfma_f32_16x16x16_bf16 {vr(O+4*f,4)}, {vr(VM+2*f,2)}, {vr(PM,2)}, {vr(O+4*f,4)}")
        A("s_nop 7")
        for w in range(4):
            d = T + 16 + 4 * w
            for r in range(4): A(f"v_cvt_pk_bf16_f32 v{d+r}, v{O+8*w+r}, v{O+8*w+4+r}")
            A(f"buffer_store_dwordx4 {vr(d,4)}, v1, s[8:11], s43 offen offset:{w*1024} {st}")
        if Tq == 0: A("s_add_u32 s43, s43, 131072")

def attn_setup(A):
    A(f"""
    v_and_b32 v3, 63, v0
    v_lshlrev_b32 v1, 4, v3
    v_bfe_u32 v4, v0, 2, 2
    v_and_b32 v5, 1, v0
    v_lshl_add_u32 v4, v4, 1, v5
    v_bfe_u32 v5, v0, 4, 2            ; g
    v_lshlrev_b32 v2, 6, v4
    v_lshl_add_u32 v2, v5, 4, v2
    v_and_b32 v4, 15, v0
    v_lshlrev_b32 v5, 2, v5
    s_mov_b32 s68, 0x3e0293ee
    """)
    for r in range(4):
        A(f"v_add_u32 v6, {r}, v5")
        A(f"v_cmp_le_u32 s[{60+2*r}:{61+2*r}], v6, v4")

def attn_kernel(A):
    A.raw(kernel_head("attn_kernel"))
    A("s_cmp_ge_u32 s2, 512\ns_cbranch_scc1 L_at_exit")
    load_ptr(A, 4, "ws")
    A(f"v_lshrrev_b32 v7, 6, v0\ns_nop 0\nv_readfirstlane_b32 s{G_SWV}, v7")
    attn_setup(A)
    A(f"""
    s_lshr_b32 s30, s2, 3
    s_and_b32 s31, s2, 7
    s_lshl_b32 s31, s31, 2
    s_add_u32 s31, s31, s{G_SWV}
    s_waitcnt lgkmcnt(0)
    """)
    srd(A, 8, 4, WS_SIZE)
    attn_task(A, 30, 31)
    A.label("L_at_exit")
    A("s_waitcnt vmcnt(0)\ns_endpgm")
    return kernel_desc("attn_kernel", 224, 80, 224)

C_F1 = GemmCfg(np=1, nw=4, wp=4, ww=1, orient="WP", BK=128, NS=4, RW=4, PD=7, kpat="nat")
C_F2 = GemmCfg(np=1, nw=4, wp=4, ww=1, orient="WP", BK=128, NS=4, RW=4, PD=7, kpat="dd")
def final_tile(A, ld="", wait_u=None, wait_ox=None):
    A(f"""
    s_lshl_b32 s60, s{S_RB}, 2
    s_add_u32 s60, s60, s{G_SWV}
    """)
    srd(A, G_SW, 18, 896 * 1024)
    gemm_setup_addr(A, C_F2, 1024)
    if wait_u: wait_u(A)
    A(f"""
    s_mul_i32 s{G_SPOFF}, s60, 28672
    s_add_u32 s{G_SPOFF}, s{G_SPOFF}, {WS_U}
    s_lshl_b32 s{G_SWOFF}, s{S_HD}, 7
    """)
    gemm_mainloop(A, C_F2, 28, 0, 1024, first=True, sc=ld)
    srd(A, G_SW, 16, 4 << 20)
    gemm_setup_addr(A, C_F1, 1024)
    if wait_ox: wait_ox(A)
    A("s_barrier")
    A(f"""
    s_lshl_b32 s{G_SPOFF}, s60, 17
    s_add_u32 s{G_SPOFF}, s{G_SPOFF}, {WS_OX}
    s_lshl_b32 s{G_SWOFF}, s{S_HD}, 7
    """)
    gemm_mainloop(A, C_F1, 128, 0, 1024, first=False, sc=ld)
    srd(A, 64, 20, 2 << 20); srd(A, 68, 22, 2 << 20)
    A(f"""
    v_and_b32 v{G_VT}, 15, v0
    v_bfe_u32 v{G_VT+1}, v0, 4, 2
    v_lshlrev_b32 v{G_VT}, 10, v{G_VT}
    v_lshl_add_u32 v{G_VT}, v{G_VT+1}, 3, v{G_VT}
    s_lshl_b32 s61, s60, 14
    s_lshl_b32 s62, s{S_HD}, 7
    s_add_u32 s61, s61, s62
    s_mov_b32 s62, 0xffff0000
    """)
    X = 48
    for j in range(4): A(f"buffer_load_dwordx2 {vr(X+2*j,2)}, v{G_VT}, s[64:67], s61 offen offset:{j*32}")
    A("s_nop 7")
    for j in range(4):
        b = 60 + j * 10
        for r in range(4): A(f"v_accvgpr_read_b32 v{b+r}, a{4*j+r}")
        A("s_waitcnt vmcnt(3)")
        A(f"""
        v_lshlrev_b32 v{b+4}, 16, v{X+2*j}
        v_and_b32 v{b+5}, s62, v{X+2*j}
        v_lshlrev_b32 v{b+6}, 16, v{X+2*j+1}
        v_and_b32 v{b+7}, s62, v{X+2*j+1}
        v_add_f32 v{b}, v{b}, v{b+4}
        v_add_f32 v{b+1}, v{b+1}, v{b+5}
        v_add_f32 v{b+2}, v{b+2}, v{b+6}
        v_add_f32 v{b+3}, v{b+3}, v{b+7}
        v_cvt_pk_bf16_f32 v{b+8}, v{b}, v{b+1}
        v_cvt_pk_bf16_f32 v{b+9}, v{b+2}, v{b+3}
        buffer_store_dwordx2 {vr(b+8,2)}, v{G_VT}, s[68:71], s61 offen offset:{j*32}
        """)

WS_ACC = WS_YB
C_S1 = GemmCfg(np=1, nw=4, wp=4, ww=1, orient="PW", BK=128, NS=4, RW=4, PD=7, kpat="nat")
C_S2 = GemmCfg(np=1, nw=4, wp=4, ww=1, orient="PW", BK=128, NS=4, RW=4, PD=7, kpat="dd")
def final_split(A, kind, ld="", wait=None):
    A(f"""
    s_lshl_b32 s60, s{S_RB}, 2
    s_add_u32 s60, s60, s{G_SWV}
    """)
    if kind == "U":
        srd(A, G_SW, 18, 896 * 1024)
        gemm_setup_addr(A, C_S2, 1024)
        if wait: wait(A)
        A(f"""
        s_mul_i32 s{G_SPOFF}, s60, 28672
        s_add_u32 s{G_SPOFF}, s{G_SPOFF}, {WS_U}
        s_lshl_b32 s{G_SWOFF}, s{S_HD}, 7
        """)
        gemm_mainloop(A, C_S2, 28, 0, 1024, first=True, sc=ld)
    else:
        srd(A, G_SW, 16, 4 << 20)
        gemm_setup_addr(A, C_S1, 1024)
        A(f"""
        s_lshl_b32 s{G_SPOFF}, s60, 17
        s_lshl_b32 s61, s63, 15
        s_add_u32 s{G_SPOFF}, s{G_SPOFF}, s61
        s_add_u32 s{G_SPOFF}, s{G_SPOFF}, {WS_OX}
        s_lshl_b32 s{G_SWOFF}, s{S_HD}, 7
        s_lshl_b32 s61, s63, 20
        s_add_u32 s{G_SWOFF}, s{G_SWOFF}, s61
        """)
        gemm_mainloop(A, C_S1, 32, 0, 1024, first=True, sc=ld, pre_p=wait)
    A(f"""
    v_and_b32 v{G_VT}, 15, v0
    v_bfe_u32 v{G_VT+1}, v0, 4, 2
    v_lshlrev_b32 v{G_VT}, 2, v{G_VT}
    v_lshl_add_u32 v{G_VT}, v{G_VT+1}, 13, v{G_VT}
    s_lshl_b32 s61, s60, 15
    s_lshl_b32 s62, s{S_HD}, 8
    s_add_u32 s61, s61, s62
    s_add_u32 s61, s61, {WS_ACC}
    s_add_u32 s62, s61, 4096
    s_nop 3
    """)
    for r in range(4):
        for j in range(4):
            A(f"buffer_atomic_add_f32 a{4*j+r}, v{G_VT}, s[{G_SP}:{G_SP+3}], s{61 + r//2} offen offset:{(r%2)*2048 + j*64}")

def final_finish(A):
    srd(A, 64, 20, 2 << 20); srd(A, 68, 22, 2 << 20)
    X = 48; Y = 64
    A(f"""
    v_lshrrev_b32 v{G_VT}, 2, v0
    v_and_b32 v{G_VT+1}, 3, v0
    v_lshlrev_b32 v{G_VT}, 10, v{G_VT}
    v_lshl_add_u32 v{G_VT+1}, v{G_VT+1}, 5, v{G_VT}
    v_lshlrev_b32 v{G_VT}, 1, v{G_VT+1}
    s_lshl_b32 s62, s{S_RB}, 16
    s_lshl_b32 s61, s{S_HD}, 7
    s_add_u32 s62, s62, s61
    s_lshl_b32 s61, s62, 1
    s_add_u32 s61, s61, {WS_ACC}
    s_mov_b32 s63, 0xffff0000
    """)
    for j in range(4):
        A(f"buffer_load_dwordx4 {vr(Y+4*j,4)}, v{G_VT}, s[{G_SP}:{G_SP+3}], s61 offen offset:{j*16} sc1")
    for j in range(2):
        A(f"buffer_load_dwordx4 {vr(X+4*j,4)}, v{G_VT+1}, s[64:67], s62 offen offset:{j*16}")
    A("s_waitcnt vmcnt(0)")
    for q in range(8):
        A(f"""
        v_lshlrev_b32 v96, 16, v{X+q}
        v_and_b32 v97, s63, v{X+q}
        v_add_f32 v96, v96, v{Y+2*q}
        v_add_f32 v97, v97, v{Y+2*q+1}
        v_cvt_pk_bf16_f32 v{X+q}, v96, v97
        """)
    for j in range(2):
        A(f"buffer_store_dwordx4 {vr(X+4*j,4)}, v{G_VT+1}, s[68:71], s62 offen offset:{j*16}")

def final_kernel(A):
    A.raw(kernel_head("final_kernel"))
    A("s_cmp_ge_u32 s2, 256\ns_cbranch_scc1 L_f_exit")
    load_ptr(A, 4, "ws"); load_ptr(A, 16, "wo"); load_ptr(A, 18, "wout"); load_ptr(A, 20, "x"); load_ptr(A, 22, "out")
    wave_id(A)
    A(f"s_lshr_b32 s{S_RB}, s2, 3\ns_and_b32 s{S_HD}, s2, 7\ns_waitcnt lgkmcnt(0)")
    srd(A, G_SP, 4, WS_SIZE)
    final_tile(A)
    A.label("L_f_exit")
    A("s_waitcnt vmcnt(0)\ns_endpgm")
    return kernel_desc("final_kernel", 128, 80, 112)

def build(launches, kernel_fns, path):
    A = Asm()
    for name, grid, lds in launches:
        A.raw(f"; @launch kernel={name} grid=({grid},1,1) block=(256,1,1) lds={lds}")
    A.raw('.amdgcn_target "amdgcn-amd-amdhsa--gfx950"\n.text')
    descs = []
    for fn in kernel_fns:
        descs.append(fn(A))
    for d in descs: A.raw(d)
    open(path, "w").write(A.text())

if __name__ == "__main__":
    build([("prep_kernel", 160, 0), ("qkv_kernel", 768, 65536)], [prep_kernel, qkv_kernel], "k1.s")
    build([("prep_kernel", 160, 0), ("qkv_kernel", 768, 65536), ("z_kernel", 88, Z2_LDS_STAT + 2048), ("sp_kernel", 56, 131072), ("attn_kernel", 512, 0), ("final_kernel", 256, 65536)],
          [prep_kernel, qkv_kernel, z_kernel, sp_kernel, attn_kernel, final_kernel], "k2.s")
```

```python
from kernels import *
import chain as CH
import chain7 as CH2

F_XCC = 0
F_DEC = 8 * 128
F_TICK = 9 * 128
F_ZD = 10 * 128
F_CH2 = 11 * 128
F_KV = 16 * 128
F_Q = 24 * 128
F_U = 32 * 128
F_PR = 40 * 128
F_OX = 72 * 128
F_FIN = 200 * 128
LDS_MBOX = CH.LDS_END
LDS_MAIN = LDS_MBOX + 64
S_MODE = 31
S_FL = 84
S_TK = 88
S_GO = 89
S_HELD = 92
PSLEEP = 4
PO_START = 1168

def wg_atomic(A, off, val, dst, op="add", val2=None):
    L = A.newlabel("AT")
    A(f"s_cmp_lg_u32 s{G_SWV}, 0\ns_cbranch_scc1 {L}")
    A(f"v_mov_b32 v2, {off}" if isinstance(off, int) else f"v_mov_b32 v2, {off}")
    A(f"v_mov_b32 v4, {val}")
    if op == "cas": A(f"v_mov_b32 v5, {val2}")
    A(f"s_mov_b32 s{dst}, {WS_FLAG}")
    A("s_mov_b64 exec, 1")
    if op == "add":
        A(f"buffer_atomic_add v4, v2, s[{S_FL}:{S_FL+3}], s{dst} offen sc0 sc1")
    elif op == "cas":
        A(f"buffer_atomic_cmpswap v[4:5], v2, s[{S_FL}:{S_FL+3}], s{dst} offen sc0 sc1")
    elif op == "load":
        A(f"buffer_load_dword v4, v2, s[{S_FL}:{S_FL+3}], s{dst} offen sc1")
    A(f"v_mov_b32 v3, {LDS_MBOX}")
    A("s_waitcnt vmcnt(0)")
    A("ds_write_b32 v3, v4")
    A("s_mov_b64 exec, -1")
    A("s_waitcnt lgkmcnt(0)")
    A.label(L)
    A(f"""
    s_barrier
    v_mov_b32 v3, {LDS_MBOX}
    ds_read_b32 v4, v3
    s_waitcnt lgkmcnt(0)
    v_readfirstlane_b32 s{dst}, v4
    s_barrier
    """)

def signal(A, off_sgpr_or_int):
    L = A.newlabel("SG")
    A("s_waitcnt vmcnt(0)\ns_barrier")
    A(f"s_cmp_lg_u32 s{G_SWV}, 0\ns_cbranch_scc1 {L}")
    A(f"v_mov_b32 v2, {off_sgpr_or_int}")
    A(f"v_mov_b32 v4, 1\ns_mov_b32 s{G_ST}, {WS_FLAG}\ns_mov_b64 exec, 1")
    A(f"buffer_atomic_add v4, v2, s[{S_FL}:{S_FL+3}], s{G_ST} offen sc1")
    A("s_mov_b64 exec, -1")
    A.label(L)

def wait_flag(A, off, target, tmp_v, tmp_s, srd_s, sleep=2, timeout=4000000):
    L = A.newlabel("WF"); L2 = A.newlabel("WFd")
    A(f"v_mov_b32 v{tmp_v}, {off}")
    A(f"s_mov_b32 s{tmp_s+1}, 0")
    A.label(L)
    A(f"""
    buffer_load_dword v{tmp_v+1}, v{tmp_v}, s[{srd_s}:{srd_s+3}], 0 offen sc1
    s_add_u32 s{tmp_s+1}, s{tmp_s+1}, 1
    s_waitcnt vmcnt(0)
    v_readfirstlane_b32 s{tmp_s}, v{tmp_v+1}
    s_cmp_ge_u32 s{tmp_s}, {target}
    s_cbranch_scc1 {L2}
    s_cmp_gt_u32 s{tmp_s+1}, {timeout}
    s_cbranch_scc1 {L2}
    s_sleep {sleep}
    s_branch {L}
    """)
    A.label(L2)

def order_ranges():
    R = []
    R.append((64, "KV", 0)); R.append((32, "Z2", 0)); R.append((64, "KV", 1)); R.append((56, "Z1", 0))
    R.append((384, "KV", 2)); R.append((96, "Q", 0)); R.append((56, "SP", 0)); R.append((160, "Q", 96))
    R.append((256, "FU", 0))
    R.append((1536, "PO", 0))
    return R

def dbg_time(A, slot, cond_h0=True, op="store"):
    L = A.newlabel("DT")
    if cond_h0:
        A(f"s_cmp_lg_u32 s{CH.S_H}, 0\ns_cbranch_scc1 {L}")
    A(f"s_cmp_lg_u32 s{G_SWV}, 0\ns_cbranch_scc1 {L}")
    A(f"""
    s_load_dwordx2 s[94:95], s[0:1], 104
    s_memrealtime s[96:97]
    s_waitcnt lgkmcnt(0)
    v_mov_b32 v124, {slot*4}
    v_mov_b32 v125, s96
    s_mov_b64 exec, 1
    """)
    if op == "store": A("global_store_dword v124, v125, s[94:95]")
    else: A("global_atomic_umax v124, v125, s[94:95]")
    A("s_mov_b64 exec, -1\ns_waitcnt vmcnt(0)")
    A.label(L)

def main_kernel(chain_kw={}, force_abort=False, dbg=False):
    def fn(A):
        A.raw(kernel_head("main_kernel"))
        A("s_cmp_lt_u32 s2, 256\ns_cbranch_scc1 L_m_start\ns_endpgm")
        A.label("L_m_start")
        A(f"s_mov_b32 s{S_HELD}, 0")
        load_ptr(A, 80, "ws")
        wave_id(A)
        A(f"s_getreg_b32 s3, hwreg(HW_REG_XCC_ID)\ns_and_b32 s3, s3, 7\ns_mov_b32 s{S_GO}, 0\ns_waitcnt lgkmcnt(0)")
        srd(A, S_FL, 80, WS_SIZE)
        A("s_cmp_lg_u32 s3, 0\ns_cbranch_scc1 L_m_work")
        wg_atomic(A, F_XCC, 1, CH.S_H)
        A(f"s_cmp_ge_u32 s{CH.S_H}, 32\ns_cbranch_scc1 L_m_work")
        A(f"s_mov_b32 s{S_MODE}, 0")
        A.label("L_m_chain")
        if dbg: dbg_time(A, 0)
        A(f"""
        s_load_dwordx4 s[72:75], s[0:1], 16
        s_load_dwordx4 s[76:79], s[0:1], 32
        s_waitcnt lgkmcnt(0)
        """)
        CH.chain_setup(A)
        CH.chain_load_weights(A)
        A(f"s_cmp_lg_u32 s{S_MODE}, 0\ns_cbranch_scc1 L_m_go")
        A(f"""
        v_mov_b32 v16, {WS_FLAG + F_XCC}
        s_mov_b32 s{CH.S_CNT}, 0
        """)
        A.label("L_m_cnt")
        A(f"""
        buffer_load_dword v17, v16, s[{S_FL}:{S_FL+3}], 0 offen sc1
        s_add_u32 s{CH.S_CNT}, s{CH.S_CNT}, 1
        s_waitcnt vmcnt(0)
        v_readfirstlane_b32 s{CH.S_T0}, v17
        s_mov_b32 s{CH.S_T1}, 1
        s_cmp_ge_u32 s{CH.S_T0}, {33 if force_abort else 32}
        s_cbranch_scc1 L_m_dec
        s_mov_b32 s{CH.S_T1}, 2
        s_cmp_gt_u32 s{CH.S_CNT}, 200
        s_cbranch_scc1 L_m_dec
        s_sleep 8
        s_branch L_m_cnt
        """)
        A.label("L_m_dec")
        A(f"""
        v_mov_b32 v16, {WS_FLAG + F_DEC}
        v_mov_b32 v18, s{CH.S_T1}
        v_mov_b32 v19, 0
        s_mov_b64 exec, 1
        buffer_atomic_cmpswap v[18:19], v16, s[{S_FL}:{S_FL+3}], 0 offen sc0 sc1
        s_waitcnt vmcnt(0)
        v_readfirstlane_b32 s{CH.S_T0}, v18
        s_mov_b64 exec, -1
        s_cmp_eq_u32 s{CH.S_T0}, 0
        s_cselect_b32 s{CH.S_T0}, s{CH.S_T1}, s{CH.S_T0}
        s_cmp_eq_u32 s{CH.S_T0}, 1
        s_cbranch_scc1 L_m_go
        s_barrier
        s_branch L_m_work
        """)
        A.label("L_m_go")
        if dbg: dbg_time(A, 1)
        def kv_wait(A, which):
            if which == 0:
                wait_flag(A, WS_FLAG + F_KV, 64, CH2.QF, CH.S_T0, CH.S_WS, sleep=1)
                if dbg: dbg_time(A, 2)
            else:
                L = A.newlabel("KW")
                A(f"""
                s_cmp_lg_u32 s{CH.S_W}, 1
                s_cbranch_scc1 {L}
                s_add_u32 s{CH.S_T2}, s{CH.S_STEP}, 1
                s_and_b32 s{CH.S_T0}, s{CH.S_T2}, 7
                s_cmp_lg_u32 s{CH.S_T0}, 0
                s_cbranch_scc1 {L}
                s_cmp_ge_u32 s{CH.S_T2}, 64
                s_cbranch_scc1 {L}
                s_lshl_b32 s{CH.S_T2}, s{CH.S_T2}, 4
                s_add_u32 s{CH.S_T2}, s{CH.S_T2}, {WS_FLAG + F_KV}
                """)
                wait_flag(A, f"s{CH.S_T2}", 64, CH2.QF, CH.S_T0, CH.S_WS, sleep=1)
                A.label(L)
        def prog(A, last):
            L = A.newlabel("PG")
            if last:
                A("s_waitcnt vmcnt(0)\ns_barrier")
                A(f"s_add_u32 s{CH.S_STEP}, s{CH.S_STEP}, 1")
            A(f"""
            s_cmp_lg_u32 s{CH.S_W}, 1
            s_cbranch_scc1 {L}
            s_cmp_eq_u32 s{CH.S_STEP}, 0
            s_cbranch_scc1 {L}
            s_sub_u32 s{CH.S_T2}, s{CH.S_STEP}, 1
            s_lshr_b32 s{CH.S_T2}, s{CH.S_T2}, 1
            s_lshl_b32 s{CH.S_T2}, s{CH.S_T2}, 7
            s_add_u32 s{CH.S_T2}, s{CH.S_T2}, {WS_FLAG + F_PR}
            v_mov_b32 v{CH2.QF}, 0
            v_mov_b32 v{CH2.QF+1}, 1
            s_mov_b64 exec, 1
            buffer_atomic_add v{CH2.QF+1}, v{CH2.QF}, s[{CH.S_WS}:{CH.S_WS+3}], s{CH.S_T2} offen sc1
            s_mov_b64 exec, -1
            """)
            A.label(L)
        CH2.chain_loop7(A, st="MODE", timeout=2000000, kvld="sc1", kv_wait=kv_wait, exp_st="sc1", prog=prog, **chain_kw)
        if dbg: dbg_time(A, 3)
        if chain_kw.get("trace"):
            A(f"""
            s_cmp_lg_u32 s{CH.S_H}, 0
            s_cbranch_scc1 L_tr_skip
            s_cmp_lg_u32 s{G_SWV}, 0
            s_cbranch_scc1 L_tr_skip
            v_lshrrev_b32 v20, 2, v{CH.V_LANE16}
            s_mov_b32 s94, {WS_FLAG + 0x10000}
            buffer_store_dword v0, v20, s[{CH.S_WS}:{CH.S_WS+3}], s94 offen
            s_waitcnt vmcnt(0)
            """)
            A.label("L_tr_skip")
            A(f"v_lshrrev_b32 v0, 4, v{CH.V_LANE16}\nv_mov_b32 v20, s{G_SWV}\nv_lshl_add_u32 v0, v20, 6, v0")
        A(f"s_mov_b32 s{S_GO}, 1\ns_barrier")
        A.label("L_m_work")
        wave_id(A)
        gelu_consts(A)
        A(f"s_cmp_eq_u32 s{S_HELD}, 1\ns_mov_b32 s{S_HELD}, 0\ns_cbranch_scc1 L_m_disp")
        A.label("L_m_next")
        A(f"s_cmp_eq_u32 s{S_GO}, 1\ns_cbranch_scc1 L_m_tick")
        wg_atomic(A, F_DEC, 0, S_GO, op="load")
        A(f"s_cmp_lg_u32 s{S_GO}, 2\ns_cbranch_scc1 L_m_tick")
        wg_atomic(A, F_CH2, 1, CH.S_H)
        A(f"s_mov_b32 s{S_GO}, 1\ns_mov_b32 s{S_MODE}, 1\ns_cmp_lt_u32 s{CH.S_H}, 32\ns_cbranch_scc1 L_m_chain")
        A.label("L_m_tick")
        wg_atomic(A, F_TICK, 1, S_TK)
        A(f"s_cmp_eq_u32 s{S_GO}, 1\ns_cbranch_scc1 L_m_disp\ns_cmp_lt_u32 s{S_TK}, {PO_START}\ns_cbranch_scc1 L_m_disp")
        A.label("L_m_res")
        wg_atomic(A, F_DEC, 0, S_GO, op="load")
        A(f"s_cmp_eq_u32 s{S_GO}, 1\ns_cbranch_scc1 L_m_disp\ns_cmp_eq_u32 s{S_GO}, 2\ns_cbranch_scc1 L_m_res2\ns_sleep 20\ns_branch L_m_res")
        A.label("L_m_res2")
        wg_atomic(A, F_CH2, 1, CH.S_H)
        A(f"s_mov_b32 s{S_GO}, 1\ns_mov_b32 s{S_MODE}, 1\ns_mov_b32 s{S_HELD}, 1\ns_cmp_lt_u32 s{CH.S_H}, 32\ns_cbranch_scc1 L_m_chain\ns_mov_b32 s{S_HELD}, 0")
        A.label("L_m_disp")
        srd(A, G_SP, 80, WS_SIZE)
        start = 0
        for n, kind, base in order_ranges():
            L = A.newlabel("RG")
            A(f"s_cmp_ge_u32 s{S_TK}, {start + n}\ns_cbranch_scc1 {L}")
            A(f"s_sub_u32 s3, s{S_TK}, {start}")
            if kind == "KV":
                A(f"s_add_u32 s3, s3, {base*64}")
            elif kind == "Q":
                A(f"s_add_u32 s3, s3, {base}")
            ljump(A, f"L_w_{kind}", True)
            A.label(L)
            start += n
        if dbg: dbg_time(A, 4, False, "max")
        A("s_waitcnt vmcnt(0)\ns_endpgm")
        A.label("L_w_KV")
        A("s_load_dwordx4 s[16:19], s[0:1], 24")
        gemm_setup_addr(A, C_QK, 8192); qkv_epi_addr(A)
        A(f"s_and_b32 s{S_HD}, s3, 31\ns_lshr_b32 s{S_RB}, s3, 6\ns_bitcmp1_b32 s3, 5\ns_waitcnt lgkmcnt(0)\ns_cbranch_scc1 L_w_V")
        srd(A, G_SW, 16, 4 << 20)
        qkv_tile(A, "K", st="sc1")
        A("s_branch L_w_KVd")
        A.label("L_w_V")
        srd(A, G_SW, 18, 4 << 20)
        qkv_tile(A, "V", st="sc1")
        A.label("L_w_KVd")
        A(f"s_lshl_b32 s3, s{S_RB}, 7\ns_add_u32 s3, s3, {F_KV}")
        signal(A, "s3")
        ljump(A, "L_m_next", False)
        A.label("L_w_Q")
        load_ptr(A, 16, "wq")
        gemm_setup_addr(A, C_QK, 8192)
        A(f"s_and_b32 s{S_HD}, s3, 31\ns_lshr_b32 s{S_RB}, s3, 5\ns_waitcnt lgkmcnt(0)")
        srd(A, G_SW, 16, 4 << 20)
        qkv_tile(A, "Q", st="sc1")
        A(f"s_lshl_b32 s3, s{S_RB}, 7\ns_add_u32 s3, s3, {F_Q}")
        signal(A, "s3")
        ljump(A, "L_m_next", False)
        A.label("L_w_Z2")
        load_ptr(A, 16, "win")
        gemm_setup_addr(A, C_Z2, 3584)
        A(f"s_mov_b32 s{S_RB}, s3\ns_waitcnt lgkmcnt(0)")
        srd(A, G_SW, 16, 512 * 3584)
        z2_tile(A, st="sc1")
        signal(A, F_ZD)
        ljump(A, "L_m_next", False)
        A.label("L_w_Z1")
        load_ptr(A, 16, "win")
        gemm_setup_addr(A, C_Z1, 3584)
        A(f"s_and_b32 s{S_RB}, s3, 7\ns_lshr_b32 s{S_HD}, s3, 3\ns_waitcnt lgkmcnt(0)")
        srd(A, G_SW, 16, 512 * 3584)
        z1_tile(A, st="sc1")
        signal(A, F_ZD)
        ljump(A, "L_m_next", False)
        A.label("L_w_SP")
        load_ptr(A, 16, "wsp"); load_ptr(A, 18, "bsp")
        gemm_setup_addr(A, C_SP, 4096)
        A(f"s_and_b32 s{S_RB}, s3, 7\ns_lshr_b32 s{S_HD}, s3, 3\ns_waitcnt lgkmcnt(0)")
        srd(A, G_SW, 16, 2048 * 4096); srd(A, S_BSP, 18, 4096)
        wait_flag(A, WS_FLAG + F_ZD, 88, G_VT, G_ST, S_FL, sleep=8)
        A("s_barrier")
        sp_tile(A, ld="sc1", st="sc1")
        A(f"s_lshl_b32 s3, s{S_RB}, 7\ns_add_u32 s3, s3, {F_U}")
        signal(A, "s3")
        ljump(A, "L_m_next", False)
        A.label("L_w_PO")
        if dbg:
            A("s_cmp_lg_u32 s3, 0\ns_cbranch_scc1 L_dbg_po")
            dbg_time(A, 5, False)
            A.label("L_dbg_po")
        A(f"""
        s_mul_i32 s30, s3, 1366
        s_lshr_b32 s30, s30, 16            ; grp = s3/48
        s_mul_i32 s31, s30, 48
        s_sub_u32 s31, s3, s31             ; r
        s_mov_b32 s{S_RB}, s30
        s_cmp_ge_u32 s31, 16
        s_cbranch_scc1 L_w_FIN
        """)
        attn_setup(A)
        A(f"s_lshr_b32 s3, s30, 2\ns_lshl_b32 s3, s3, 7\ns_add_u32 s3, s3, {WS_FLAG + F_KV}")
        wait_flag(A, "s3", 64, 8, G_ST, S_FL, sleep=16)
        A(f"s_add_u32 s3, s3, {F_Q - F_KV}")
        wait_flag(A, "s3", 32, 8, G_ST, S_FL, sleep=16)
        A(f"""
        s_lshl_b32 s30, s30, 1
        s_bfe_u32 s3, s31, 0x10001
        s_add_u32 s30, s30, s3             ; seg
        s_lshr_b32 s{S_HD}, s31, 2         ; octet
        s_and_b32 s31, s31, 1
        s_lshl_b32 s3, s{S_HD}, 1
        s_add_u32 s31, s31, s3
        s_lshl_b32 s31, s31, 2
        s_add_u32 s31, s31, s{G_SWV}       ; head
        """)
        def mid(A):
            A(f"s_lshl_b32 s3, s{S_RB}, 7\ns_add_u32 s3, s3, {WS_FLAG + F_PR}")
            wait_flag(A, "s3", 64, 220, 50, S_FL, sleep=PSLEEP)
        attn_task(A, 30, 31, ld="sc1", st="sc1", mid=mid)
        A(f"s_lshl_b32 s3, s{S_RB}, 2\ns_add_u32 s3, s3, s{S_HD}\ns_lshl_b32 s3, s3, 7\ns_add_u32 s3, s3, {F_OX}")
        signal(A, "s3")
        ljump(A, "L_m_next", False)
        A.label("L_w_FIN")
        load_ptr(A, 16, "wo"); load_ptr(A, 18, "wout"); load_ptr(A, 20, "x"); load_ptr(A, 22, "out")
        A(f"s_sub_u32 s31, s31, 16\ns_and_b32 s{S_HD}, s31, 7\ns_lshr_b32 s63, s31, 3\ns_waitcnt lgkmcnt(0)")
        def wait_ox(A):
            A(f"s_lshl_b32 s3, s{S_RB}, 2\ns_add_u32 s3, s3, s63\ns_lshl_b32 s3, s3, 7\ns_add_u32 s3, s3, {WS_FLAG + F_OX}")
            wait_flag(A, "s3", 4, G_VT, G_ST + 2, S_FL, sleep=PSLEEP)
        final_split(A, "OX", ld="sc1", wait=wait_ox)
        A("s_branch L_w_FD")
        A.label("L_w_FU")
        load_ptr(A, 16, "wo"); load_ptr(A, 18, "wout"); load_ptr(A, 20, "x"); load_ptr(A, 22, "out")
        A(f"s_and_b32 s{S_HD}, s3, 7\ns_lshr_b32 s{S_RB}, s3, 3\ns_waitcnt lgkmcnt(0)")
        def wait_u(A):
            A(f"s_lshr_b32 s3, s{S_RB}, 2\ns_lshl_b32 s3, s3, 7\ns_add_u32 s3, s3, {WS_FLAG + F_U}")
            wait_flag(A, "s3", 7, G_VT, G_ST, S_FL, sleep=16)
        final_split(A, "U", ld="sc1", wait=wait_u)
        A.label("L_w_FD")
        A("s_waitcnt vmcnt(0)\ns_barrier")
        A(f"s_lshl_b32 s3, s{S_RB}, 3\ns_add_u32 s3, s3, s{S_HD}\ns_lshl_b32 s3, s3, 7\ns_add_u32 s3, s3, {F_FIN}")
        wg_atomic(A, "s3", 1, 63)
        A("s_cmp_lg_u32 s63, 4\ns_cbranch_scc1 L_w_FE")
        final_finish(A)
        A.label("L_w_FE")
        ljump(A, "L_m_next", False)
        return kernel_desc("main_kernel", 512, 102, 256)
    return fn

HDR = open("parallel_sum__memory_aug_recurrent_mem_tr__mixer_gmlp__prompt.s.ref").read().split("; Override launch")[0]
def build_main(path, **kw):
    build([("prep_kernel", 160, 0), ("main_kernel", 256, LDS_MAIN)],
          [prep_kernel, main_kernel(**kw)], path)
    t = open(path).read()
    open(path, "w").write(HDR + t)
if __name__ == "__main__":
    ck = dict(rw=60, pr=20, pw0=200, pw=40, rw2=40)
    build_main("m4.s", chain_kw=ck)
    build_main("m4_abort.s", chain_kw=ck, force_abort=True)
    build_main("m4_dbg.s", chain_kw=ck, dbg=True)
    for a, b in [(0, 9)]:
        build_main(f"m4_tr{a}{b}.s", chain_kw=dict(stamps=True, trace=(a, b), **ck), dbg=True)
```

```python
from dsl import *
from layout import *

LDS_WO = 0
LDS_KX = 0x20000
LDS_KX2 = 0x22000
LDS_MEM = 0x24000
LDS_QK = 0x26000
QP = 272
LDS_K2 = 8 * QP
LDS_O = LDS_QK + 4608
LDS_DUMMY = LDS_O + 2048
LDS_END = LDS_O + 2048

S_WQ, S_WK, S_WV, S_WO, S_WS = 8, 12, 16, 20, 24
S_H, S_W, S_STEP = 28, 29, 30
S_SLOT = 32
S_SELLO, S_SELHI = 40, 41
S_T0, S_T1, S_T2 = 42, 43, 44
S_MEMOFF, S_PARTOFF, S_KVOFF, S_KMOFF, S_VMOFF = 45, 46, 47, 48, 49
S_LO = 50
S_CNT = 52
S_C = 53
S_SENT = 54
S_EXEC = 56
S_TM = 58
S_DBG = 66
S_KXB = 68
S_KXN = 69
S_PHASE = 70
S_CNT2 = 71

V_LANE16 = 1
V_POLL = 2
V_MEMW = 3
V_MEMR = 4
V_IDX = 7
V_QW = 8
V_QR = 9
V_KMX = 10
V_OW = 11
V_PST = 12
V_SELV = 13
V_MST = 14
V_WOR = 15
V_A = 16
V_ACC = 48
V_QF = 72
V_KF = 88
V_S = 104
V_VX = 116
V_T = 124
V_WV = 128

def wreg(mat, par, j, n=8):
    idx = (par * 8 + j) * 8
    if mat == 0: return ar(idx, n)
    if mat == 1: return ar(128 + idx, n)
    return vr(V_WV + idx, n)

V8 = False
def chain_setup(A):
    srd(A, S_WQ, 72, 4 << 20)
    srd(A, S_WK, 74, 4 << 20)
    srd(A, S_WV, 76, 4 << 20)
    srd(A, S_WO, 78, 4 << 20)
    srd(A, S_WS, 80, WS_SIZE)
    A(f"""
    v_lshrrev_b32 v124, 6, v0
    v_and_b32 v125, 63, v0            ; lane
    s_nop 0
    v_readfirstlane_b32 s{S_W}, v124
    v_and_b32 v126, 15, v125          ; n16
    v_lshrrev_b32 v127, 4, v125       ; g
    v_lshlrev_b32 v{V_LANE16}, 4, v125
    s_mov_b32 s{S_SELLO}, 0x05040100
    s_mov_b32 s{S_SELHI}, 0x07060302
    s_mov_b32 s{S_LO}, 0x33333333
    s_mov_b32 s{S_LO+1}, 0x33333333
    s_mov_b32 s{S_C}, 0x3e0293ee
    s_mov_b32 s{S_SENT}, 0xfffffffe
    """)
    A(f"""
    s_lshl_b32 s{S_T0}, s{S_W}, 11
    v_lshlrev_b32 v{V_POLL}, 6, v126
    v_lshl_add_u32 v{V_POLL}, v127, 4, v{V_POLL}
    v_add_u32 v{V_POLL}, s{S_T0}, v{V_POLL}
    """)
    A(f"""
    s_lshl_b32 s{S_T0}, s{S_W}, 11
    s_add_u32 s{S_T0}, s{S_T0}, {LDS_MEM}
    v_add_u32 v{V_MEMW}, s{S_T0}, v{V_LANE16}
    """)
    for jj in range(3):
        A(f"""
        s_lshl_b32 s{S_T0}, s{S_W}, 1
        s_add_u32 s{S_T0}, s{S_T0}, {2*jj+2}
        s_and_b32 s{S_T0}, s{S_T0}, 7
        s_lshl_b32 s{S_T0}, s{S_T0}, 10
        s_add_u32 s{S_T0}, s{S_T0}, {LDS_MEM}
        v_add_u32 v{V_MEMR+jj}, s{S_T0}, v{V_LANE16}
        """)
    A(f"""
    v_mov_b32 v{V_IDX}, 0xeeee
    v_mov_b32 v120, 0x4444
    v_cndmask_b32 v{V_IDX}, v{V_IDX}, v120, s[{S_LO}:{S_LO+1}]
    """)
    A(f"""
    v_lshlrev_b32 v120, 1, v127        ; ra = 2g
    v_and_b32 v121, 7, v126
    v_lshrrev_b32 v121, 1, v121
    v_lshlrev_b32 v121, 4, v121        ; gq*16
    v_lshrrev_b32 v122, 3, v126
    v_lshl_add_u32 v121, v122, 3, v121 ; + half*8
    v_and_b32 v122, 1, v126
    v_lshl_add_u32 v121, v122, 2, v121 ; + (n16&1)*4
    v_mul_u32_u24 v{V_QW}, {QP}, v120
    v_add_u32 v{V_QW}, v{V_QW}, v121
    s_lshl_b32 s{S_T0}, s{S_W}, 6
    s_add_u32 s{S_T0}, s{S_T0}, {LDS_QK}
    v_add_u32 v{V_QW}, s{S_T0}, v{V_QW}
    v_lshl_add_u32 v{V_KMX}, v120, 6, v121
    s_lshl_b32 s{S_T0}, s{S_W}, 9
    v_add_u32 v{V_KMX}, s{S_T0}, v{V_KMX}
    v_lshrrev_b32 v122, 2, v126
    v_lshlrev_b32 v122, 1, v122
    v_and_b32 v123, 1, v126
    v_add_u32 v122, v122, v123
    v_mul_u32_u24 v{V_QR}, {QP}, v122
    v_lshl_add_u32 v{V_QR}, v127, 4, v{V_QR}
    v_add_u32 v{V_QR}, {LDS_QK}, v{V_QR}
    s_lshr_b32 s{S_T0}, s{S_W}, 1
    s_lshl_b32 s{S_T0}, s{S_T0}, 10
    s_and_b32 s{S_T1}, s{S_W}, 1
    s_lshl_b32 s{S_T1}, s{S_T1}, 3
    s_add_u32 s{S_T0}, s{S_T0}, s{S_T1}
    s_add_u32 s{S_T0}, s{S_T0}, {LDS_O}
    v_add_u32 v{V_OW}, s{S_T0}, v{V_LANE16}
    v_lshlrev_b32 v{V_PST}, 15, v120
    v_lshl_add_u32 v{V_PST}, v126, 4, v{V_PST}
    s_lshl_b32 s{S_T0}, s{S_W}, 13
    s_lshl_b32 s{S_T1}, s{S_H}, 8
    s_add_u32 s{S_T0}, s{S_T0}, s{S_T1}
    v_add_u32 v{V_PST}, s{S_T0}, v{V_PST}
    ; SELV = 0x3f80 << (16*(n16&1))
    v_and_b32 v122, 1, v126
    v_lshlrev_b32 v122, 4, v122
    v_mov_b32 v{V_SELV}, 0x3f80
    v_lshlrev_b32 v{V_SELV}, v122, v{V_SELV}
    ; MST = (2w' + n16/8)*1024 + (i + 8*(g&1))*64 + ((n16/2)&3)*16 + (n16&1)*8 ; i = h>>2, w' = h&3
    v_lshrrev_b32 v122, 3, v126
    v_lshlrev_b32 v{V_MST}, 10, v122
    v_and_b32 v122, 1, v127
    v_lshl_add_u32 v{V_MST}, v122, 7, v{V_MST}
    v_bfe_u32 v122, v126, 1, 2
    v_lshl_add_u32 v{V_MST}, v122, 4, v{V_MST}
    v_and_b32 v122, 1, v126
    v_lshl_add_u32 v{V_MST}, v122, 3, v{V_MST}
    s_and_b32 s{S_T0}, s{S_H}, 3
    s_lshl_b32 s{S_T0}, s{S_T0}, 11
    s_lshr_b32 s{S_T1}, s{S_H}, 3
    s_lshl_b32 s{S_T1}, s{S_T1}, 8
    s_add_u32 s{S_T0}, s{S_T0}, s{S_T1}
    s_bfe_u32 s{S_T1}, s{S_H}, 0x10002
    s_lshl_b32 s{S_T1}, s{S_T1}, 6
    s_add_u32 s{S_T0}, s{S_T0}, s{S_T1}
    v_add_u32 v{V_MST}, s{S_T0}, v{V_MST}
    s_lshl_b32 s{S_T0}, s{S_W}, 15
    v_add_u32 v{V_WOR}, s{S_T0}, v{V_LANE16}
    """)
    if V8:
        A(f"""
        ; PST = ((g*4+w)*2)*8192 + h*256 + n16*16
        v_lshlrev_b32 v{V_PST}, 16, v127
        v_lshl_add_u32 v{V_PST}, v126, 4, v{V_PST}
        s_lshl_b32 s{S_T0}, s{S_W}, 14
        s_lshl_b32 s{S_T1}, s{S_H}, 8
        s_add_u32 s{S_T0}, s{S_T0}, s{S_T1}
        v_add_u32 v{V_PST}, s{S_T0}, v{V_PST}
        v_lshrrev_b32 v122, 3, v126
        v_lshlrev_b32 v{V_MST}, 10, v122
        v_and_b32 v122, 1, v127
        v_lshl_add_u32 v{V_MST}, v122, 6, v{V_MST}
        v_bfe_u32 v122, v126, 1, 2
        v_lshl_add_u32 v{V_MST}, v122, 4, v{V_MST}
        v_and_b32 v122, 1, v126
        v_lshl_add_u32 v{V_MST}, v122, 3, v{V_MST}
        s_bfe_u32 s{S_T0}, s{S_H}, 0x20001
        s_lshl_b32 s{S_T0}, s{S_T0}, 11
        s_lshr_b32 s{S_T1}, s{S_H}, 3
        s_lshl_b32 s{S_T1}, s{S_T1}, 8
        s_add_u32 s{S_T0}, s{S_T0}, s{S_T1}
        s_and_b32 s{S_T1}, s{S_H}, 1
        s_lshl_b32 s{S_T1}, s{S_T1}, 7
        s_add_u32 s{S_T0}, s{S_T0}, s{S_T1}
        v_add_u32 v{V_MST}, s{S_T0}, v{V_MST}
        v_add_u32 v{V_SELV}, {LDS_KX}, v{V_LANE16}
        """)
    for j in range(8):
        A(f"""
        s_lshl_b32 s{S_T0}, s{S_W}, 1
        s_add_u32 s{S_T0}, s{S_T0}, {j}
        s_and_b32 s{S_T0}, s{S_T0}, 7
        s_lshl_b32 s{S_SLOT+j}, s{S_T0}, 19     ; 64*u*8192
        """)
    A(f"""
    v_lshlrev_b32 v120, 16, v127
    v_lshl_add_u32 v120, v126, 2, v120
    s_lshl_b32 s{S_T0}, s{S_H}, 8
    s_lshl_b32 s{S_T1}, s{S_W}, 6
    s_add_u32 s{S_T0}, s{S_T0}, s{S_T1}
    v_add_u32 v120, s{S_T0}, v120
    ; v121 = (h*128 + 32*(g&1) + 8*(g>>1))*1024 + (128w + 8 n16)*2   (Wo)
    v_and_b32 v121, 1, v127
    v_lshlrev_b32 v121, 15, v121
    v_lshrrev_b32 v122, 1, v127
    v_lshl_add_u32 v121, v122, 13, v121
    v_lshl_add_u32 v121, v126, 4, v121
    s_lshl_b32 s{S_T0}, s{S_H}, 17
    s_lshl_b32 s{S_T1}, s{S_W}, 8
    s_add_u32 s{S_T0}, s{S_T0}, s{S_T1}
    v_add_u32 v121, s{S_T0}, v121
    """)

def chain_load_weights(A, mid=None):
    batches = [(m, j) for m in range(3) for j in range(8)]
    NB = 3
    def bank(b): return 16 + (b % 4) * 16
    srds = [S_WQ, S_WK, S_WV]
    def issue(b):
        m, j = batches[b]
        for rr in range(8):
            for e in range(2):
                rowoff = 32 * (rr // 4) + 4 * (rr % 2) + 2 * ((rr % 4) // 2) + e
                A(f"s_add_u32 s{S_T0 + (rr*2+e) % 3}, s{S_SLOT+j}, {rowoff*8192}")
                A(f"buffer_load_dword v{bank(b) + rr*2 + e}, v120, s[{srds[m]}:{srds[m]+3}], s{S_T0 + (rr*2+e) % 3} offen")
    def process(b):
        m, j = batches[b]
        for rr in range(8):
            e0 = bank(b) + rr * 2; e1 = e0 + 1
            for par in range(2):
                sel = S_SELLO if par == 0 else S_SELHI
                idx = (par * 8 + j) * 8 + rr
                if m == 2:
                    A(f"v_perm_b32 v{V_WV+idx}, v{e1}, v{e0}, s{sel}")
                else:
                    t = 84 + (rr * 2 + par) % 8
                    A(f"v_perm_b32 v{t}, v{e1}, v{e0}, s{sel}")
                    A(f"v_accvgpr_write_b32 a{m*128+idx}, v{t}")
    n = len(batches)
    for b in range(NB): issue(b)
    for b in range(n):
        if b + NB < n:
            issue(b + NB)
            A(f"s_waitcnt vmcnt({16*NB})")
        else:
            A(f"s_waitcnt vmcnt({16*(n-1-b)})")
        process(b)
    if mid: mid(A)
    groups = [(ups, half) for ups in range(2) for half in range(2)]
    def obank(gi): return 16 + (gi % 2) * 32
    def oissue(gi):
        ups, half = groups[gi]
        for q in range(4):
            rr = 4 * half + q
            for e in range(2):
                row = 64 * ups + 16 * (rr // 4) + 4 * ((rr % 4) // 2) + 2 * (rr % 2) + e
                st = S_T0 + (q * 2 + e) % 3
                A(f"s_mov_b32 s{st}, {row*1024}")
                A(f"buffer_load_dwordx4 {vr(obank(gi) + (q*2+e)*4, 4)}, v121, s[{S_WO}:{S_WO+3}], s{st} offen")
    def oprocess(gi):
        ups, half = groups[gi]
        for T in range(8):
            o = 84 + (T % 2) * 4
            for q in range(4):
                e0 = obank(gi) + (q * 2) * 4 + T // 2
                e1 = obank(gi) + (q * 2 + 1) * 4 + T // 2
                sel = S_SELLO if T % 2 == 0 else S_SELHI
                A(f"v_perm_b32 v{o+q}, v{e1}, v{e0}, s{sel}")
            A(f"ds_write_b128 v{V_WOR}, {vr(o,4)} offset:{((T*2+ups)*2+half)*1024}")
    oissue(0); oissue(1)
    for gi in range(4):
        A(f"s_waitcnt vmcnt({8 if gi < 3 else 0})")
        oprocess(gi)
        if gi + 2 < 4:
            A("s_nop 1")
            oissue(gi + 2)
    A("s_waitcnt lgkmcnt(0)")

def smf(A, acc, a, b):
    A(f"v_smfmac_f32_16x16x64_bf16 {vr(acc,4)}, {vr(a,4)}, {b}, v{V_IDX}")

def kx_prefetch(A, sbase, kvoff_extra, ldflags=""):
    A(f"""
    s_lshl_b32 s{S_T0}, s{S_W}, 11
    s_add_u32 s{S_T1}, s{S_T0}, s{sbase}
    s_mov_b32 m0, s{S_T1}
    s_add_u32 s{S_T0}, s{S_T0}, s{S_KVOFF}
    s_add_u32 s{S_T0}, s{S_T0}, {kvoff_extra}
    buffer_load_dwordx4 v{V_LANE16}, s[{S_WS}:{S_WS+3}], s{S_T0} offen lds {ldflags}
    buffer_load_dwordx4 v{V_LANE16}, s[{S_WS}:{S_WS+3}], s{S_T0} offen offset:1024 lds {ldflags}
    """)
def vx_load(A, ldflags=""):
    A(f"""
    s_lshl_b32 s{S_T0}, s{S_W}, 11
    s_add_u32 s{S_T0}, s{S_T0}, s{S_KVOFF}
    s_add_u32 s{S_T0}, s{S_T0}, 8192
    buffer_load_dwordx4 {vr(V_VX,4)}, v{V_LANE16}, s[{S_WS}:{S_WS+3}], s{S_T0} offen {ldflags}
    buffer_load_dwordx4 {vr(V_VX+4,4)}, v{V_LANE16}, s[{S_WS}:{S_WS+3}], s{S_T0} offen offset:1024 {ldflags}
    """)

NST = 10
def chain_loop(A, st="", nsteps=64, timeout=20000, timing=False, stamps=False, rsleep=0, msleep=0):
    def stamp(i):
        if stamps: A(f"s_memtime s[{82+2*i}:{83+2*i}]")
    Q0, Q1, K0, K1, V0, V1 = [V_ACC + 4 * i for i in range(6)]
    L_step = A.newlabel("CH_step"); L_poll = A.newlabel("CH_poll"); L_red = A.newlabel("CH_red")
    L_done = A.newlabel("CH_done"); L_pok = A.newlabel("CH_pok"); L_rok = A.newlabel("CH_rok")
    A(f"""
    s_mov_b32 s{S_STEP}, 0
    s_mov_b32 s{S_PHASE}, 0
    s_mov_b32 s{S_MEMOFF}, {WS_MEMF}
    s_mov_b32 s{S_PARTOFF}, {WS_PART}
    s_lshl_b32 s{S_T0}, s{S_H}, 14
    s_add_u32 s{S_KVOFF}, s{S_T0}, {WS_KV}
    s_lshl_b32 s{S_T0}, s{S_H}, 11
    s_add_u32 s{S_KMOFF}, s{S_T0}, {WS_KM}
    s_lshl_b32 s{S_T0}, s{S_H}, 12
    s_lshl_b32 s{S_T1}, s{S_W}, 10
    s_add_u32 s{S_T0}, s{S_T0}, s{S_T1}
    s_add_u32 s{S_VMOFF}, s{S_T0}, {WS_VM}
    """)
    A(f"s_mov_b32 s{S_KXB}, {LDS_KX}\ns_mov_b32 s{S_KXN}, {LDS_KX2}")
    kx_prefetch(A, S_KXB, 0)
    A("s_barrier")
    if timing:
        A(f"s_memtime s[{S_TM}:{S_TM+1}]")
    A.label(L_step)
    stamp(0)
    for i in range(24):
        A(f"v_mov_b32 v{V_ACC+i}, 0")
    A(f"s_mov_b32 s{S_CNT2}, 0")
    if msleep:
        L_ns = A.newlabel("CH_ns")
        A(f"s_cmp_eq_u32 s{S_W}, 0\ns_cbranch_scc1 {L_ns}\ns_sleep {msleep}")
        A.label(L_ns)
    A.label(L_poll)
    A(f"""
    buffer_load_dwordx4 {vr(V_A,4)}, v{V_POLL}, s[{S_WS}:{S_WS+3}], s{S_MEMOFF} offen sc1
    buffer_load_dwordx4 {vr(V_A+4,4)}, v{V_POLL}, s[{S_WS}:{S_WS+3}], s{S_MEMOFF} offen offset:1024 sc1
    s_add_u32 s{S_CNT2}, s{S_CNT2}, 1
    s_cmp_gt_u32 s{S_CNT2}, {timeout}
    s_cbranch_scc1 {L_pok}
    s_waitcnt vmcnt(0)
    v_max3_u32 v{V_T}, v{V_A}, v{V_A+1}, v{V_A+2}
    v_max3_u32 v{V_T+1}, v{V_A+3}, v{V_A+4}, v{V_A+5}
    v_max3_u32 v{V_T}, v{V_T}, v{V_A+6}, v{V_A+7}
    v_max_u32 v{V_T}, v{V_T}, v{V_T+1}
    v_cmp_eq_u32 vcc, -1, v{V_T}
    s_nop 1
    s_cbranch_vccnz {L_poll}
    """)
    A.label(L_pok)
    stamp(1)
    A(f"""
    s_waitcnt vmcnt(0)
    ds_write_b128 v{V_MEMW}, {vr(V_A,4)}
    ds_write_b128 v{V_MEMW}, {vr(V_A+4,4)} offset:1024
    """)
    smf(A, Q0, V_A, wreg(0, 0, 0)); smf(A, Q1, V_A, wreg(0, 1, 0))
    A("s_waitcnt lgkmcnt(0)\ns_barrier")
    vx_load(A)
    kx_prefetch(A, S_KXN, 32 * 16384)
    A(f"""
    s_mov_b32 m0, {LDS_DUMMY}
    s_add_u32 s{S_T0}, s{S_MEMOFF}, 8192
    buffer_load_dword v{V_POLL}, s[{S_WS}:{S_WS+3}], s{S_T0} offen lds
    s_add_u32 s{S_T0}, s{S_T0}, 1024
    buffer_load_dword v{V_POLL}, s[{S_WS}:{S_WS+3}], s{S_T0} offen lds
    """)
    stamp(2)
    for jj in range(3):
        A(f"ds_read_b128 {vr(V_A+8+8*jj,4)}, v{V_MEMR+jj}")
        A(f"ds_read_b128 {vr(V_A+12+8*jj,4)}, v{V_MEMR+jj} offset:1024")
    smf(A, Q0, V_A + 4, wreg(0, 0, 1)); smf(A, Q1, V_A + 4, wreg(0, 1, 1))
    for j in range(2):
        smf(A, K0, V_A + 4 * j, wreg(1, 0, j)); smf(A, K1, V_A + 4 * j, wreg(1, 1, j))
    for j in range(2, 8):
        A(f"s_waitcnt lgkmcnt({7-j})")
        smf(A, Q0, V_A + 4 * j, wreg(0, 0, j)); smf(A, Q1, V_A + 4 * j, wreg(0, 1, j))
    for j in range(2, 8):
        smf(A, K0, V_A + 4 * j, wreg(1, 0, j)); smf(A, K1, V_A + 4 * j, wreg(1, 1, j))
    def fold(X0, X1, off, export):
        A(f"""
        v_permlane32_swap_b32 v{X0}, v{X0+1}
        v_permlane32_swap_b32 v{X0+2}, v{X0+3}
        v_permlane32_swap_b32 v{X1}, v{X1+1}
        v_permlane32_swap_b32 v{X1+2}, v{X1+3}
        v_add_f32 v{X0}, v{X0}, v{X0+1}
        v_add_f32 v{X0+2}, v{X0+2}, v{X0+3}
        v_add_f32 v{X1}, v{X1}, v{X1+1}
        v_add_f32 v{X1+2}, v{X1+2}, v{X1+3}
        v_cvt_pk_bf16_f32 v{X0}, v{X0}, v{X1}
        v_cvt_pk_bf16_f32 v{X0+2}, v{X0+2}, v{X1+2}
        ds_write_b32 v{V_QW}, v{X0} offset:{off}
        ds_write_b32 v{V_QW}, v{X0+2} offset:{off+2*QP}
        """)
        if export:
            A(f"""
            buffer_store_dword v{X0}, v{V_KMX}, s[{S_WS}:{S_WS+3}], s{S_KMOFF} offen
            buffer_store_dword v{X0+2}, v{V_KMX}, s[{S_WS}:{S_WS+3}], s{S_KMOFF} offen offset:128
            """)
    stamp(3)
    fold(Q0, Q1, 0, False)
    fold(K0, K1, LDS_K2, True)
    smf(A, V0, V_A, wreg(2, 0, 0)); smf(A, V1, V_A, wreg(2, 1, 0))
    A("s_waitcnt lgkmcnt(0)\ns_barrier")
    stamp(4)
    for kp in range(4):
        A(f"ds_read_b128 {vr(V_QF+4*kp,4)}, v{V_QR} offset:{kp*64}")
    for kp in range(4):
        A(f"ds_read_b128 {vr(V_KF+4*kp,4)}, v{V_QR} offset:{LDS_K2+kp*64}")
    A(f"v_add_u32 v{V_T}, s{S_KXB}, v{V_LANE16}")
    A(f"ds_read_b128 {vr(V_A,4)}, v{V_T}")
    for j in range(1, 8):
        smf(A, V0, V_A + 4 * j, wreg(2, 0, j)); smf(A, V1, V_A + 4 * j, wreg(2, 1, j))
        if j == 7: A("s_waitcnt lgkmcnt(7)")
        A(f"ds_read_b128 {vr(V_A+4*j,4)}, v{V_T} offset:{j*1024}")
    S0, S1, S2 = V_S, V_S + 4, V_S + 8
    for kp in range(4):
        c = "0" if kp == 0 else vr(S0, 4)
        A(f"v_mfma_f32_16x16x32_bf16 {vr(S0,4)}, {vr(V_KF+4*kp,4)}, {vr(V_QF+4*kp,4)}, {c}")
    A("s_nop 3")
    VM = V_ACC
    A(f"""
    v_cvt_pk_bf16_f32 v{VM}, v{V0}, v{V0+1}
    v_cvt_pk_bf16_f32 v{VM+1}, v{V0+2}, v{V0+3}
    v_cvt_pk_bf16_f32 v{VM+2}, v{V1}, v{V1+1}
    v_cvt_pk_bf16_f32 v{VM+3}, v{V1+2}, v{V1+3}
    buffer_store_dwordx4 {vr(VM,4)}, v{V_LANE16}, s[{S_WS}:{S_WS+3}], s{S_VMOFF} offen
    s_cmp_eq_u32 s{S_STEP}, {nsteps-1}
    s_cbranch_scc1 {L_done}
    """)
    for T in range(2):
        Sx = S1 if T == 0 else S2
        for kp in range(4):
            f = T * 4 + kp
            A(f"s_waitcnt lgkmcnt({7-f})")
            c = "0" if kp == 0 else vr(Sx, 4)
            A(f"v_mfma_f32_16x16x32_bf16 {vr(Sx,4)}, {vr(V_A+4*f,4)}, {vr(V_QF+4*kp,4)}, {c}")
    WB = [56, 64, 72, 80, 88, 96]
    order = [(T, ups) for T in range(8) for ups in range(2)]
    def wo_read(i, buf):
        T, ups = order[i]
        A(f"ds_read_b128 {vr(buf,4)}, v{V_WOR} offset:{((T*2+ups)*2)*1024}")
        A(f"ds_read_b128 {vr(buf+4,4)}, v{V_WOR} offset:{((T*2+ups)*2+1)*1024}")
    wo_read(0, WB[0]); wo_read(1, WB[1])
    A("s_nop 7")
    for i in range(2, 6): wo_read(i, WB[i])
    stamp(5)
    M, M2, LS, L2 = V_T, V_T + 1, V_T + 2, V_T + 3
    A(f"""
    v_max3_f32 v{M}, v{S0}, v{S0+1}, v{S0+2}
    v_max3_f32 v{M2}, v{S0+3}, v{S1}, v{S1+1}
    v_max3_f32 v{M}, v{M}, v{S1+2}, v{S1+3}
    v_max3_f32 v{M2}, v{M2}, v{S2}, v{S2+1}
    v_max3_f32 v{M}, v{M}, v{S2+2}, v{S2+3}
    v_max_f32 v{M}, v{M}, v{M2}
    v_mov_b32 v{M2}, v{M}
    s_nop 1
    v_permlane16_swap_b32 v{M}, v{M2}
    v_max_f32 v{M}, v{M}, v{M2}
    v_mov_b32 v{M2}, v{M}
    s_nop 1
    v_permlane32_swap_b32 v{M}, v{M2}
    v_max_f32 v{M}, v{M}, v{M2}
    v_mul_f32 v{M}, s{S_C}, v{M}
    """)
    for i in range(12):
        A(f"v_fma_f32 v{V_S+i}, v{V_S+i}, s{S_C}, -v{M}")
    for i in range(12):
        A(f"v_exp_f32 v{V_S+i}, v{V_S+i}")
    for i in range(32):
        A(f"v_mov_b32 v{V_A+i}, 0")
    PM, PX = 52, None
    A(f"""
    v_add_f32 v{LS}, v{S0}, v{S0+1}
    v_add_f32 v{L2}, v{S0+2}, v{S0+3}
    v_add_f32 v{LS}, v{LS}, v{L2}
    v_add_f32 v{L2}, v{S1}, v{S1+1}
    v_fma_f32 v{LS}, v{LS}, 0.5, v{L2}
    v_add_f32 v{L2}, v{S1+2}, v{S1+3}
    v_add_f32 v{LS}, v{LS}, v{L2}
    v_add_f32 v{L2}, v{S2}, v{S2+1}
    v_add_f32 v{LS}, v{LS}, v{L2}
    v_add_f32 v{L2}, v{S2+2}, v{S2+3}
    v_add_f32 v{LS}, v{LS}, v{L2}
    v_cvt_pk_bf16_f32 v{PM}, v{S0}, v{S0+1}
    v_cvt_pk_bf16_f32 v{PM+1}, v{S0+2}, v{S0+3}
    v_cvt_pk_bf16_f32 v{S0}, v{S1}, v{S1+1}
    v_cvt_pk_bf16_f32 v{S0+1}, v{S1+2}, v{S1+3}
    v_cvt_pk_bf16_f32 v{S0+2}, v{S2}, v{S2+1}
    v_cvt_pk_bf16_f32 v{S0+3}, v{S2+2}, v{S2+3}
    v_mov_b32 v{L2}, v{LS}
    s_waitcnt vmcnt(7)
    v_mfma_f32_16x16x32_bf16 {vr(S1,4)}, {vr(V_VX,4)}, {vr(S0,4)}, 0
    v_mfma_f32_16x16x32_bf16 {vr(S2,4)}, {vr(V_VX+4,4)}, {vr(S0,4)}, 0
    v_permlane16_swap_b32 v{LS}, v{L2}
    v_add_f32 v{LS}, v{LS}, v{L2}
    v_mov_b32 v{L2}, v{LS}
    s_nop 3
    v_mfma_f32_16x16x16_bf16 {vr(S1,4)}, {vr(VM,2)}, {vr(PM,2)}, {vr(S1,4)}
    v_mfma_f32_16x16x16_bf16 {vr(S2,4)}, {vr(VM+2,2)}, {vr(PM,2)}, {vr(S2,4)}
    v_permlane32_swap_b32 v{LS}, v{L2}
    v_add_f32 v{LS}, v{LS}, v{L2}
    v_rcp_f32 v{LS}, v{LS}
    s_nop 7
    v_cndmask_b32 v{S0}, v{S1+1}, v{S1}, s[{S_LO}:{S_LO+1}]
    v_cndmask_b32 v{S0+1}, v{S2+1}, v{S2}, s[{S_LO}:{S_LO+1}]
    v_cndmask_b32 v{S0+2}, v{S1+3}, v{S1+2}, s[{S_LO}:{S_LO+1}]
    v_cndmask_b32 v{S0+3}, v{S2+3}, v{S2+2}, s[{S_LO}:{S_LO+1}]
    v_mul_f32 v{S0}, v{S0}, v{LS}
    v_mul_f32 v{S0+1}, v{S0+1}, v{LS}
    v_mul_f32 v{S0+2}, v{S0+2}, v{LS}
    v_mul_f32 v{S0+3}, v{S0+3}, v{LS}
    v_cvt_pk_bf16_f32 v{S0}, v{S0}, v{S0+1}
    v_cvt_pk_bf16_f32 v{S0+1}, v{S0+2}, v{S0+3}
    ds_write_b64 v{V_OW}, {vr(S0,2)}
    v_add_u32 v{V_T}, {LDS_O}, v{V_LANE16}
    s_waitcnt lgkmcnt(0)
    s_barrier
    ds_read_b128 {vr(S1,4)}, v{V_T}
    ds_read_b128 {vr(S2,4)}, v{V_T} offset:1024
    """)
    stamp(6)
    A(f"s_add_u32 s{S_KVOFF}, s{S_KVOFF}, {32*16384}")
    A(f"s_mov_b32 s{S_T0}, s{S_KXB}\ns_mov_b32 s{S_KXB}, s{S_KXN}\ns_mov_b32 s{S_KXN}, s{S_T0}")
    A("s_waitcnt lgkmcnt(0)")
    OF = [S1, S2]
    nb = len(WB)
    for i in range(16):
        T, ups = order[i]
        buf = WB[i % nb]
        if i >= nb:
            later = min(15, i + nb - 1) - i
            A(f"s_waitcnt lgkmcnt({min(15, 2*later)})")
        smf(A, V_A + 4 * T, OF[ups], vr(buf, 8))
        if i + nb < 16:
            wo_read(i + nb, buf)
    FO = 72; PK = 104
    L_next = A.newlabel("CH_next")
    A("s_nop 3")
    for T in range(8):
        a = V_A + 4 * T
        if T == 7: A("s_nop 3")
        A(f"v_permlane32_swap_b32 v{a}, v{a+1}")
        A(f"v_permlane32_swap_b32 v{a+2}, v{a+3}")
        A(f"v_add_f32 v{FO+T}, v{a}, v{a+1}")
        A(f"v_add_f32 v{FO+8+T}, v{a+2}, v{a+3}")
        if T % 2 == 1:
            for rs in range(2):
                A(f"v_cvt_pk_bf16_f32 v{PK+rs*4+T//2}, v{FO+rs*8+T-1}, v{FO+rs*8+T}")
            if T == 1:
                for rs in range(2):
                    A(f"v_bfi_b32 v{PK+rs*4}, 1, s{S_PHASE}, v{PK+rs*4}")
    A(f"""
    s_add_u32 s{S_T0}, s{S_PARTOFF}, 65536
    buffer_store_dwordx4 {vr(PK,4)}, v{V_PST}, s[{S_WS}:{S_WS+3}], s{S_PARTOFF} offen {st}
    buffer_store_dwordx4 {vr(PK+4,4)}, v{V_PST}, s[{S_WS}:{S_WS+3}], s{S_T0} offen {st}
    s_add_u32 s{S_MEMOFF}, s{S_MEMOFF}, 8192
    """)
    stamp(7)
    A(f"""
    s_cmp_lg_u32 s{S_W}, 0
    s_cbranch_scc1 {L_next}
    """)
    R = 72; SEL = 112; D = 48
    A(f"""
    s_mov_b32 s{S_EXEC}, 0x00030003
    s_mov_b32 s{S_EXEC+1}, 0x00030003
    s_lshl_b32 s{S_T0}, s{S_H}, 13
    s_add_u32 s{S_T0}, s{S_T0}, s{S_PARTOFF}
    s_add_u32 s{S_T1}, s{S_T0}, 4096
    s_mov_b32 s{S_CNT}, 0
    """)
    for r in range(4):
        A(f"v_cndmask_b32 v{SEL+r}, 0, v{V_SELV}, s[{S_EXEC}:{S_EXEC+1}]")
        if r < 3: A(f"s_lshl_b64 s[{S_EXEC}:{S_EXEC+1}], s[{S_EXEC}:{S_EXEC+1}], 2")
    if rsleep: A(f"s_sleep {rsleep}")
    A.label(L_red)
    for jj in range(8):
        A(f"buffer_load_dwordx4 {vr(R+4*jj,4)}, v{V_LANE16}, s[{S_WS}:{S_WS+3}], s{S_T0 + jj//4} offen offset:{(jj%4)*1024} sc1")
    A(f"""
    s_add_u32 s{S_CNT}, s{S_CNT}, 1
    """)
    for jj in range(8):
        A(f"s_waitcnt vmcnt({7-jj})")
        c = "0" if jj == 0 else vr(D, 4)
        A(f"v_mfma_f32_16x16x32_bf16 {vr(D,4)}, {vr(SEL,4)}, {vr(R+4*jj,4)}, {c}")
        if jj % 2 == 1:
            A(f"v_bitop3_b32 v{V_T + jj//2}, v{R+4*jj-4}, v{R+4*jj}, s{S_PHASE} bitop3:0x7e")
    A(f"""
    v_or3_b32 v{V_T}, v{V_T}, v{V_T+1}, v{V_T+2}
    v_or_b32 v{V_T}, v{V_T}, v{V_T+3}
    v_and_b32 v{V_T}, 1, v{V_T}
    v_cmp_ne_u32 vcc, 0, v{V_T}
    s_cmp_gt_u32 s{S_CNT}, {timeout}
    s_cbranch_scc1 {L_rok}
    s_cbranch_vccnz {L_red}
    """)
    A.label(L_rok)
    stamp(8)
    A(f"""
    s_nop 2
    v_cvt_pk_bf16_f32 v{D}, v{D}, v{D+1}
    v_cvt_pk_bf16_f32 v{D+1}, v{D+2}, v{D+3}
    v_min_u32 v{D}, s{S_SENT}, v{D}
    v_min_u32 v{D+1}, s{S_SENT}, v{D+1}
    s_mov_b64 exec, 0xffffffff
    buffer_store_dwordx2 {vr(D,2)}, v{V_MST}, s[{S_WS}:{S_WS+3}], s{S_MEMOFF} offen {st}
    s_mov_b64 exec, -1
    """)
    A.label(L_next)
    if stamps:
        stamp(9)
        A("s_waitcnt lgkmcnt(0)")
        for i in range(1, NST):
            A(f"s_sub_u32 s{S_T0}, s{82+2*i}, s{82+2*(i-1)}")
            A(f"v_writelane_b32 v0, s{S_T0}, {i}")
        A(f"v_writelane_b32 v0, s{S_CNT}, 10")
        A(f"v_writelane_b32 v0, s{S_CNT2}, 11")
    A(f"""
    s_xor_b32 s{S_PARTOFF}, s{S_PARTOFF}, {0x40000}
    s_add_u32 s{S_KMOFF}, s{S_KMOFF}, {32*2048}
    s_add_u32 s{S_VMOFF}, s{S_VMOFF}, {32*4096}
    s_add_u32 s{S_STEP}, s{S_STEP}, 1
    s_bfe_i32 s{S_PHASE}, s{S_STEP}, 0x10001
    s_branch {L_step}
    """)
    A.label(L_done)
    if timing:
        A(f"""
        s_memtime s[{S_TM+2}:{S_TM+3}]
        s_waitcnt lgkmcnt(0)
        s_sub_u32 s{S_TM+2}, s{S_TM+2}, s{S_TM}
        """)

def test_kernel(st="", stamps=False, **kw):
    A = Asm()
    A.raw(f"; @launch grid=(256,1,1) block=(256,1,1) lds={LDS_END}")
    A.raw('.amdgcn_target "amdgcn-amd-amdhsa--gfx950"\n.text')
    A.raw(kernel_head("chain_kernel"))
    A(f"""
    s_and_b32 s3, s2, 7
    s_cmp_lg_u32 s3, 0
    s_cbranch_scc1 L_exit
    s_cmp_ge_u32 s2, 256
    s_cbranch_scc1 L_exit
    s_lshr_b32 s{S_H}, s2, 3
    s_load_dwordx4 s[72:75], s[0:1], 16
    s_load_dwordx4 s[76:79], s[0:1], 32
    s_load_dwordx2 s[80:81], s[0:1], 112
    s_load_dwordx2 s[{S_DBG}:{S_DBG+1}], s[0:1], 104
    s_memtime s[{S_TM+4}:{S_TM+5}]
    s_waitcnt lgkmcnt(0)
    """)
    chain_setup(A)
    chain_load_weights(A)
    chain_loop(A, st=st, timing=True, stamps=stamps, **kw)
    A(f"""
    s_sub_u32 s{S_TM+4}, s{S_TM}, s{S_TM+4}
    s_getreg_b32 s3, hwreg(HW_REG_XCC_ID)
    v_mov_b32 v20, s{S_TM+2}
    v_mov_b32 v21, s{S_TM+4}
    s_cmp_lg_u32 s{S_H}, 0
    s_cbranch_scc1 L_exit
    v_mov_b32 v22, 0
    s_mov_b64 exec, 1
    global_store_dwordx2 v22, v[20:21], s[{S_DBG}:{S_DBG+1}]
    s_mov_b64 exec, -2
    s_cmp_lg_u32 s{S_W}, 0
    s_cbranch_scc1 L_exit
    v_lshrrev_b32 v22, 2, v{V_LANE16}
    global_store_dword v22, v0, s[{S_DBG}:{S_DBG+1}] offset:4
    """)
    A.label("L_exit")
    A("s_waitcnt vmcnt(0)\ns_endpgm")
    A.raw(kernel_desc("chain_kernel", 512, 102, 256))
    return A.text()

if __name__ == "__main__":
    import sys
    open("chain_f.s", "w").write(test_kernel(""))
    open("chain_s.s", "w").write(test_kernel("sc1"))
    open("chain_ft.s", "w").write(test_kernel("", True))
    open("chain_f2.s", "w").write(test_kernel("", msleep=4))
    open("chain_f3.s", "w").write(test_kernel("", msleep=6, rsleep=2))
```

```python
from chain import *
import chain as C1
C1.V8 = True
V_KXR = V_SELV
from chain2 import smf_s, mf_s

MEMF = 16
QA, KA, VA = 48, 56, 64
QF = 72
KX = 88
VX = 120
S_C2 = 32

def slots(A, mains, *fill_lists):
    n = max([len(mains)] + [len(f) for f in fill_lists])
    for i in range(n):
        if i < len(mains): A(mains[i])
        for f in fill_lists:
            if i < len(f) and f[i]: A(f[i])

def chain_loop8(A, st="", nsteps=64, timeout=20000, timing=False, stamps=False, pw=40, rw=40, rw2=30, pw0=0, kvld="", kv_wait=None, exp_st="", prog=None, ow=8, ow2=6, wo2=4, pr=0, trace=None):
    def stamp(i):
        if stamps and trace:
            op = "s_memrealtime" if len(trace) > 2 else "s_memtime"
            if i == trace[0]: A(f"{op} s[94:95]")
            if i == trace[1]: A(f"{op} s[100:101]")
        elif stamps: A(f"s_memtime s[{82+2*i}:{83+2*i}]")
    def warm(n, r=QF):
        for i in range(n): A(f"v_mov_b32 v{r}, 0")
    L_step = A.newlabel("CH_step"); L_poll = A.newlabel("CH_poll"); L_red = A.newlabel("CH_red")
    L_done = A.newlabel("CH_done"); L_pok = A.newlabel("CH_pok"); L_rok = A.newlabel("CH_rok"); L_next = A.newlabel("CH_next")
    WS = f"s[{S_WS}:{S_WS+3}]"
    def mstore(lines):
        if st != "MODE":
            for l in lines: A(l + " " + st)
            return
        La = A.newlabel("MS"); Lb = A.newlabel("MS")
        A(f"s_cmp_lg_u32 s31, 0\ns_cbranch_scc1 {La}")
        for l in lines: A(l)
        A(f"s_branch {Lb}")
        A.label(La)
        for l in lines: A(l + " sc1")
        A.label(Lb)
    A(f"""
    s_mov_b32 s{S_STEP}, 0
    s_mov_b32 s{S_C2}, s{S_C}
    s_mov_b32 s{S_C2+1}, s{S_C}
    s_mov_b32 s{S_PHASE}, 0
    s_mov_b32 s{S_MEMOFF}, {WS_MEMF}
    s_mov_b32 s{S_PARTOFF}, {WS_PART}
    s_lshl_b32 s{S_T0}, s{S_H}, 14
    s_lshl_b32 s{S_T1}, s{S_W}, 11
    s_add_u32 s{S_T0}, s{S_T0}, s{S_T1}
    s_add_u32 s{S_KVOFF}, s{S_T0}, {WS_KV}
    s_lshl_b32 s{S_T0}, s{S_H}, 11
    s_add_u32 s{S_KMOFF}, s{S_T0}, {WS_KM}
    s_lshl_b32 s{S_T0}, s{S_H}, 12
    s_lshl_b32 s{S_T1}, s{S_W}, 10
    s_add_u32 s{S_T0}, s{S_T0}, s{S_T1}
    s_add_u32 s{S_VMOFF}, s{S_T0}, {WS_VM}
    s_lshl_b32 s{S_T0}, s{S_W}, 11
    s_add_u32 s{S_KXB}, s{S_T0}, {LDS_KX}
    s_add_u32 s{S_KXN}, s{S_T0}, {LDS_KX2}
    """)
    if kv_wait: kv_wait(A, 0)
    A(f"""
    s_mov_b32 m0, s{S_KXB}
    s_nop 0
    buffer_load_dwordx4 v{V_LANE16}, {WS}, s{S_KVOFF} offen {kvld} lds
    buffer_load_dwordx4 v{V_LANE16}, {WS}, s{S_KVOFF} offen offset:1024 {kvld} lds
    s_waitcnt vmcnt(0)
    s_barrier
    """)
    if timing: A(f"s_memtime s[{S_TM}:{S_TM+1}]")
    for i in range(12): A(f"v_mov_b64 {vr(QA+2*i,2)}, 0")
    A.label(L_step)
    stamp(0)
    FA, FB = 4, 6
    A(f"s_mov_b32 s{S_CNT2}, 0\ns_mov_b64 s[{FA}:{FA+1}], -1\ns_mov_b64 s[{FB}:{FB+1}], -1")
    A.label(L_poll)
    T = QF
    A(f"""
    s_mov_b64 exec, s[{FA}:{FA+1}]
    buffer_load_dwordx4 {vr(MEMF,4)}, v{V_POLL}, {WS}, s{S_MEMOFF} offen sc1
    s_mov_b64 exec, s[{FB}:{FB+1}]
    buffer_load_dwordx4 {vr(MEMF+4,4)}, v{V_POLL}, {WS}, s{S_MEMOFF} offen offset:1024 sc1
    s_mov_b64 exec, -1
    s_add_u32 s{S_CNT2}, s{S_CNT2}, 1
    """)
    warm(pw)
    A(f"""
    s_waitcnt vmcnt(1)
    v_max3_u32 v{T}, v{MEMF}, v{MEMF+1}, v{MEMF+2}
    v_max_u32 v{T}, v{T}, v{MEMF+3}
    v_cmp_eq_u32 s[{FA}:{FA+1}], -1, v{T}
    s_waitcnt vmcnt(0)
    v_max3_u32 v{T+1}, v{MEMF+4}, v{MEMF+5}, v{MEMF+6}
    v_max_u32 v{T+1}, v{T+1}, v{MEMF+7}
    v_cmp_eq_u32 s[{FB}:{FB+1}], -1, v{T+1}
    s_cmp_gt_u32 s{S_CNT2}, {timeout}
    s_cbranch_scc1 {L_pok}
    s_or_b64 vcc, s[{FA}:{FA+1}], s[{FB}:{FB+1}]
    s_cbranch_scc1 {L_poll}
    """)
    A.label(L_pok)
    stamp(1)
    A(f"""
    ds_write_b128 v{V_MEMW}, {vr(MEMF,4)}
    ds_write_b128 v{V_MEMW}, {vr(MEMF+4,4)} offset:1024
    """)
    Q0, Q1, K0, K1, V0, V1 = QA, QA + 4, KA, KA + 4, VA, VA + 4
    def W(m, js):
        base = [QA, KA, VA][m]
        return [smf_s(base + 4 * p, MEMF + 4 * j, wreg(m, p, j)) for j in js for p in range(2)]
    slots(A, W(0, [0, 1]), [f"s_add_u32 s{S_T0}, s{S_KVOFF}, 8192\ns_add_u32 s{S_T1}, s{S_KVOFF}, {32*16384}\ns_mov_b32 m0, s{S_KXN}"])
    A("s_waitcnt lgkmcnt(0)\ns_barrier")
    stamp(2)
    KXA, XB = KX, KX + 16
    memr = [f"ds_read_b128 {vr(MEMF+8+4*i,4)}, v{V_MEMR+i//2} offset:{(i%2)*1024}" for i in range(6)]
    vm1 = [f"buffer_load_dwordx4 {vr(VX,4)}, v{V_LANE16}, {WS}, s{S_T0} offen {kvld}",
           f"buffer_load_dwordx4 {vr(VX+4,4)}, v{V_LANE16}, {WS}, s{S_T0} offen offset:1024 {kvld}"]
    vm2 = [f"buffer_load_dwordx4 v{V_LANE16}, {WS}, s{S_T1} offen {kvld} lds",
           f"buffer_load_dwordx4 v{V_LANE16}, {WS}, s{S_T1} offen offset:1024 {kvld} lds"]
    slots(A, W(1, [0, 1]) + W(2, [0, 1]), memr + vm1)
    order = []
    for tp in range(4):
        order += [(2 * tp, 0), (2 * tp + 1, 0), (2 * tp, 1), (2 * tp + 1, 1)]
    bufs = [XB, XB + 8, MEMF + 16, MEMF + 24, QF, QF + 8, KA, VA]
    def wa(Tt): return (MEMF + 4 * Tt) if Tt < 4 else (KXA + 4 * (Tt - 4))
    def wo_rd(i):
        Tt, ups = order[i]; buf = bufs[i % 8]
        return [f"ds_read_b128 {vr(buf,4)}, v{V_WOR} offset:{((Tt*2+ups)*2)*1024}",
                f"ds_read_b128 {vr(buf+4,4)}, v{V_WOR} offset:{((Tt*2+ups)*2+1)*1024}"]
    kx0 = [f"ds_read_b128 {vr(KXA+4*f,4)}, v{V_KXR} offset:{f*1024}" for f in range(4)]
    kx1 = [f"ds_read_b128 {vr(MEMF+4*f,4)}, v{V_KXR} offset:{(4+f)*1024}" for f in range(4)]
    qs = W(0, range(2, 8))
    for j in range(6):
        A(f"s_waitcnt lgkmcnt({5 - j})" if j < 6 else "")
        A(qs[2 * j])
        if j == 1: A(vm2[0])
        if j == 3: A(vm2[1])
        A(qs[2 * j + 1])
    if prog: prog(A, 0)
    stamp(3)
    def fold_list(X0, X1, off):
        return [f"v_pk_add_f32 {vr(X0,2)}, {vr(X0,2)}, {vr(X0+2,2)}", f"v_pk_add_f32 {vr(X1,2)}, {vr(X1,2)}, {vr(X1+2,2)}",
                f"v_cvt_pk_bf16_f32 v{X0}, v{X0}, v{X1}\nds_write_b32 v{V_QW}, v{X0} offset:{off}",
                f"v_cvt_pk_bf16_f32 v{X0+1}, v{X0+1}, v{X1+1}\nds_write_b32 v{V_QW}, v{X0+1} offset:{off+QP}"]
    ks = W(1, range(2, 8))
    slots(A, ks, kx0[:3] + [None, None] + kx0[3:] + wo_rd(0) + wo_rd(1) + kx1[:2], [None] + fold_list(Q0, Q1, 0))
    stamp(4)
    vs = W(2, range(2, 8))
    S1, S2, S0 = QA, QA + 4, KA + 4
    KMF = KXA
    kf = fold_list(K0, K1, LDS_K2)
    slots(A, vs[:6], [None] + kf)
    A("s_waitcnt lgkmcnt(0)\ns_barrier")
    qfr = [f"ds_read_b128 {vr(QF+4*kp,4)}, v{V_QR} offset:{kp*64}" for kp in range(4)]
    kexp = [None, f"buffer_store_dword v{K0}, v{V_KMX}, {WS}, s{S_KMOFF} offen {exp_st}",
            None,
            f"buffer_store_dword v{K0+1}, v{V_KMX}, {WS}, s{S_KMOFF} offen offset:64 {exp_st}"]
    slots(A, vs[6:], qfr + kx1[2:], kexp)
    stamp(5)
    sx = [mf_s(S1, KXA + 4 * kp, QF + 4 * kp, "0" if kp == 0 else vr(S1, 4)) for kp in range(4)]
    sx += [mf_s(S2, MEMF + 4 * kp, QF + 4 * kp, "0" if kp == 0 else vr(S2, 4)) for kp in range(4)]
    kmr = [f"ds_read_b128 {vr(KMF+4*kp,4)}, v{V_QR} offset:{LDS_K2+kp*64}" for kp in range(4)]
    VM = VA
    M, M2, LS, L2 = VA + 4, VA + 5, VA + 6, VA + 7
    zlo = [f"v_mov_b64 {vr(MEMF+2*i,2)}, 0" for i in range(8)]
    zhi = [f"v_mov_b64 {vr(KXA+2*i,2)}, 0" for i in range(8)]
    vmp = [None, None,
           f"v_cvt_pk_bf16_f32 v{VM}, v{V0}, v{V0+1}\nv_cvt_pk_bf16_f32 v{VM+1}, v{V0+2}, v{V0+3}",
           f"v_cvt_pk_bf16_f32 v{VM+2}, v{V1}, v{V1+1}\nv_cvt_pk_bf16_f32 v{VM+3}, v{V1+2}, v{V1+3}",
           f"v_xor_b32 v{V_KXR}, 0x2000, v{V_KXR}", None,
           f"v_max3_f32 v{M}, v{S1}, v{S1+1}, v{S1+2}",
           f"buffer_store_dwordx4 {vr(VM,4)}, v{V_LANE16}, {WS}, s{S_VMOFF} offen {exp_st}"]
    w2 = wo_rd(2) + wo_rd(3)
    dsf = kmr + w2
    outq = ["q0", "q1", "q2", "q3", "x2", "x3"]
    need = ["q0", "q1", "q2", "q3", None, None, "x2", "x3"]
    tags = ["m0", "m1", "m2", "m3", "w", "w", "w", "w"]
    for i in range(8):
        if need[i] in outq:
            k = outq.index(need[i])
            A(f"s_waitcnt lgkmcnt({len(outq) - 1 - k})")
            outq = outq[k + 1:]
        A(sx[i]); A(dsf[i]); outq.append(tags[i])
        if vmp[i]: A(vmp[i])
    A(f"s_cmp_eq_u32 s{S_STEP}, {nsteps-1}\ns_cbranch_scc1 {L_done}")
    A("s_waitcnt lgkmcnt(4)")
    sm = [mf_s(S0, KMF + 4 * kp, QF + 4 * kp, "0" if kp == 0 else vr(S0, 4)) for kp in range(4)]
    slots(A, sm, [zlo[0] + "\n" + zlo[1], zlo[2] + "\n" + zlo[3],
                  f"v_max3_f32 v{M2}, v{S1+3}, v{S2}, v{S2+1}\nv_max3_f32 v{M}, v{M}, v{S2+2}, v{S2+3}",
                  f"v_max_f32 v{M}, v{M}, v{M2}\n" + zlo[4]])
    r2 = wo_rd(4) + wo_rd(5)
    PM = KA
    OA = KXA + 12
    CC = f"s[{S_C2}:{S_C2+1}]"
    def pkf(r): return f"v_pk_fma_f32 {vr(r,2)}, {vr(r,2)}, {CC}, {vr(M,2)} op_sel_hi:[1,1,0] neg_lo:[0,0,1] neg_hi:[0,0,1]"
    A(f"""
    {zlo[5]}
    {zlo[6]}
    {zlo[7]}
    {zhi[0]}
    {zhi[1]}
    {zhi[2]}
    v_max3_f32 v{M}, v{M}, v{S0}, v{S0+1}
    v_mov_b32 v{M2}, v{M}
    {zhi[3]}
    {zhi[4]}
    v_permlane16_swap_b32 v{M}, v{M2}
    v_max_f32 v{M}, v{M}, v{M2}
    v_mov_b32 v{M2}, v{M}
    {zhi[5]}
    s_add_u32 s{S_KVOFF}, s{S_KVOFF}, {32*16384}
    v_permlane32_swap_b32 v{M}, v{M2}
    v_max_f32 v{M}, v{M}, v{M2}
    v_mul_f32 v{M}, s{S_C}, v{M}
    {pkf(S0)}
    {pkf(S1)}
    {pkf(S1+2)}
    v_exp_f32 v{S0}, v{S0}
    v_exp_f32 v{S0+1}, v{S0+1}
    {pkf(S2)}
    {pkf(S2+2)}
    v_cvt_pk_bf16_f32 v{PM}, v{S0}, v{S0+1}
    v_cvt_pk_bf16_f32 v{PM+1}, v{S0}, v{S0+1}
    v_exp_f32 v{S1}, v{S1}
    v_exp_f32 v{S1+1}, v{S1+1}
    v_mfma_f32_16x16x16_bf16 {vr(OA,4)}, {vr(VM,2)}, {vr(PM,2)}, 0
    {r2[0]}
    v_exp_f32 v{S1+2}, v{S1+2}
    v_exp_f32 v{S1+3}, v{S1+3}
    v_pk_add_f32 {vr(LS,2)}, {vr(S0,2)}, {vr(S1,2)}
    v_mfma_f32_16x16x16_bf16 {vr(S0,4)}, {vr(VM+2,2)}, {vr(PM,2)}, 0
    {r2[1]}
    v_exp_f32 v{S2}, v{S2}
    v_exp_f32 v{S2+1}, v{S2+1}
    v_exp_f32 v{S2+2}, v{S2+2}
    v_exp_f32 v{S2+3}, v{S2+3}
    v_pk_add_f32 {vr(M,2)}, {vr(S1+2,2)}, {vr(S2,2)}
    v_cvt_pk_bf16_f32 v{S1}, v{S1}, v{S1+1}
    v_cvt_pk_bf16_f32 v{S1+1}, v{S1+2}, v{S1+3}
    v_cvt_pk_bf16_f32 v{S1+2}, v{S2}, v{S2+1}
    v_cvt_pk_bf16_f32 v{S1+3}, v{S2+2}, v{S2+3}
    v_pk_add_f32 {vr(LS,2)}, {vr(LS,2)}, {vr(S2+2,2)}
    s_waitcnt vmcnt(5)
    v_mfma_f32_16x16x32_bf16 {vr(OA,4)}, {vr(VX,4)}, {vr(S1,4)}, {vr(OA,4)}
    {r2[2]}
    v_pk_add_f32 {vr(LS,2)}, {vr(LS,2)}, {vr(M,2)}
    v_mfma_f32_16x16x32_bf16 {vr(S0,4)}, {vr(VX+4,4)}, {vr(S1,4)}, {vr(S0,4)}
    {r2[3]}
    v_add_f32 v{LS}, v{LS}, v{L2}
    v_mov_b32 v{L2}, v{LS}
    v_add_u32 v{S2}, {LDS_O}, v{V_LANE16}
    s_xor_b32 s{S_KXN}, s{S_KXN}, 0x2000
    v_permlane16_swap_b32 v{LS}, v{L2}
    v_add_f32 v{LS}, v{LS}, v{L2}
    v_mov_b32 v{L2}, v{LS}
    v_cndmask_b32 v{PM}, v{OA+1}, v{OA}, s[{S_LO}:{S_LO+1}]
    v_cndmask_b32 v{PM+2}, v{OA+3}, v{OA+2}, s[{S_LO}:{S_LO+1}]
    v_permlane32_swap_b32 v{LS}, v{L2}
    v_add_f32 v{LS}, v{LS}, v{L2}
    v_rcp_f32 v{LS}, v{LS}
    v_cndmask_b32 v{PM+1}, v{S0+1}, v{S0}, s[{S_LO}:{S_LO+1}]
    v_cndmask_b32 v{PM+3}, v{S0+3}, v{S0+2}, s[{S_LO}:{S_LO+1}]
    v_pk_mul_f32 {vr(PM,2)}, {vr(PM,2)}, {vr(LS,2)} op_sel_hi:[1,0]
    v_pk_mul_f32 {vr(PM+2,2)}, {vr(PM+2,2)}, {vr(LS,2)} op_sel_hi:[1,0]
    v_cvt_pk_bf16_f32 v{S1}, v{PM}, v{PM+1}
    v_cvt_pk_bf16_f32 v{S1+1}, v{PM+2}, v{PM+3}
    ds_write_b64 v{V_OW}, {vr(S1,2)}
    v_mov_b64 {vr(OA,2)}, 0
    v_mov_b64 {vr(OA+2,2)}, 0
    s_add_u32 s{S_T0}, s{S_PARTOFF}, 8192
    s_waitcnt lgkmcnt(0)
    s_barrier
    """)
    stamp(6)
    OF = VX
    A(f"ds_read_b128 {vr(OF,4)}, v{S2}\nds_read_b128 {vr(OF+4,4)}, v{S2} offset:1024")
    for x in wo_rd(6) + wo_rd(7): A(x)
    PK = QA
    def fold_pair(tp):
        a = wa(2 * tp)
        d0 = PK + 4 * (tp // 2) + tp % 2
        L = [f"v_pk_add_f32 {vr(a,2)}, {vr(a,2)}, {vr(a+2,2)}", f"v_pk_add_f32 {vr(a+4,2)}, {vr(a+4,2)}, {vr(a+6,2)}",
             f"v_cvt_pk_bf16_f32 v{d0}, v{a}, v{a+4}", f"v_cvt_pk_bf16_f32 v{d0+2}, v{a+1}, v{a+5}"]
        if tp % 2 == 0:
            L += [f"v_bfi_b32 v{d0}, 1, s{S_PHASE}, v{d0}"]
        return L
    pend = []
    outq = ["o0", "o1", 6, 6, 7, 7]
    rdl = [(f, hh) for f in range(8, 16) for hh in range(2)]
    for i in range(16):
        Tt, ups = order[i]
        need = [i, "o0" if ups == 0 else "o1"]
        idx = [k for k, v in enumerate(outq) if v in need]
        if idx:
            last = max(idx)
            A(f"s_waitcnt lgkmcnt({len(outq) - 1 - last})")
            outq = outq[last + 1:]
        A(smf_s(wa(Tt), OF + 4 * ups, vr(bufs[i % 8], 8)))
        nrd = 2 if i < wo2 else 1
        for _ in range(nrd):
            if rdl and rdl[0][0] - 8 <= i:
                f, hh = rdl.pop(0)
                A(wo_rd(f)[hh]); outq.append(f)
                assert len(outq) <= 15
        if i % 4 == 1 and i >= 5: pend += fold_pair(i // 4 - 1)
        if pend: A(pend.pop(0))
        if i == 13:
            assert not [x for x in pend if f"v{PK+1}," in x or f"v{PK+3}," in x]
            mstore([f"buffer_store_dwordx4 {vr(PK,4)}, v{V_PST}, {WS}, s{S_PARTOFF} offen"])
    assert not rdl
    for x in pend: A(x)
    A("s_nop 3")
    for x in fold_pair(3): A(x)
    mstore([f"buffer_store_dwordx4 {vr(PK+4,4)}, v{V_PST}, {WS}, s{S_T0} offen"])
    A(f"""
    s_add_u32 s{S_MEMOFF}, s{S_MEMOFF}, 8192
    s_and_b32 s{S_MEMOFF}, s{S_MEMOFF}, {0xffff7fff:#x}
    s_xor_b32 s{S_T2}, s{S_MEMOFF}, 0x4000
    """)
    stamp(7)
    A(f"""
    s_add_u32 s{S_KMOFF}, s{S_KMOFF}, {32*2048}
    s_add_u32 s{S_VMOFF}, s{S_VMOFF}, {32*4096}
    s_add_u32 s{S_STEP}, s{S_STEP}, 1
    """)
    A(f"s_cmp_lg_u32 s{S_W}, 0\ns_cbranch_scc1 {L_next}")
    R = 72; SEL = 104; D = 108; TT = 112
    A(f"""
    s_mov_b32 s{S_EXEC}, 0x00030003
    s_mov_b32 s{S_EXEC+1}, 0x00030003
    s_lshl_b32 s{S_T0}, s{S_H}, 13
    s_add_u32 s{S_T0}, s{S_T0}, s{S_PARTOFF}
    s_add_u32 s{S_T1}, s{S_T0}, 4096
    s_mov_b32 s{S_CNT}, 0
    """)
    A(f"v_and_b32 v{TT}, 16, v{V_LANE16}\nv_mov_b32 v{TT+1}, 0x3f80\nv_lshlrev_b32 v{TT}, v{TT}, v{TT+1}\nv_mov_b64 {vr(TT+4,2)}, -1")
    for r in range(4):
        A(f"v_cndmask_b32 v{SEL+r}, 0, v{TT}, s[{S_EXEC}:{S_EXEC+1}]")
        if r < 3: A(f"s_lshl_b64 s[{S_EXEC}:{S_EXEC+1}], s[{S_EXEC}:{S_EXEC+1}], 2")
    for i in range(4, 12): A(f"v_mov_b64 {vr(QA+2*i,2)}, 0")
    for i in range(4): A(f"v_mov_b64 {vr(QA+2*i,2)}, 0")
    warm(rw, TT)
    A("s_mov_b64 vcc, -1")
    A.label(L_red)
    A("s_mov_b64 exec, vcc")
    for jj in range(8):
        A(f"buffer_load_dwordx4 {vr(R+4*jj,4)}, v{V_LANE16}, {WS}, s{S_T0 + jj//4} offen offset:{(jj%4)*1024} sc1")
    A(f"s_mov_b64 exec, -1\ns_add_u32 s{S_CNT}, s{S_CNT}, 1")
    warm(rw2, TT)
    for jj in range(8):
        A(f"s_waitcnt vmcnt({7-jj})")
        A(mf_s(D, SEL, R + 4 * jj, "0" if jj == 0 else vr(D, 4)))
        if jj % 2 == 1:
            A(f"v_bitop3_b32 v{TT + jj//2}, v{R+4*jj-4}, v{R+4*jj}, s{S_PHASE} bitop3:0x7e")
    A(f"""
    v_or3_b32 v{TT}, v{TT}, v{TT+1}, v{TT+2}
    v_or_b32 v{TT}, v{TT}, v{TT+3}
    v_and_b32 v{TT}, 1, v{TT}
    v_cmp_ne_u32 vcc, 0, v{TT}
    s_cmp_gt_u32 s{S_CNT}, {timeout}
    s_cbranch_scc1 {L_rok}
    s_cbranch_vccnz {L_red}
    """)
    A.label(L_rok)
    stamp(8)
    A(f"""
    s_mov_b64 exec, 0xffffffff
    v_cvt_pk_bf16_f32 v{D}, v{D}, v{D+1}
    v_cvt_pk_bf16_f32 v{D+1}, v{D+2}, v{D+3}
    v_min_u32 v{D}, s{S_SENT}, v{D}
    v_min_u32 v{D+1}, s{S_SENT}, v{D+1}
    """)
    mstore([f"buffer_store_dwordx2 {vr(D,2)}, v{V_MST}, {WS}, s{S_MEMOFF} offen",
            f"buffer_store_dwordx2 {vr(TT+4,2)}, v{V_MST}, {WS}, s{S_T2} offen"])
    A("s_mov_b64 exec, -1")
    warm(pr)
    L_n2 = A.newlabel("CH_n2")
    A(f"s_branch {L_n2}")
    A.label(L_next)
    A("s_nop 1")
    if kv_wait: kv_wait(A, 1)
    for i in range(4, 12): A(f"v_mov_b64 {vr(QA+2*i,2)}, 0")
    for i in range(4): A(f"v_mov_b64 {vr(QA+2*i,2)}, 0")
    warm(pw0)
    A.label(L_n2)
    if stamps and trace:
        stamp(9)
        A("s_waitcnt lgkmcnt(0)")
        A(f"s_sub_u32 s{S_T0}, s100, s94")
        if trace[0] == 8: A(f"s_lshl_b32 s{S_T0}, s{S_CNT}, 4\ns_add_u32 s{S_T0}, s{S_T0}, s{S_CNT2}")
        A(f"s_mov_b32 m0, s{S_STEP}\ns_nop 0\nv_writelane_b32 v0, s{S_T0}, m0")
    elif stamps:
        stamp(9)
        A("s_waitcnt lgkmcnt(0)")
        for i in range(1, NST):
            A(f"s_sub_u32 s{S_T0}, s{82+2*i}, s{82+2*(i-1)}")
            A(f"v_writelane_b32 v0, s{S_T0}, {i}")
        A(f"v_writelane_b32 v0, s{S_CNT}, 10")
        A(f"v_writelane_b32 v0, s{S_CNT2}, 11")
    A(f"""
    s_xor_b32 s{S_PARTOFF}, s{S_PARTOFF}, {0x40000}
    s_bfe_i32 s{S_PHASE}, s{S_STEP}, 0x10001
    s_branch {L_step}
    """)
    A.label(L_done)
    if prog: prog(A, 1)
    if timing:
        A(f"""
        s_memtime s[{S_TM+2}:{S_TM+3}]
        s_waitcnt lgkmcnt(0)
        s_sub_u32 s{S_TM+2}, s{S_TM+2}, s{S_TM}
        """)

def tk(path, **kw):
    C1.chain_loop = chain_loop8
    open(path, "w").write(C1.test_kernel(**kw))

if __name__ == "__main__":
    V = [dict(rw=60, pr=20, pw0=200, pw=40, rw2=40), dict(rw=40, pr=20, pw0=180, pw=40, rw2=40), dict(rw=20, pr=10, pw0=160, pw=40, rw2=40), dict(rw=50, pr=30, pw0=200, pw=30, rw2=30)]
    for i, v in enumerate(V):
        tk(f"c8_{i}.s", **v)
    for a, b in [(0, 9), (0, 2), (2, 5), (5, 6), (6, 7), (7, 9)]:
        tk(f"c8_tr{a}{b}.s", stamps=True, trace=(a, b), **V[0])
```

```python
from dsl import *
from layout import *
from gemm import *

KA = dict(x=0, mem0=8, wq=16, wk=24, wv=32, wo=40, seg=48, bx=56, win=64, wsp=72, bsp=80, wout=88, out=96, dbg=104, ws=112)

def load_ptr(A, dst, name):
    A(f"s_load_dwordx2 s[{dst}:{dst+1}], s[0:1], {KA[name]}")

def prep_kernel(A):
    A.raw(kernel_head("prep_kernel"))
    A("s_cmp_ge_u32 s2, 160\ns_cbranch_scc1 L_prep_exit")
    load_ptr(A, 4, "x"); load_ptr(A, 6, "ws"); load_ptr(A, 20, "mem0")
    A("s_waitcnt lgkmcnt(0)")
    srd(A, 8, 4, 2 << 20); srd(A, 12, 6, WS_SIZE); srd(A, 16, 20, 8192)
    A("s_cmp_ge_u32 s2, 128\ns_cbranch_scc1 L_prep_fill")
    A("""
    v_lshrrev_b32 v1, 4, v0
    v_and_b32 v2, 15, v0               ; l16
    s_lshl_b32 s3, s2, 14              ; tile*16*1024
    v_lshlrev_b32 v3, 10, v1
    v_lshl_add_u32 v3, v2, 4, v3       ; token*1024 + l16*16
    buffer_load_dwordx4 v[8:11], v3, s[8:11], s3 offen
    buffer_load_dwordx4 v[12:15], v3, s[8:11], s3 offen offset:256
    buffer_load_dwordx4 v[16:19], v3, s[8:11], s3 offen offset:512
    buffer_load_dwordx4 v[20:23], v3, s[8:11], s3 offen offset:768
    s_mov_b32 s22, 0xffff0000
    s_waitcnt vmcnt(0)
    """)
    for i in range(16):
        A(f"v_lshlrev_b32 v{32+2*i}, 16, v{8+i}")
        A(f"v_and_b32 v{33+2*i}, s22, v{8+i}")
    A("v_add_f32 v4, v32, v33")
    for i in range(2, 32): A(f"v_add_f32 v4, v4, v{32+i}")
    def red16(r):
        for ctl in ("quad_perm:[1,0,3,2]", "quad_perm:[2,3,0,1]", "row_half_mirror", "row_mirror"):
            A("s_nop 1")
            A(f"v_add_f32_dpp v{r}, v{r}, v{r} {ctl} row_mask:0xf bank_mask:0xf")
    red16(4)
    A("v_mul_f32 v4, 0x3b000000, v4")
    for i in range(32): A(f"v_sub_f32 v{32+i}, v{32+i}, v4")
    A("v_mul_f32 v5, v32, v32")
    for i in range(1, 32): A(f"v_fmac_f32 v5, v{32+i}, v{32+i}")
    red16(5)
    A("""
    v_mov_b32 v6, 0x3727c5ac
    v_fmac_f32 v6, 0x3b000000, v5
    v_rsq_f32 v6, v6
    s_nop 0
    """)
    for i in range(16):
        A(f"v_mul_f32 v{32+2*i}, v{32+2*i}, v6")
        A(f"v_mul_f32 v{33+2*i}, v{33+2*i}, v6")
        A(f"v_cvt_pk_bf16_f32 v{8+i}, v{32+2*i}, v{33+2*i}")
    A(f"""
    v_lshrrev_b32 v4, 2, v2
    v_lshlrev_b32 v4, 10, v4
    v_and_b32 v5, 3, v2
    v_lshl_add_u32 v4, v5, 8, v4
    v_lshl_add_u32 v4, v1, 4, v4
    s_add_u32 s3, s3, {WS_XN}
    s_add_u32 s22, s3, 4096
    s_add_u32 s23, s3, 8192
    s_add_u32 s24, s3, 12288
    buffer_store_dwordx4 v[8:11], v4, s[12:15], s3 offen
    buffer_store_dwordx4 v[12:15], v4, s[12:15], s22 offen
    buffer_store_dwordx4 v[16:19], v4, s[12:15], s23 offen
    buffer_store_dwordx4 v[20:23], v4, s[12:15], s24 offen
    s_branch L_prep_exit
    """)
    A.label("L_prep_fill")
    A(f"""
    s_sub_u32 s3, s2, 128
    v_lshlrev_b32 v1, 4, v0
    v_mov_b32 v4, -1
    v_mov_b32 v5, -1
    v_mov_b32 v6, -1
    v_mov_b32 v7, -1
    s_lshl_b32 s22, s3, 14
    s_add_u32 s23, s22, {WS_MEMF + 8192}
    s_add_u32 s22, s22, {WS_PART}
    """)
    for i in range(4):
        A(f"buffer_store_dwordx4 v[4:7], v1, s[12:15], s22 offen")
        A(f"buffer_store_dwordx4 v[4:7], v1, s[12:15], s23 offen")
        A("s_add_u32 s22, s22, 4096\ns_add_u32 s23, s23, 4096")
    A("s_cmp_lg_u32 s3, 0\ns_cbranch_scc1 L_prep_exit")
    A(f"""
    v_mov_b32 v4, 0
    v_mov_b32 v5, 0
    v_mov_b32 v6, 0
    v_mov_b32 v7, 0
    s_mov_b32 s22, {WS_FLAG}
    """)
    for i in range(16):
        A("buffer_store_dwordx4 v[4:7], v1, s[12:15], s22 offen\ns_add_u32 s22, s22, 4096")
    for it in range(4):
        A(f"""
        v_add_u32 v2, {it*256}, v0
        v_and_b32 v3, 1, v2                 ; th
        v_bfe_u32 v8, v2, 1, 2              ; ga
        v_bfe_u32 v9, v2, 5, 2
        v_bfe_u32 v10, v2, 3, 1
        v_lshl_add_u32 v9, v9, 1, v10       ; row
        v_bfe_u32 v10, v2, 4, 1             ; hf
        v_lshrrev_b32 v11, 7, v2            ; u
        v_lshlrev_b32 v12, 10, v9
        v_lshl_add_u32 v12, v11, 7, v12
        v_lshl_add_u32 v12, v8, 5, v12
        v_lshl_add_u32 v12, v3, 4, v12
        v_lshl_add_u32 v12, v10, 3, v12
        buffer_load_dwordx2 v[14:15], v12, s[16:19], 0 offen
        v_lshlrev_b32 v2, 3, v2
        s_mov_b32 s22, {WS_MEMF}
        s_mov_b32 s23, 0xfffffffe
        s_waitcnt vmcnt(0)
        v_min_u32 v14, s23, v14
        v_min_u32 v15, s23, v15
        buffer_store_dwordx2 v[14:15], v2, s[12:15], s22 offen
        """)
    A.label("L_prep_exit")
    A("s_waitcnt vmcnt(0)\ns_endpgm")
    return kernel_desc("prep_kernel", 64, 32, 64)

def ln_tile(A, s_tile, sx, sw, st=""):
    A(f"""
    v_lshrrev_b32 v1, 4, v0
    v_and_b32 v2, 15, v0
    s_lshl_b32 s25, s{s_tile}, 14
    v_lshlrev_b32 v3, 10, v1
    v_lshl_add_u32 v3, v2, 4, v3
    buffer_load_dwordx4 v[8:11], v3, s[{sx}:{sx+3}], s25 offen
    buffer_load_dwordx4 v[12:15], v3, s[{sx}:{sx+3}], s25 offen offset:256
    buffer_load_dwordx4 v[16:19], v3, s[{sx}:{sx+3}], s25 offen offset:512
    buffer_load_dwordx4 v[20:23], v3, s[{sx}:{sx+3}], s25 offen offset:768
    s_mov_b32 s22, 0xffff0000
    s_waitcnt vmcnt(0)
    """)
    for i in range(16):
        A(f"v_lshlrev_b32 v{32+2*i}, 16, v{8+i}")
        A(f"v_and_b32 v{33+2*i}, s22, v{8+i}")
    A("v_add_f32 v4, v32, v33")
    for i in range(2, 32): A(f"v_add_f32 v4, v4, v{32+i}")
    def red16(r):
        for ctl in ("quad_perm:[1,0,3,2]", "quad_perm:[2,3,0,1]", "row_half_mirror", "row_mirror"):
            A("s_nop 1")
            A(f"v_add_f32_dpp v{r}, v{r}, v{r} {ctl} row_mask:0xf bank_mask:0xf")
    red16(4)
    A("v_mul_f32 v4, 0x3b000000, v4")
    for i in range(32): A(f"v_sub_f32 v{32+i}, v{32+i}, v4")
    A("v_mul_f32 v5, v32, v32")
    for i in range(1, 32): A(f"v_fmac_f32 v5, v{32+i}, v{32+i}")
    red16(5)
    A("""
    v_mov_b32 v6, 0x3727c5ac
    v_fmac_f32 v6, 0x3b000000, v5
    v_rsq_f32 v6, v6
    s_nop 0
    """)
    for i in range(16):
        A(f"v_mul_f32 v{32+2*i}, v{32+2*i}, v6")
        A(f"v_mul_f32 v{33+2*i}, v{33+2*i}, v6")
        A(f"v_cvt_pk_bf16_f32 v{8+i}, v{32+2*i}, v{33+2*i}")
    A(f"""
    v_lshrrev_b32 v4, 2, v2
    v_lshlrev_b32 v4, 10, v4
    v_and_b32 v5, 3, v2
    v_lshl_add_u32 v4, v5, 8, v4
    v_lshl_add_u32 v4, v1, 4, v4
    s_add_u32 s25, s25, {WS_XN}
    s_add_u32 s22, s25, 4096
    s_add_u32 s23, s25, 8192
    s_add_u32 s24, s25, 12288
    buffer_store_dwordx4 v[8:11], v4, s[{sw}:{sw+3}], s25 offen {st}
    buffer_store_dwordx4 v[12:15], v4, s[{sw}:{sw+3}], s22 offen {st}
    buffer_store_dwordx4 v[16:19], v4, s[{sw}:{sw+3}], s23 offen {st}
    buffer_store_dwordx4 v[20:23], v4, s[{sw}:{sw+3}], s24 offen {st}
    s_nop 1
    """)

def wave_id(A):
    A(f"v_lshrrev_b32 v{G_VT}, 6, v0\ns_nop 0\nv_readfirstlane_b32 s{G_SWV}, v{G_VT}\ns_nop 3")

def acc_pack(A, dst, a0, a1, t):
    for r in range(4):
        A(f"v_accvgpr_read_b32 v{t+r}, a{a0+r}")
        A(f"v_accvgpr_read_b32 v{t+4+r}, a{a1+r}")
    A(f"v_cvt_pk_bf16_f32 v{dst}, v{t}, v{t+1}")
    A(f"v_cvt_pk_bf16_f32 v{dst+1}, v{t+2}, v{t+3}")
    A(f"v_cvt_pk_bf16_f32 v{dst+2}, v{t+4}, v{t+5}")
    A(f"v_cvt_pk_bf16_f32 v{dst+3}, v{t+6}, v{t+7}")

C_QK = GemmCfg(np=4, nw=8, wp=4, ww=1, orient="WP")
C_V = GemmCfg(np=4, nw=8, wp=4, ww=1, orient="PW")
S_RB, S_HD = 52, 53

def qkv_tile(A, kind, st=""):
    c = C_V if kind == "V" else C_QK
    c.dma_v = C_QK.dma_v
    A(f"""
    s_lshl_b32 s{G_SPOFF}, s{S_RB}, 2
    s_add_u32 s{G_SPOFF}, s{G_SPOFF}, s{G_SWV}
    s_lshl_b32 s{G_SPOFF}, s{G_SPOFF}, 16
    s_add_u32 s{G_SPOFF}, s{G_SPOFF}, {WS_XN}
    s_lshl_b32 s{G_SWOFF}, s{S_HD}, 8
    """)
    vq, lq = gemm_mainloop(A, c, 16, 16384, 8192)
    A(f"""
    s_lshl_b32 s{G_ST}, s{S_RB}, 2
    s_add_u32 s{G_ST}, s{G_ST}, s{G_SWV}
    s_lshl_b32 s{G_ST}, s{G_ST}, 6              ; seg0*32
    s_add_u32 s{G_ST}, s{G_ST}, s{S_HD}
    """)
    if kind == "Q":
        A(f"s_lshl_b32 s{G_ST}, s{G_ST}, 13\ns_add_u32 s{G_ST}, s{G_ST}, {WS_Q}")
        segstride = 32 * 8192
    else:
        A(f"s_lshl_b32 s{G_ST}, s{G_ST}, 14\ns_add_u32 s{G_ST}, s{G_ST}, {WS_KV + (8192 if kind == 'V' else 0)}")
        segstride = 32 * 16384
    A("s_nop 7")
    E = G_VP
    n = 0
    if kind in "KQ":
        for i in range(4):
            for kp in range(4):
                d = E + (n % 4) * 12; n += 1
                acc_pack(A, d, acc(c, i, 2 * kp), acc(c, i, 2 * kp + 1), d + 4)
                off = (i // 2) * segstride + (i % 2) * 4096 + kp * 1024
                A(f"s_add_u32 s{G_ST+1}, s{G_ST}, {off - off % 4096}")
                A(f"buffer_store_dwordx4 {vr(d,4)}, v{G_VL16}, s[{G_SP}:{G_SP+3}], s{G_ST+1} offen offset:{off % 4096} {st}")
    else:
        for sg in range(2):
            for j in range(8):
                d = E + (n % 4) * 12; n += 1
                acc_pack(A, d, acc(c, 2 * sg, j), acc(c, 2 * sg + 1, j), d + 4)
                off = sg * segstride + (j // 2) * 2048 + (j % 2) * 128
                A(f"s_add_u32 s{G_ST+1}, s{G_ST}, {off - off % 4096}")
                A(f"buffer_store_dwordx4 {vr(d,4)}, v{G_VE}, s[{G_SP}:{G_SP+3}], s{G_ST+1} offen offset:{off % 4096} {st}")

def qkv_epi_addr(A):
    A(f"""
    v_and_b32 v{G_VT}, 1, v0
    v_lshlrev_b32 v{G_VE}, 10, v{G_VT}
    v_bfe_u32 v{G_VT}, v0, 4, 2
    v_lshl_add_u32 v{G_VE}, v{G_VT}, 8, v{G_VE}
    v_bfe_u32 v{G_VT}, v0, 1, 3
    v_lshl_add_u32 v{G_VE}, v{G_VT}, 4, v{G_VE}
    """)

def qkv_kernel(A):
    A.raw(kernel_head("qkv_kernel"))
    A("s_cmp_ge_u32 s2, 768\ns_cbranch_scc1 L_qkv_exit")
    load_ptr(A, 4, "ws")
    A("s_load_dwordx4 s[16:19], s[0:1], 16\ns_load_dwordx2 s[20:21], s[0:1], 32")
    wave_id(A)
    gemm_setup_addr(A, C_QK, 8192)
    qkv_epi_addr(A)
    A(f"""
    s_and_b32 s{S_HD}, s2, 31
    s_bfe_u32 s{S_RB}, s2, 0x30005
    s_lshr_b32 s3, s2, 8
    s_waitcnt lgkmcnt(0)
    """)
    srd(A, G_SP, 4, WS_SIZE)
    A("s_cmp_eq_u32 s3, 1\ns_cbranch_scc1 L_qkv_V\ns_cmp_eq_u32 s3, 2\ns_cbranch_scc1 L_qkv_Q")
    srd(A, G_SW, 18, 4 << 20)
    qkv_tile(A, "K")
    A("s_branch L_qkv_exit")
    A.label("L_qkv_V")
    srd(A, G_SW, 20, 4 << 20)
    qkv_tile(A, "V")
    A("s_branch L_qkv_exit")
    A.label("L_qkv_Q")
    srd(A, G_SW, 16, 4 << 20)
    qkv_tile(A, "Q")
    A.label("L_qkv_exit")
    A("s_waitcnt vmcnt(0)\ns_endpgm")
    return kernel_desc("qkv_kernel", 256, 64, 128)


import math, struct
def f32(x): return struct.unpack("<I", struct.pack("<f", x))[0]
GC0 = -2.0 * 0.7978845608028654 * math.log2(math.e)
GC1 = GC0 * 0.044715
S_GC0, S_GC1 = 54, 55
def gelu_consts(A):
    A(f"s_mov_b32 s{S_GC0}, {f32(GC0):#x}\ns_mov_b32 s{S_GC1}, {f32(GC1):#x}")
def gelu_n(A, regs, t):
    n = len(regs)
    A(f"v_mov_b32 v{t+n}, s{S_GC0}")
    for i, r in enumerate(regs): A(f"v_mul_f32 v{t+i}, v{r}, v{r}")
    for i, r in enumerate(regs): A(f"v_fma_f32 v{t+i}, v{t+i}, s{S_GC1}, v{t+n}")
    for i, r in enumerate(regs): A(f"v_mul_f32 v{t+i}, v{t+i}, v{r}")
    for i, r in enumerate(regs): A(f"v_exp_f32 v{t+i}, v{t+i}")
    for i, r in enumerate(regs): A(f"v_add_f32 v{t+i}, 1.0, v{t+i}")
    for i, r in enumerate(regs): A(f"v_rcp_f32 v{t+i}, v{t+i}")
    A("s_nop 0")
    for i, r in enumerate(regs): A(f"v_mul_f32 v{r}, v{r}, v{t+i}")

C_Z1 = GemmCfg(np=4, nw=8, wp=4, ww=1, orient="WP")
def z1_tile(A, st=""):
    c = C_Z1
    A(f"""
    s_lshl_b32 s{G_SPOFF}, s{S_RB}, 2
    s_add_u32 s{G_SPOFF}, s{G_SPOFF}, s{G_SWV}
    s_lshl_b32 s{G_SPOFF}, s{G_SPOFF}, 16
    s_add_u32 s{G_SPOFF}, s{G_SPOFF}, {WS_XN}
    s_lshl_b32 s{G_SWOFF}, s{S_HD}, 8
    """)
    gemm_mainloop(A, c, 16, 16384, 3584)
    A(f"""
    s_lshl_b32 s{G_ST}, s{S_RB}, 2
    s_add_u32 s{G_ST}, s{G_ST}, s{G_SWV}
    s_mul_i32 s{G_ST}, s{G_ST}, {4*28672}
    s_lshl_b32 s{G_ST+1}, s{S_HD}, 12
    s_add_u32 s{G_ST}, s{G_ST}, s{G_ST+1}
    s_add_u32 s{G_ST}, s{G_ST}, {WS_Z1}
    s_nop 7
    """)
    E = G_VP; n = 0
    for i in range(4):
        for kp in range(4):
            b = E + (n % 2) * 24; n += 1
            for r in range(4):
                A(f"v_accvgpr_read_b32 v{b+r}, a{acc(c,i,2*kp)+r}")
                A(f"v_accvgpr_read_b32 v{b+4+r}, a{acc(c,i,2*kp+1)+r}")
            gelu_n(A, list(range(b, b + 8)), b + 8)
            for q in range(4): A(f"v_cvt_pk_bf16_f32 v{b+20+q}, v{b+2*q}, v{b+2*q+1}")
            A(f"s_add_u32 s{G_ST+1}, s{G_ST}, {i*28672}")
            A(f"buffer_store_dwordx4 {vr(b+20,4)}, v{G_VL16}, s[{G_SP}:{G_SP+3}], s{G_ST+1} offen offset:{kp*1024} {st}")

C_Z2 = GemmCfg(np=4, nw=14, wp=1, ww=4, orient="PW", BK=32, NS=2, early=False, RW=4, PD=2)
Z2_LDS_STAT = 2 * 57344
def z2_tile(A, st=""):
    c = C_Z2
    A(f"""
    s_lshl_b32 s{G_SPOFF}, s{S_RB}, 16
    s_add_u32 s{G_SPOFF}, s{G_SPOFF}, {WS_XN}
    s_mov_b32 s{G_SWOFF}, 1792
    """)
    gemm_mainloop(A, c, 16, 16384, 3584)
    A("s_nop 7")
    SUM = 48; SQ = 64; X = 80; T = 96
    for j in range(14):
        for i in range(4):
            for r in range(4): A(f"v_accvgpr_read_b32 v{X+i*4+r}, a{acc(c,i,j)+r}")
        gelu_n(A, list(range(X, X + 16)), T)
        for q in range(16):
            if j == 0:
                A(f"v_mov_b32 v{SUM+q}, v{X+q}")
                A(f"v_mul_f32 v{SQ+q}, v{X+q}, v{X+q}")
            else:
                A(f"v_add_f32 v{SUM+q}, v{SUM+q}, v{X+q}")
                A(f"v_fmac_f32 v{SQ+q}, v{X+q}, v{X+q}")
            A(f"v_accvgpr_write_b32 a{acc(c,q//4,j)+q%4}, v{X+q}")
    for ctl in ("quad_perm:[1,0,3,2]", "quad_perm:[2,3,0,1]", "row_half_mirror", "row_mirror"):
        for q in range(32):
            A(f"v_add_f32_dpp v{SUM+q}, v{SUM+q}, v{SUM+q} {ctl} row_mask:0xf bank_mask:0xf")
    A(f"v_and_b32 v{T}, 15, v0")
    A(f"v_mov_b32 v{X}, v{SUM}\nv_mov_b32 v{X+1}, v{SQ}")
    for q in range(1, 16):
        A(f"v_cmp_eq_u32 vcc, {q}, v{T}")
        A("s_nop 1")
        A(f"v_cndmask_b32 v{X}, v{X}, v{SUM+q}, vcc")
        A(f"v_cndmask_b32 v{X+1}, v{X+1}, v{SQ+q}, vcc")
    A(f"""
    v_lshlrev_b32 v{T}, 3, v0
    v_add_u32 v{T}, {Z2_LDS_STAT}, v{T}
    ds_write_b64 v{T}, {vr(X,2)}
    v_lshrrev_b32 v{T+1}, 1, v{G_VL16}
    v_add_u32 v{T+1}, {Z2_LDS_STAT}, v{T+1}
    s_waitcnt lgkmcnt(0)
    s_barrier
    ds_read_b64 {vr(X,2)}, v{T+1}
    ds_read_b64 {vr(X+2,2)}, v{T+1} offset:512
    ds_read_b64 {vr(X+4,2)}, v{T+1} offset:1024
    ds_read_b64 {vr(X+6,2)}, v{T+1} offset:1536
    s_mov_b32 s{G_ST}, {f32(1.0/896):#x}
    s_waitcnt lgkmcnt(0)
    v_add_f32 v{X}, v{X}, v{X+2}
    v_add_f32 v{X+1}, v{X+1}, v{X+3}
    v_add_f32 v{X+4}, v{X+4}, v{X+6}
    v_add_f32 v{X+5}, v{X+5}, v{X+7}
    v_add_f32 v{X}, v{X}, v{X+4}
    v_add_f32 v{X+1}, v{X+1}, v{X+5}
    v_mul_f32 v{X}, s{G_ST}, v{X}            ; mean
    v_mul_f32 v{X+1}, s{G_ST}, v{X+1}        ; E[x2]
    v_fma_f32 v{X+1}, -v{X}, v{X}, v{X+1}    ; var
    v_max_f32 v{X+1}, 0, v{X+1}
    v_add_f32 v{X+1}, 0x3727c5ac, v{X+1}
    v_rsq_f32 v{X+1}, v{X+1}
    s_nop 0
    v_mul_f32 v{X}, v{X}, v{X+1}             ; mean*rstd
    s_nop 1
    """)
    for q in range(16):
        A(f"v_mov_b32_dpp v{SUM+q}, v{X} row_newbcast:{q} row_mask:0xf bank_mask:0xf")
        A(f"v_mov_b32_dpp v{SQ+q}, v{X+1} row_newbcast:{q} row_mask:0xf bank_mask:0xf")
    A(f"""
    s_mul_i32 s{G_ST}, s{G_SWV}, {14*65536}
    s_lshl_b32 s{G_ST+1}, s{S_RB}, 11
    s_add_u32 s{G_ST}, s{G_ST}, s{G_ST+1}
    s_add_u32 s{G_ST}, s{G_ST}, {WS_Z2}
    """)
    n = 0
    for j in range(14):
        A(f"s_add_u32 s{G_ST+1}, s{G_ST}, {j*65536}")
        for ip in range(2):
            b = X + (n % 3) * 12; n += 1
            for e in range(8):
                q = ip * 8 + e
                A(f"v_accvgpr_read_b32 v{b+e}, a{acc(c,q//4,j)+q%4}")
            for e in range(8):
                q = ip * 8 + e
                A(f"v_fma_f32 v{b+e}, v{b+e}, v{SQ+q}, -v{SUM+q}")
            for q in range(4): A(f"v_cvt_pk_bf16_f32 v{b+8+q}, v{b+2*q}, v{b+2*q+1}")
            A(f"buffer_store_dwordx4 {vr(b+8,4)}, v{G_VL16}, s[{G_SP}:{G_SP+3}], s{G_ST+1} offen offset:{ip*1024} {st}")

def z_kernel(A):
    A.raw(kernel_head("z_kernel"))
    A("s_cmp_ge_u32 s2, 88\ns_cbranch_scc1 L_z_exit")
    load_ptr(A, 4, "ws"); load_ptr(A, 16, "win")
    wave_id(A); gelu_consts(A)
    A("s_waitcnt lgkmcnt(0)")
    srd(A, G_SP, 4, WS_SIZE); srd(A, G_SW, 16, 512 * 3584)
    A("s_cmp_ge_u32 s2, 32\ns_cbranch_scc1 L_z_1")
    gemm_setup_addr(A, C_Z2, 3584)
    A(f"s_mov_b32 s{S_RB}, s2")
    z2_tile(A)
    A("s_branch L_z_exit")
    A.label("L_z_1")
    gemm_setup_addr(A, C_Z1, 3584)
    A(f"s_sub_u32 s3, s2, 32\ns_and_b32 s{S_RB}, s3, 7\ns_lshr_b32 s{S_HD}, s3, 3")
    z1_tile(A)
    A.label("L_z_exit")
    A("s_waitcnt vmcnt(0)\ns_endpgm")
    return kernel_desc("z_kernel", 480, 64, 256)

C_SP = GemmCfg(np=2, nw=16, wp=4, ww=1, orient="PW", wkind="rm", BK=64, NS=4, RW=4, PD=3)
S_BSP = 56
def sp_tile(A, st="", ld=""):
    c = C_SP
    A(f"""
    s_lshl_b32 s{G_SPOFF}, s{S_HD}, 2
    s_add_u32 s{G_SPOFF}, s{G_SPOFF}, s{G_SWV}
    s_lshl_b32 s{G_SPOFF}, s{G_SPOFF}, 17        ; 2 f tiles * 65536
    s_add_u32 s{G_SPOFF}, s{G_SPOFF}, {WS_Z2}
    s_lshl_b32 s{G_SWOFF}, s{S_RB}, 20           ; 256 rows * 4096
    """)
    gemm_mainloop(A, c, 64, 65536, 4096, sc=ld)
    A(f"""
    s_mul_i32 s{G_ST}, s{S_RB}, {16*28672}
    s_lshl_b32 s{G_ST+1}, s{S_HD}, 2
    s_add_u32 s{G_ST+1}, s{G_ST+1}, s{G_SWV}
    s_lshl_b32 s{G_ST+1}, s{G_ST+1}, 10
    s_add_u32 s{G_ST}, s{G_ST}, s{G_ST+1}
    v_and_b32 v{G_VT}, 15, v0
    v_lshlrev_b32 v{G_VT}, 1, v{G_VT}
    s_lshl_b32 s{G_ST+2}, s{S_RB}, 9
    s_mov_b32 s{G_ST+3}, 0xffff0000
    """)
    Z = 48; Bv = 112; X = 128
    for j in range(16):
        A(f"s_add_u32 s{G_ST+1}, s{G_ST}, {WS_Z1 + j*28672}")
        A(f"buffer_load_dwordx4 {vr(Z+4*j,4)}, v{G_VL16}, s[{G_SP}:{G_SP+3}], s{G_ST+1} offen {ld}")
        A(f"buffer_load_ushort v{Bv+j}, v{G_VT}, s[{S_BSP}:{S_BSP+3}], s{G_ST+2} offen offset:{j*32}")
    for j in range(16):
        b = X + (j % 3) * 20
        A(f"s_waitcnt vmcnt({2*(15-j) + j})")
        for r in range(4):
            A(f"v_accvgpr_read_b32 v{b+r}, a{acc(c,0,j)+r}")
            A(f"v_accvgpr_read_b32 v{b+4+r}, a{acc(c,1,j)+r}")
        A(f"v_lshlrev_b32 v{Bv+j}, 16, v{Bv+j}")
        for q in range(4):
            A(f"v_lshlrev_b32 v{b+8+2*q}, 16, v{Z+4*j+q}")
            A(f"v_and_b32 v{b+9+2*q}, s{G_ST+3}, v{Z+4*j+q}")
        for e in range(8): A(f"v_add_f32 v{b+e}, v{b+e}, v{Bv+j}")
        for e in range(8): A(f"v_mul_f32 v{b+e}, v{b+e}, v{b+8+e}")
        for q in range(4): A(f"v_cvt_pk_bf16_f32 v{b+16+q}, v{b+2*q}, v{b+2*q+1}")
        A(f"s_add_u32 s{G_ST+1}, s{G_ST}, {WS_U + j*28672}")
        A(f"buffer_store_dwordx4 {vr(b+16,4)}, v{G_VL16}, s[{G_SP}:{G_SP+3}], s{G_ST+1} offen {st}")

def sp_kernel(A):
    A.raw(kernel_head("sp_kernel"))
    A("s_cmp_ge_u32 s2, 56\ns_cbranch_scc1 L_sp_exit")
    load_ptr(A, 4, "ws"); load_ptr(A, 16, "wsp"); load_ptr(A, 18, "bsp")
    wave_id(A)
    A("s_waitcnt lgkmcnt(0)")
    srd(A, G_SP, 4, WS_SIZE); srd(A, G_SW, 16, 2048 * 4096); srd(A, S_BSP, 18, 4096)
    gemm_setup_addr(A, C_SP, 4096)
    A(f"s_and_b32 s{S_RB}, s2, 7\ns_lshr_b32 s{S_HD}, s2, 3")
    sp_tile(A)
    A.label("L_sp_exit")
    A("s_waitcnt vmcnt(0)\ns_endpgm")
    return kernel_desc("sp_kernel", 384, 64, 256)

def attn_task(A, s_seg, s_head, ld="", st="", mid=None):
    Qf, Kf, KM, Vf, VM, S, O, T = 8, 40, 72, 88, 120, 136, 160, 192
    A(f"""
    s_lshl_b32 s42, s{s_seg}, 5
    s_add_u32 s42, s42, s{s_head}          ; sh
    s_lshl_b32 s43, s42, 13
    s_add_u32 s43, s43, {WS_Q}
    s_add_u32 s44, s43, 4096
    s_lshl_b32 s45, s42, 14
    s_add_u32 s45, s45, {WS_KV}
    s_add_u32 s46, s45, 4096
    s_lshl_b32 s47, s42, 11
    s_add_u32 s47, s47, {WS_KM}
    """)
    for f in range(8): A(f"buffer_load_dwordx4 {vr(Qf+4*f,4)}, v1, s[8:11], s{43 + f//4} offen offset:{(f%4)*1024} {ld}")
    for f in range(8): A(f"buffer_load_dwordx4 {vr(Kf+4*f,4)}, v1, s[8:11], s{45 + f//4} offen offset:{(f%4)*1024} {ld}")
    A(f"""
    s_add_u32 s45, s45, 8192
    s_add_u32 s46, s46, 8192
    s_lshl_b32 s44, s42, 12
    s_add_u32 s44, s44, {WS_VM}
    """)
    for f in range(8): A(f"buffer_load_dwordx4 {vr(Vf+4*f,4)}, v1, s[8:11], s{45 + f//4} offen offset:{(f%4)*1024} {ld}")
    def mm(d, a, b, first):
        A(f"v_mfma_f32_16x16x32_bf16 {vr(d,4)}, {vr(a,4)}, {vr(b,4)}, {'0' if first else vr(d,4)}")
    A("s_waitcnt vmcnt(8)")
    for kp in range(4):
        mm(S + 4, Kf + 4 * kp, Qf + 4 * kp, kp == 0)
        mm(S + 16, Kf + 4 * kp, Qf + (4 + kp) * 4, kp == 0)
        mm(S + 20, Kf + (4 + kp) * 4, Qf + (4 + kp) * 4, kp == 0)
    if mid: mid(A)
    for f in range(4): A(f"buffer_load_dwordx4 {vr(KM+4*f,4)}, v2, s[8:11], s47 offen offset:{f*512} {ld}")
    for f in range(4): A(f"buffer_load_dwordx4 {vr(VM+4*f,4)}, v1, s[8:11], s44 offen offset:{f*1024} {ld}")
    for kp in range(4):
        A(f"s_waitcnt vmcnt({7-kp})")
        for Tq in range(2): mm(S + Tq * 12, KM + 4 * kp, Qf + (Tq * 4 + kp) * 4, kp == 0)
    A(f"v_mov_b32 v{T+8}, 0xf149f2ca\ns_nop 7")
    A(f"""
    s_lshl_b32 s43, s{s_seg}, 18
    s_lshl_b32 s44, s{s_head}, 12
    s_add_u32 s43, s43, s44
    s_add_u32 s43, s43, {WS_OX}
    """)
    for Tq in range(2):
        Sb = S + Tq * 12
        dg = Sb + 4 + 4 * Tq
        for r in range(4): A(f"v_cndmask_b32 v{dg+r}, v{T+8}, v{dg+r}, s[{60+2*r}:{61+2*r}]")
        nv = 8 if Tq == 0 else 12
        M, M2, L, L2 = T, T + 1, T + 2, T + 3
        A(f"v_max3_f32 v{M}, v{Sb}, v{Sb+1}, v{Sb+2}")
        A(f"v_max3_f32 v{M2}, v{Sb+3}, v{Sb+4}, v{Sb+5}")
        A(f"v_max3_f32 v{M}, v{M}, v{Sb+6}, v{Sb+7}")
        if nv == 12:
            A(f"v_max3_f32 v{M2}, v{M2}, v{Sb+8}, v{Sb+9}")
            A(f"v_max3_f32 v{M}, v{M}, v{Sb+10}, v{Sb+11}")
        A(f"""
        v_max_f32 v{M}, v{M}, v{M2}
        v_mov_b32 v{M2}, v{M}
        s_nop 1
        v_permlane16_swap_b32 v{M}, v{M2}
        v_max_f32 v{M}, v{M}, v{M2}
        v_mov_b32 v{M2}, v{M}
        s_nop 1
        v_permlane32_swap_b32 v{M}, v{M2}
        v_max_f32 v{M}, v{M}, v{M2}
        v_mul_f32 v{M}, s68, v{M}
        """)
        for i in range(nv): A(f"v_fma_f32 v{Sb+i}, v{Sb+i}, s68, -v{M}")
        for i in range(nv): A(f"v_exp_f32 v{Sb+i}, v{Sb+i}")
        A(f"""
        s_nop 0
        v_add_f32 v{L}, v{Sb}, v{Sb+1}
        v_add_f32 v{L2}, v{Sb+2}, v{Sb+3}
        v_add_f32 v{L}, v{L}, v{L2}
        v_mul_f32 v{L}, 0.5, v{L}
        """)
        for i in range(4, nv): A(f"v_add_f32 v{L}, v{L}, v{Sb+i}")
        A(f"""
        v_mov_b32 v{L2}, v{L}
        s_nop 1
        v_permlane16_swap_b32 v{L}, v{L2}
        v_add_f32 v{L}, v{L}, v{L2}
        v_mov_b32 v{L2}, v{L}
        s_nop 1
        v_permlane32_swap_b32 v{L}, v{L2}
        v_add_f32 v{L}, v{L}, v{L2}
        v_rcp_f32 v{L}, v{L}
        s_nop 0
        """)
        for i in range(nv): A(f"v_mul_f32 v{Sb+i}, v{Sb+i}, v{L}")
        PM, PX = T + 4, T + 12
        A(f"v_cvt_pk_bf16_f32 v{PM}, v{Sb}, v{Sb+1}\nv_cvt_pk_bf16_f32 v{PM+1}, v{Sb+2}, v{Sb+3}")
        A(f"v_cvt_pk_bf16_f32 v{PX}, v{Sb+4}, v{Sb+5}\nv_cvt_pk_bf16_f32 v{PX+1}, v{Sb+6}, v{Sb+7}")
        if nv == 12:
            A(f"v_cvt_pk_bf16_f32 v{PX+2}, v{Sb+8}, v{Sb+9}\nv_cvt_pk_bf16_f32 v{PX+3}, v{Sb+10}, v{Sb+11}")
        else:
            A(f"v_mov_b32 v{PX+2}, 0\nv_mov_b32 v{PX+3}, 0")
        A("s_waitcnt vmcnt(0)" if Tq == 0 else "s_nop 1")
        for f in range(8):
            A(f"v_mfma_f32_16x16x32_bf16 {vr(O+4*f,4)}, {vr(Vf+4*f,4)}, {vr(PX,4)}, 0")
        for f in range(8):
            A(f"v_mfma_f32_16x16x16_bf16 {vr(O+4*f,4)}, {vr(VM+2*f,2)}, {vr(PM,2)}, {vr(O+4*f,4)}")
        A("s_nop 7")
        for w in range(4):
            d = T + 16 + 4 * w
            for r in range(4): A(f"v_cvt_pk_bf16_f32 v{d+r}, v{O+8*w+r}, v{O+8*w+4+r}")
            A(f"buffer_store_dwordx4 {vr(d,4)}, v1, s[8:11], s43 offen offset:{w*1024} {st}")
        if Tq == 0: A("s_add_u32 s43, s43, 131072")

def attn_setup(A):
    A(f"""
    v_and_b32 v3, 63, v0
    v_lshlrev_b32 v1, 4, v3
    v_bfe_u32 v4, v0, 2, 2
    v_and_b32 v5, 1, v0
    v_lshl_add_u32 v4, v4, 1, v5
    v_bfe_u32 v5, v0, 4, 2            ; g
    v_lshlrev_b32 v2, 6, v4
    v_lshl_add_u32 v2, v5, 4, v2
    v_and_b32 v4, 15, v0
    v_lshlrev_b32 v5, 2, v5
    s_mov_b32 s68, 0x3e0293ee
    """)
    for r in range(4):
        A(f"v_add_u32 v6, {r}, v5")
        A(f"v_cmp_le_u32 s[{60+2*r}:{61+2*r}], v6, v4")

def attn_kernel(A):
    A.raw(kernel_head("attn_kernel"))
    A("s_cmp_ge_u32 s2, 512\ns_cbranch_scc1 L_at_exit")
    load_ptr(A, 4, "ws")
    A(f"v_lshrrev_b32 v7, 6, v0\ns_nop 0\nv_readfirstlane_b32 s{G_SWV}, v7")
    attn_setup(A)
    A(f"""
    s_lshr_b32 s30, s2, 3
    s_and_b32 s31, s2, 7
    s_lshl_b32 s31, s31, 2
    s_add_u32 s31, s31, s{G_SWV}
    s_waitcnt lgkmcnt(0)
    """)
    srd(A, 8, 4, WS_SIZE)
    attn_task(A, 30, 31)
    A.label("L_at_exit")
    A("s_waitcnt vmcnt(0)\ns_endpgm")
    return kernel_desc("attn_kernel", 224, 80, 224)

C_F1 = GemmCfg(np=1, nw=4, wp=4, ww=1, orient="WP", BK=128, NS=4, RW=4, PD=7, kpat="nat")
C_F2 = GemmCfg(np=1, nw=4, wp=4, ww=1, orient="WP", BK=128, NS=4, RW=4, PD=7, kpat="dd")
def final_tile(A, ld="", wait_u=None, wait_ox=None):
    A(f"""
    s_lshl_b32 s60, s{S_RB}, 2
    s_add_u32 s60, s60, s{G_SWV}
    """)
    srd(A, G_SW, 18, 896 * 1024)
    gemm_setup_addr(A, C_F2, 1024)
    if wait_u: wait_u(A)
    A(f"""
    s_mul_i32 s{G_SPOFF}, s60, 28672
    s_add_u32 s{G_SPOFF}, s{G_SPOFF}, {WS_U}
    s_lshl_b32 s{G_SWOFF}, s{S_HD}, 7
    """)
    gemm_mainloop(A, C_F2, 28, 0, 1024, first=True, sc=ld)
    srd(A, G_SW, 16, 4 << 20)
    gemm_setup_addr(A, C_F1, 1024)
    if wait_ox: wait_ox(A)
    A("s_barrier")
    A(f"""
    s_lshl_b32 s{G_SPOFF}, s60, 17
    s_add_u32 s{G_SPOFF}, s{G_SPOFF}, {WS_OX}
    s_lshl_b32 s{G_SWOFF}, s{S_HD}, 7
    """)
    gemm_mainloop(A, C_F1, 128, 0, 1024, first=False, sc=ld)
    srd(A, 64, 20, 2 << 20); srd(A, 68, 22, 2 << 20)
    A(f"""
    v_and_b32 v{G_VT}, 15, v0
    v_bfe_u32 v{G_VT+1}, v0, 4, 2
    v_lshlrev_b32 v{G_VT}, 10, v{G_VT}
    v_lshl_add_u32 v{G_VT}, v{G_VT+1}, 3, v{G_VT}
    s_lshl_b32 s61, s60, 14
    s_lshl_b32 s62, s{S_HD}, 7
    s_add_u32 s61, s61, s62
    s_mov_b32 s62, 0xffff0000
    """)
    X = 48
    for j in range(4): A(f"buffer_load_dwordx2 {vr(X+2*j,2)}, v{G_VT}, s[64:67], s61 offen offset:{j*32}")
    A("s_nop 7")
    for j in range(4):
        b = 60 + j * 10
        for r in range(4): A(f"v_accvgpr_read_b32 v{b+r}, a{4*j+r}")
        A("s_waitcnt vmcnt(3)")
        A(f"""
        v_lshlrev_b32 v{b+4}, 16, v{X+2*j}
        v_and_b32 v{b+5}, s62, v{X+2*j}
        v_lshlrev_b32 v{b+6}, 16, v{X+2*j+1}
        v_and_b32 v{b+7}, s62, v{X+2*j+1}
        v_add_f32 v{b}, v{b}, v{b+4}
        v_add_f32 v{b+1}, v{b+1}, v{b+5}
        v_add_f32 v{b+2}, v{b+2}, v{b+6}
        v_add_f32 v{b+3}, v{b+3}, v{b+7}
        v_cvt_pk_bf16_f32 v{b+8}, v{b}, v{b+1}
        v_cvt_pk_bf16_f32 v{b+9}, v{b+2}, v{b+3}
        buffer_store_dwordx2 {vr(b+8,2)}, v{G_VT}, s[68:71], s61 offen offset:{j*32}
        """)

WS_ACC = WS_YB
C_S1 = GemmCfg(np=1, nw=4, wp=4, ww=1, orient="PW", BK=128, NS=8, early=False, RW=4, PD=31, kpat="nat")
C_S2 = GemmCfg(np=1, nw=4, wp=4, ww=1, orient="PW", BK=128, NS=8, early=False, RW=4, PD=15, kpat="dd")
def final_split(A, kind, ld="", wait=None, ustore=True):
    A(f"""
    s_lshl_b32 s60, s{S_RB}, 2
    s_add_u32 s60, s60, s{G_SWV}
    """)
    if kind == "U":
        srd(A, G_SW, 18, 896 * 1024)
        gemm_setup_addr(A, C_S2, 1024)
        if wait: wait(A)
        A(f"""
        s_mul_i32 s{G_SPOFF}, s60, 28672
        s_add_u32 s{G_SPOFF}, s{G_SPOFF}, {WS_U}
        s_lshl_b32 s{G_SWOFF}, s{S_HD}, 7
        """)
        gemm_mainloop(A, C_S2, 28, 0, 1024, first=True, sc=ld)
    else:
        srd(A, G_SW, 16, 4 << 20)
        gemm_setup_addr(A, C_S1, 1024)
        A(f"""
        s_lshl_b32 s{G_SPOFF}, s60, 17
        s_lshl_b32 s61, s63, 15
        s_add_u32 s{G_SPOFF}, s{G_SPOFF}, s61
        s_add_u32 s{G_SPOFF}, s{G_SPOFF}, {WS_OX}
        s_lshl_b32 s{G_SWOFF}, s{S_HD}, 7
        s_lshl_b32 s61, s63, 20
        s_add_u32 s{G_SWOFF}, s{G_SWOFF}, s61
        """)
        gemm_mainloop(A, C_S1, 32, 0, 1024, first=True, sc=ld, pre_p=wait)
    A(f"""
    v_and_b32 v{G_VT}, 15, v0
    v_bfe_u32 v{G_VT+1}, v0, 4, 2
    v_lshlrev_b32 v{G_VT}, 2, v{G_VT}
    v_lshl_add_u32 v{G_VT}, v{G_VT+1}, 13, v{G_VT}
    s_lshl_b32 s61, s60, 15
    s_lshl_b32 s62, s{S_HD}, 8
    s_add_u32 s61, s61, s62
    s_add_u32 s61, s61, {WS_ACC}
    s_add_u32 s62, s61, 4096
    s_nop 3
    """)
    for r in range(4):
        for j in range(4):
            op = "buffer_store_dword" if (kind == "U" and ustore) else "buffer_atomic_add_f32"
            A(f"{op} a{4*j+r}, v{G_VT}, s[{G_SP}:{G_SP+3}], s{61 + r//2} offen offset:{(r%2)*2048 + j*64}" + (" sc1" if op[7] == "s" else ""))

def final_finish(A):
    srd(A, 64, 20, 2 << 20); srd(A, 68, 22, 2 << 20)
    X = 48; Y = 64
    A(f"""
    v_lshrrev_b32 v{G_VT}, 2, v0
    v_and_b32 v{G_VT+1}, 3, v0
    v_lshlrev_b32 v{G_VT}, 10, v{G_VT}
    v_lshl_add_u32 v{G_VT+1}, v{G_VT+1}, 5, v{G_VT}
    v_lshlrev_b32 v{G_VT}, 1, v{G_VT+1}
    s_lshl_b32 s62, s{S_RB}, 16
    s_lshl_b32 s61, s{S_HD}, 7
    s_add_u32 s62, s62, s61
    s_lshl_b32 s61, s62, 1
    s_add_u32 s61, s61, {WS_ACC}
    s_mov_b32 s63, 0xffff0000
    """)
    for j in range(4):
        A(f"buffer_load_dwordx4 {vr(Y+4*j,4)}, v{G_VT}, s[{G_SP}:{G_SP+3}], s61 offen offset:{j*16} sc1")
    for j in range(2):
        A(f"buffer_load_dwordx4 {vr(X+4*j,4)}, v{G_VT+1}, s[64:67], s62 offen offset:{j*16}")
    A("s_waitcnt vmcnt(0)")
    for q in range(8):
        A(f"""
        v_lshlrev_b32 v96, 16, v{X+q}
        v_and_b32 v97, s63, v{X+q}
        v_add_f32 v96, v96, v{Y+2*q}
        v_add_f32 v97, v97, v{Y+2*q+1}
        v_cvt_pk_bf16_f32 v{X+q}, v96, v97
        """)
    for j in range(2):
        A(f"buffer_store_dwordx4 {vr(X+4*j,4)}, v{G_VT+1}, s[68:71], s62 offen offset:{j*16}")

def final_kernel(A):
    A.raw(kernel_head("final_kernel"))
    A("s_cmp_ge_u32 s2, 256\ns_cbranch_scc1 L_f_exit")
    load_ptr(A, 4, "ws"); load_ptr(A, 16, "wo"); load_ptr(A, 18, "wout"); load_ptr(A, 20, "x"); load_ptr(A, 22, "out")
    wave_id(A)
    A(f"s_lshr_b32 s{S_RB}, s2, 3\ns_and_b32 s{S_HD}, s2, 7\ns_waitcnt lgkmcnt(0)")
    srd(A, G_SP, 4, WS_SIZE)
    final_tile(A)
    A.label("L_f_exit")
    A("s_waitcnt vmcnt(0)\ns_endpgm")
    return kernel_desc("final_kernel", 128, 80, 112)

def build(launches, kernel_fns, path):
    A = Asm()
    for name, grid, lds in launches:
        A.raw(f"; @launch kernel={name} grid=({grid},1,1) block=(256,1,1) lds={lds}")
    A.raw('.amdgcn_target "amdgcn-amd-amdhsa--gfx950"\n.text')
    descs = []
    for fn in kernel_fns:
        descs.append(fn(A))
    for d in descs: A.raw(d)
    open(path, "w").write(A.text())

if __name__ == "__main__":
    build([("prep_kernel", 160, 0), ("qkv_kernel", 768, 65536)], [prep_kernel, qkv_kernel], "k1.s")
    build([("prep_kernel", 160, 0), ("qkv_kernel", 768, 65536), ("z_kernel", 88, Z2_LDS_STAT + 2048), ("sp_kernel", 56, 131072), ("attn_kernel", 512, 0), ("final_kernel", 256, 65536)],
          [prep_kernel, qkv_kernel, z_kernel, sp_kernel, attn_kernel, final_kernel], "k2.s")
```

```python
from kernels import *
import chain as CH
import chain8 as CH2

F_XCC = 0
F_DEC = 8 * 128
F_TICK = 9 * 128
F_ZD = 10 * 128
F_CH2 = 11 * 128
F_KV = 16 * 128
F_Q = 24 * 128
F_U = 32 * 128
F_PR = 40 * 128
F_OX = 72 * 128
F_FIN = 200 * 128
LDS_MBOX = CH.LDS_END
LDS_MAIN = LDS_MBOX + 64
S_MODE = 31
S_FL = 84
S_TK = 88
S_GO = 89
S_HELD = 92
PSLEEP = 4
PO_START = 1168

def wg_atomic(A, off, val, dst, op="add", val2=None):
    L = A.newlabel("AT")
    A(f"s_cmp_lg_u32 s{G_SWV}, 0\ns_cbranch_scc1 {L}")
    A(f"v_mov_b32 v2, {off}" if isinstance(off, int) else f"v_mov_b32 v2, {off}")
    A(f"v_mov_b32 v4, {val}")
    if op == "cas": A(f"v_mov_b32 v5, {val2}")
    A(f"s_mov_b32 s{dst}, {WS_FLAG}")
    A("s_mov_b64 exec, 1")
    if op == "add":
        A(f"buffer_atomic_add v4, v2, s[{S_FL}:{S_FL+3}], s{dst} offen sc0 sc1")
    elif op == "cas":
        A(f"buffer_atomic_cmpswap v[4:5], v2, s[{S_FL}:{S_FL+3}], s{dst} offen sc0 sc1")
    elif op == "load":
        A(f"buffer_load_dword v4, v2, s[{S_FL}:{S_FL+3}], s{dst} offen sc1")
    A(f"v_mov_b32 v3, {LDS_MBOX}")
    A("s_waitcnt vmcnt(0)")
    A("ds_write_b32 v3, v4")
    A("s_mov_b64 exec, -1")
    A("s_waitcnt lgkmcnt(0)")
    A.label(L)
    A(f"""
    s_barrier
    v_mov_b32 v3, {LDS_MBOX}
    ds_read_b32 v4, v3
    s_waitcnt lgkmcnt(0)
    v_readfirstlane_b32 s{dst}, v4
    s_barrier
    """)

def signal(A, off_sgpr_or_int):
    L = A.newlabel("SG")
    A("s_waitcnt vmcnt(0)\ns_barrier")
    A(f"s_cmp_lg_u32 s{G_SWV}, 0\ns_cbranch_scc1 {L}")
    A(f"v_mov_b32 v2, {off_sgpr_or_int}")
    A(f"v_mov_b32 v4, 1\ns_mov_b32 s{G_ST}, {WS_FLAG}\ns_mov_b64 exec, 1")
    A(f"buffer_atomic_add v4, v2, s[{S_FL}:{S_FL+3}], s{G_ST} offen sc1")
    A("s_mov_b64 exec, -1")
    A.label(L)

def wait_flag(A, off, target, tmp_v, tmp_s, srd_s, sleep=2, timeout=400000):
    L = A.newlabel("WF"); L2 = A.newlabel("WFd")
    A(f"v_mov_b32 v{tmp_v}, {off}")
    A(f"s_mov_b32 s{tmp_s+1}, 0")
    A.label(L)
    A(f"""
    buffer_load_dword v{tmp_v+1}, v{tmp_v}, s[{srd_s}:{srd_s+3}], 0 offen sc1
    s_add_u32 s{tmp_s+1}, s{tmp_s+1}, 1
    s_waitcnt vmcnt(0)
    v_readfirstlane_b32 s{tmp_s}, v{tmp_v+1}
    s_cmp_ge_u32 s{tmp_s}, {target}
    s_cbranch_scc1 {L2}
    s_cmp_gt_u32 s{tmp_s+1}, {timeout}
    s_cbranch_scc1 {L2}
    s_sleep {sleep}
    s_branch {L}
    """)
    A.label(L2)

def order_ranges():
    R = []
    R.append((64, "KV", 0)); R.append((32, "Z2", 0)); R.append((56, "Z1", 0)); R.append((64, "KV", 1))
    R.append((256, "KV", 2)); R.append((56, "SP", 0)); R.append((128, "KV", 6)); R.append((256, "Q", 0))
    R.append((256, "FU", 0))
    R.append((1536, "PO", 0))
    return R

def dbg_time(A, slot, cond_h0=True, op="store"):
    L = A.newlabel("DT")
    if cond_h0:
        A(f"s_cmp_lg_u32 s{CH.S_H}, 0\ns_cbranch_scc1 {L}")
    A(f"s_cmp_lg_u32 s{G_SWV}, 0\ns_cbranch_scc1 {L}")
    A(f"""
    s_memrealtime s[94:95]
    s_waitcnt lgkmcnt(0)
    v_mov_b32 v124, {WS_FLAG + 0x10100 + slot*4}
    v_mov_b32 v125, s94
    s_mov_b64 exec, 1
    """)
    if op == "store": A(f"buffer_store_dword v125, v124, s[{S_FL}:{S_FL+3}], 0 offen")
    else: A(f"buffer_atomic_umax v125, v124, s[{S_FL}:{S_FL+3}], 0 offen")
    A("s_mov_b64 exec, -1\ns_waitcnt vmcnt(0)")
    A.label(L)

def main_kernel(chain_kw={}, force_abort=False, dbg=False, no_cand=False):
    def fn(A):
        A.raw(kernel_head("main_kernel"))
        A("s_cmp_lt_u32 s2, 256\ns_cbranch_scc1 L_m_start\ns_endpgm")
        A.label("L_m_start")
        A(f"s_mov_b32 s{S_HELD}, 0")
        load_ptr(A, 80, "ws")
        wave_id(A)
        A(f"s_getreg_b32 s3, hwreg(HW_REG_XCC_ID)\ns_and_b32 s3, s3, 7\ns_mov_b32 s{S_GO}, 0\ns_waitcnt lgkmcnt(0)")
        srd(A, S_FL, 80, WS_SIZE)
        A(f"s_cmp_lg_u32 s3, {9 if no_cand else 0}\ns_cbranch_scc1 L_m_work")
        wg_atomic(A, F_XCC, 1, CH.S_H)
        A(f"s_cmp_ge_u32 s{CH.S_H}, 32\ns_cbranch_scc1 L_m_work")
        A(f"s_mov_b32 s{S_MODE}, 0")
        A.label("L_m_chain")
        if dbg: dbg_time(A, 0)
        A(f"""
        s_load_dwordx4 s[72:75], s[0:1], 16
        s_load_dwordx4 s[76:79], s[0:1], 32
        s_waitcnt lgkmcnt(0)
        """)
        CH.chain_setup(A)
        CH.chain_load_weights(A)
        A(f"s_cmp_lg_u32 s{S_MODE}, 0\ns_cbranch_scc1 L_m_go")
        A(f"""
        v_mov_b32 v16, {WS_FLAG + F_XCC}
        s_mov_b32 s{CH.S_CNT}, 0
        """)
        A.label("L_m_cnt")
        A(f"""
        buffer_load_dword v17, v16, s[{S_FL}:{S_FL+3}], 0 offen sc1
        s_add_u32 s{CH.S_CNT}, s{CH.S_CNT}, 1
        s_waitcnt vmcnt(0)
        v_readfirstlane_b32 s{CH.S_T0}, v17
        s_mov_b32 s{CH.S_T1}, 1
        s_cmp_ge_u32 s{CH.S_T0}, {33 if force_abort else 32}
        s_cbranch_scc1 L_m_dec
        s_mov_b32 s{CH.S_T1}, 2
        s_cmp_gt_u32 s{CH.S_CNT}, 200
        s_cbranch_scc1 L_m_dec
        s_sleep 8
        s_branch L_m_cnt
        """)
        A.label("L_m_dec")
        A(f"""
        v_mov_b32 v16, {WS_FLAG + F_DEC}
        v_mov_b32 v18, s{CH.S_T1}
        v_mov_b32 v19, 0
        s_mov_b64 exec, 1
        buffer_atomic_cmpswap v[18:19], v16, s[{S_FL}:{S_FL+3}], 0 offen sc0 sc1
        s_waitcnt vmcnt(0)
        v_readfirstlane_b32 s{CH.S_T0}, v18
        s_mov_b64 exec, -1
        s_cmp_eq_u32 s{CH.S_T0}, 0
        s_cselect_b32 s{CH.S_T0}, s{CH.S_T1}, s{CH.S_T0}
        s_cmp_eq_u32 s{CH.S_T0}, 1
        s_cbranch_scc1 L_m_go
        s_barrier
        s_branch L_m_work
        """)
        A.label("L_m_go")
        if dbg: dbg_time(A, 1)
        def kv_wait(A, which):
            if which == 0:
                wait_flag(A, WS_FLAG + F_KV, 64, CH2.QF, CH.S_T0, CH.S_WS, sleep=1)
                if dbg: dbg_time(A, 2)
            else:
                L = A.newlabel("KW")
                A(f"""
                s_cmp_lg_u32 s{CH.S_W}, 1
                s_cbranch_scc1 {L}
                s_add_u32 s{CH.S_T2}, s{CH.S_STEP}, 1
                s_and_b32 s{CH.S_T0}, s{CH.S_T2}, 7
                s_cmp_lg_u32 s{CH.S_T0}, 0
                s_cbranch_scc1 {L}
                s_cmp_ge_u32 s{CH.S_T2}, 64
                s_cbranch_scc1 {L}
                s_lshl_b32 s{CH.S_T2}, s{CH.S_T2}, 4
                s_add_u32 s{CH.S_T2}, s{CH.S_T2}, {WS_FLAG + F_KV}
                """)
                wait_flag(A, f"s{CH.S_T2}", 64, CH2.QF, CH.S_T0, CH.S_WS, sleep=1)
                A.label(L)
        def prog(A, last):
            L = A.newlabel("PG")
            if last:
                A("s_waitcnt vmcnt(0)\ns_barrier")
                A(f"s_add_u32 s{CH.S_STEP}, s{CH.S_STEP}, 1")
            A(f"""
            s_cmp_lg_u32 s{CH.S_W}, 1
            s_cbranch_scc1 {L}
            s_cmp_eq_u32 s{CH.S_STEP}, 0
            s_cbranch_scc1 {L}
            s_sub_u32 s{CH.S_T2}, s{CH.S_STEP}, 1
            s_lshr_b32 s{CH.S_T2}, s{CH.S_T2}, 1
            s_lshl_b32 s{CH.S_T2}, s{CH.S_T2}, 7
            s_add_u32 s{CH.S_T2}, s{CH.S_T2}, {WS_FLAG + F_PR}
            v_mov_b32 v{CH2.QF}, 0
            v_mov_b32 v{CH2.QF+1}, 1
            s_mov_b64 exec, 1
            buffer_atomic_add v{CH2.QF+1}, v{CH2.QF}, s[{CH.S_WS}:{CH.S_WS+3}], s{CH.S_T2} offen sc1
            s_mov_b64 exec, -1
            """)
            A.label(L)
        CH2.chain_loop8(A, st="MODE", timeout=300000, kvld="sc1", kv_wait=kv_wait, exp_st="sc1", prog=prog, **chain_kw)
        if dbg: dbg_time(A, 3)
        if chain_kw.get("trace"):
            A(f"""
            s_cmp_lg_u32 s{CH.S_H}, 0
            s_cbranch_scc1 L_tr_skip
            s_cmp_lg_u32 s{G_SWV}, 0
            s_cbranch_scc1 L_tr_skip
            v_lshrrev_b32 v20, 2, v{CH.V_LANE16}
            s_mov_b32 s3, {WS_FLAG + 0x10000}
            buffer_store_dword v0, v20, s[{CH.S_WS}:{CH.S_WS+3}], s3 offen
            s_waitcnt vmcnt(0)
            """)
            A.label("L_tr_skip")
            A(f"v_lshrrev_b32 v0, 4, v{CH.V_LANE16}\nv_mov_b32 v20, s{G_SWV}\nv_lshl_add_u32 v0, v20, 6, v0")
        A(f"s_mov_b32 s{S_GO}, 1\ns_barrier")
        A.label("L_m_work")
        wave_id(A)
        gelu_consts(A)
        A(f"s_cmp_eq_u32 s{S_HELD}, 1\ns_mov_b32 s{S_HELD}, 0\ns_cbranch_scc1 L_m_disp")
        A.label("L_m_next")
        A(f"s_cmp_eq_u32 s{S_GO}, 1\ns_cbranch_scc1 L_m_tick")
        wg_atomic(A, F_DEC, 0, S_GO, op="load")
        A(f"s_cmp_lg_u32 s{S_GO}, 2\ns_cbranch_scc1 L_m_tick")
        wg_atomic(A, F_CH2, 1, CH.S_H)
        A(f"s_mov_b32 s{S_GO}, 1\ns_mov_b32 s{S_MODE}, 1\ns_cmp_lt_u32 s{CH.S_H}, 32\ns_cbranch_scc1 L_m_chain")
        A.label("L_m_tick")
        wg_atomic(A, F_TICK, 1, S_TK)
        A(f"s_cmp_eq_u32 s{S_GO}, 1\ns_cbranch_scc1 L_m_disp\ns_cmp_lt_u32 s{S_TK}, {PO_START}\ns_cbranch_scc1 L_m_disp")
        A(f"s_mov_b32 s{S_HELD}, 0")
        A.label("L_m_res")
        wg_atomic(A, F_DEC, 0, S_GO, op="load")
        A(f"""
        s_cmp_eq_u32 s{S_GO}, 1
        s_cbranch_scc1 L_m_res1
        s_cmp_eq_u32 s{S_GO}, 2
        s_cbranch_scc1 L_m_res2
        s_sleep 20
        s_add_u32 s{S_HELD}, s{S_HELD}, 1
        s_cmp_lt_u32 s{S_HELD}, 400
        s_cbranch_scc1 L_m_res
        """)
        wg_atomic(A, F_DEC, 2, S_GO, op="cas", val2=0)
        A("s_branch L_m_res")
        A.label("L_m_res1")
        A(f"s_mov_b32 s{S_HELD}, 0\ns_branch L_m_disp")
        A.label("L_m_res2")
        wg_atomic(A, F_CH2, 1, CH.S_H)
        A(f"s_mov_b32 s{S_GO}, 1\ns_mov_b32 s{S_MODE}, 1\ns_mov_b32 s{S_HELD}, 1\ns_cmp_lt_u32 s{CH.S_H}, 32\ns_cbranch_scc1 L_m_chain\ns_mov_b32 s{S_HELD}, 0")
        A.label("L_m_disp")
        srd(A, G_SP, 80, WS_SIZE)
        start = 0
        for n, kind, base in order_ranges():
            L = A.newlabel("RG")
            A(f"s_cmp_ge_u32 s{S_TK}, {start + n}\ns_cbranch_scc1 {L}")
            A(f"s_sub_u32 s3, s{S_TK}, {start}")
            if kind == "KV":
                A(f"s_add_u32 s3, s3, {base*64}")
            elif kind == "Q":
                A(f"s_add_u32 s3, s3, {base}")
            ljump(A, f"L_w_{kind}", True)
            A.label(L)
            start += n
        if dbg: dbg_time(A, 4, False, "max")
        A("s_waitcnt vmcnt(0)\ns_endpgm")
        A.label("L_w_KV")
        A("s_load_dwordx4 s[16:19], s[0:1], 24")
        gemm_setup_addr(A, C_QK, 8192); qkv_epi_addr(A)
        A(f"s_and_b32 s{S_HD}, s3, 31\ns_lshr_b32 s{S_RB}, s3, 6\ns_bitcmp1_b32 s3, 5\ns_waitcnt lgkmcnt(0)\ns_cbranch_scc1 L_w_V")
        srd(A, G_SW, 16, 4 << 20)
        qkv_tile(A, "K", st="sc1")
        A("s_branch L_w_KVd")
        A.label("L_w_V")
        srd(A, G_SW, 18, 4 << 20)
        qkv_tile(A, "V", st="sc1")
        A.label("L_w_KVd")
        A(f"s_lshl_b32 s3, s{S_RB}, 7\ns_add_u32 s3, s3, {F_KV}")
        signal(A, "s3")
        ljump(A, "L_m_next", False)
        A.label("L_w_Q")
        load_ptr(A, 16, "wq")
        gemm_setup_addr(A, C_QK, 8192)
        A(f"s_and_b32 s{S_HD}, s3, 31\ns_lshr_b32 s{S_RB}, s3, 5\ns_waitcnt lgkmcnt(0)")
        srd(A, G_SW, 16, 4 << 20)
        qkv_tile(A, "Q", st="sc1")
        A(f"s_lshl_b32 s3, s{S_RB}, 7\ns_add_u32 s3, s3, {F_Q}")
        signal(A, "s3")
        ljump(A, "L_m_next", False)
        A.label("L_w_Z2")
        load_ptr(A, 16, "win")
        gemm_setup_addr(A, C_Z2, 3584)
        A(f"s_mov_b32 s{S_RB}, s3\ns_waitcnt lgkmcnt(0)")
        srd(A, G_SW, 16, 512 * 3584)
        z2_tile(A, st="sc1")
        signal(A, F_ZD)
        ljump(A, "L_m_next", False)
        A.label("L_w_Z1")
        load_ptr(A, 16, "win")
        gemm_setup_addr(A, C_Z1, 3584)
        A(f"s_and_b32 s{S_RB}, s3, 7\ns_lshr_b32 s{S_HD}, s3, 3\ns_waitcnt lgkmcnt(0)")
        srd(A, G_SW, 16, 512 * 3584)
        z1_tile(A, st="sc1")
        signal(A, F_ZD)
        ljump(A, "L_m_next", False)
        A.label("L_w_SP")
        load_ptr(A, 16, "wsp"); load_ptr(A, 18, "bsp")
        gemm_setup_addr(A, C_SP, 4096)
        A(f"s_and_b32 s{S_RB}, s3, 7\ns_lshr_b32 s{S_HD}, s3, 3\ns_waitcnt lgkmcnt(0)")
        srd(A, G_SW, 16, 2048 * 4096); srd(A, S_BSP, 18, 4096)
        wait_flag(A, WS_FLAG + F_ZD, 88, G_VT, G_ST, S_FL, sleep=8)
        A("s_barrier")
        sp_tile(A, ld="sc1", st="sc1")
        A(f"s_lshl_b32 s3, s{S_RB}, 7\ns_add_u32 s3, s3, {F_U}")
        signal(A, "s3")
        ljump(A, "L_m_next", False)
        A.label("L_w_PO")
        if dbg:
            A("s_cmp_lg_u32 s3, 0\ns_cbranch_scc1 L_dbg_po")
            dbg_time(A, 5, False)
            A.label("L_dbg_po")
        A(f"""
        s_mul_i32 s30, s3, 1366
        s_lshr_b32 s30, s30, 16            ; grp = s3/48
        s_mul_i32 s31, s30, 48
        s_sub_u32 s31, s3, s31             ; r
        s_mov_b32 s{S_RB}, s30
        s_cmp_ge_u32 s31, 16
        s_cbranch_scc1 L_w_FIN
        """)
        attn_setup(A)
        A(f"s_lshr_b32 s3, s30, 2\ns_lshl_b32 s3, s3, 7\ns_add_u32 s3, s3, {WS_FLAG + F_KV}")
        wait_flag(A, "s3", 64, 8, G_ST, S_FL, sleep=16)
        A(f"s_add_u32 s3, s3, {F_Q - F_KV}")
        wait_flag(A, "s3", 32, 8, G_ST, S_FL, sleep=16)
        A(f"""
        s_lshl_b32 s30, s30, 1
        s_bfe_u32 s3, s31, 0x10001
        s_add_u32 s30, s30, s3             ; seg
        s_lshr_b32 s{S_HD}, s31, 2         ; octet
        s_and_b32 s31, s31, 1
        s_lshl_b32 s3, s{S_HD}, 1
        s_add_u32 s31, s31, s3
        s_lshl_b32 s31, s31, 2
        s_add_u32 s31, s31, s{G_SWV}       ; head
        """)
        def mid(A):
            A(f"s_lshl_b32 s3, s{S_RB}, 7\ns_add_u32 s3, s3, {WS_FLAG + F_PR}")
            wait_flag(A, "s3", 64, 220, 50, S_FL, sleep=PSLEEP)
        attn_task(A, 30, 31, ld="sc1", st="sc1", mid=mid)
        A(f"s_lshl_b32 s3, s{S_RB}, 2\ns_add_u32 s3, s3, s{S_HD}\ns_lshl_b32 s3, s3, 7\ns_add_u32 s3, s3, {F_OX}")
        signal(A, "s3")
        ljump(A, "L_m_next", False)
        A.label("L_w_FIN")
        load_ptr(A, 16, "wo"); load_ptr(A, 18, "wout"); load_ptr(A, 20, "x"); load_ptr(A, 22, "out")
        A(f"s_sub_u32 s31, s31, 16\ns_and_b32 s{S_HD}, s31, 7\ns_lshr_b32 s63, s31, 3\ns_waitcnt lgkmcnt(0)")
        def wait_ox(A):
            A(f"s_lshl_b32 s3, s{S_RB}, 2\ns_add_u32 s3, s3, s63\ns_lshl_b32 s3, s3, 7\ns_add_u32 s3, s3, {WS_FLAG + F_OX}")
            wait_flag(A, "s3", 4, G_VT, G_ST + 2, S_FL, sleep=PSLEEP)
            A(f"s_lshl_b32 s3, s{S_RB}, 3\ns_add_u32 s3, s3, s{S_HD}\ns_lshl_b32 s3, s3, 7\ns_add_u32 s3, s3, {WS_FLAG + F_FIN}")
            wait_flag(A, "s3", 1, G_VT, G_ST + 2, S_FL, sleep=PSLEEP)
        final_split(A, "OX", ld="sc1", wait=wait_ox)
        A("s_branch L_w_FD")
        A.label("L_w_FU")
        load_ptr(A, 16, "wo"); load_ptr(A, 18, "wout"); load_ptr(A, 20, "x"); load_ptr(A, 22, "out")
        A(f"s_and_b32 s{S_HD}, s3, 7\ns_lshr_b32 s{S_RB}, s3, 3\ns_waitcnt lgkmcnt(0)")
        def wait_u(A):
            A(f"s_lshr_b32 s3, s{S_RB}, 2\ns_lshl_b32 s3, s3, 7\ns_add_u32 s3, s3, {WS_FLAG + F_U}")
            wait_flag(A, "s3", 7, G_VT, G_ST, S_FL, sleep=16)
        final_split(A, "U", ld="sc1", wait=wait_u)
        A.label("L_w_FD")
        A("s_waitcnt vmcnt(0)\ns_barrier")
        A(f"s_lshl_b32 s3, s{S_RB}, 3\ns_add_u32 s3, s3, s{S_HD}\ns_lshl_b32 s3, s3, 7\ns_add_u32 s3, s3, {F_FIN}")
        wg_atomic(A, "s3", 1, 63)
        A("s_cmp_lg_u32 s63, 4\ns_cbranch_scc1 L_w_FE")
        final_finish(A)
        A.label("L_w_FE")
        ljump(A, "L_m_next", False)
        return kernel_desc("main_kernel", 512, 102, 256)
    return fn

HDR = open("parallel_sum__memory_aug_recurrent_mem_tr__mixer_gmlp__prompt.s.ref").read().split("; Override launch")[0]
def build_main(path, **kw):
    build([("prep_kernel", 160, 0), ("main_kernel", 256, LDS_MAIN)],
          [prep_kernel, main_kernel(**kw)], path)
    t = open(path).read()
    open(path, "w").write(HDR + t)
if __name__ == "__main__":
    ck = dict(rw=40, pr=20, pw0=180, pw=40, rw2=40)
    build_main("m6.s", chain_kw=ck)
    build_main("m6_abort.s", chain_kw=ck, force_abort=True)
    build_main("m6_dbg.s", chain_kw=ck, dbg=True)
    build_main("m6_nocand.s", chain_kw=ck, no_cand=True)
    build_main(f"m6_rt.s", chain_kw=dict(stamps=True, trace=(0, 9, 1), **ck), dbg=True)
    for a, b in [(0, 9)]:
        build_main(f"m6_tr{a}{b}.s", chain_kw=dict(stamps=True, trace=(a, b), **ck), dbg=True)
```

```python
from chain import *
import chain as C1
C1.V8 = True
V_KXR = V_SELV
from chain2 import smf_s, mf_s

MEMF = 16
QA, KA, VA = 48, 56, 64
QF = 72
KX = 88
VX = 120
S_C2 = 32

def slots(A, mains, *fill_lists):
    n = max([len(mains)] + [len(f) for f in fill_lists])
    for i in range(n):
        if i < len(mains): A(mains[i])
        for f in fill_lists:
            if i < len(f) and f[i]: A(f[i])

def chain_loop8(A, st="", nsteps=64, timeout=20000, timing=False, stamps=False, pw=40, rw=40, rw2=30, pw0=0, kvld="", kv_wait=None, exp_st="", prog=None, ow=8, ow2=6, wo2=4, pr=0, trace=None, slp=False):
    def stamp(i):
        if stamps and trace:
            op = "s_memrealtime" if len(trace) > 2 else "s_memtime"
            if i == trace[0]: A(f"{op} s[94:95]")
            if i == trace[1]: A(f"{op} s[100:101]")
        elif stamps: A(f"s_memtime s[{82+2*i}:{83+2*i}]")
    def warm(n, r=QF):
        if slp:
            if n: A(f"s_sleep {n}")
            return
        for i in range(n): A(f"v_mov_b32 v{r}, 0")
    L_step = A.newlabel("CH_step"); L_poll = A.newlabel("CH_poll"); L_red = A.newlabel("CH_red")
    L_done = A.newlabel("CH_done"); L_pok = A.newlabel("CH_pok"); L_rok = A.newlabel("CH_rok"); L_next = A.newlabel("CH_next")
    WS = f"s[{S_WS}:{S_WS+3}]"
    def mstore(lines):
        if st != "MODE":
            for l in lines: A(l + " " + st)
            return
        La = A.newlabel("MS"); Lb = A.newlabel("MS")
        A(f"s_cmp_lg_u32 s31, 0\ns_cbranch_scc1 {La}")
        for l in lines: A(l)
        A(f"s_branch {Lb}")
        A.label(La)
        for l in lines: A(l + " sc1")
        A.label(Lb)
    A(f"""
    s_mov_b32 s{S_STEP}, 0
    s_mov_b32 s{S_C2}, s{S_C}
    s_mov_b32 s{S_C2+1}, s{S_C}
    s_mov_b32 s{S_PHASE}, 0
    s_mov_b32 s{S_MEMOFF}, {WS_MEMF}
    s_mov_b32 s{S_PARTOFF}, {WS_PART}
    s_lshl_b32 s{S_T0}, s{S_H}, 14
    s_lshl_b32 s{S_T1}, s{S_W}, 11
    s_add_u32 s{S_T0}, s{S_T0}, s{S_T1}
    s_add_u32 s{S_KVOFF}, s{S_T0}, {WS_KV}
    s_lshl_b32 s{S_T0}, s{S_H}, 11
    s_add_u32 s{S_KMOFF}, s{S_T0}, {WS_KM}
    s_lshl_b32 s{S_T0}, s{S_H}, 12
    s_lshl_b32 s{S_T1}, s{S_W}, 10
    s_add_u32 s{S_T0}, s{S_T0}, s{S_T1}
    s_add_u32 s{S_VMOFF}, s{S_T0}, {WS_VM}
    s_lshl_b32 s{S_T0}, s{S_W}, 11
    s_add_u32 s{S_KXB}, s{S_T0}, {LDS_KX}
    s_add_u32 s{S_KXN}, s{S_T0}, {LDS_KX2}
    """)
    if kv_wait: kv_wait(A, 0)
    A(f"""
    s_mov_b32 m0, s{S_KXB}
    s_nop 0
    buffer_load_dwordx4 v{V_LANE16}, {WS}, s{S_KVOFF} offen {kvld} lds
    buffer_load_dwordx4 v{V_LANE16}, {WS}, s{S_KVOFF} offen offset:1024 {kvld} lds
    s_waitcnt vmcnt(0)
    s_barrier
    """)
    if timing: A(f"s_memtime s[{S_TM}:{S_TM+1}]")
    for i in range(12): A(f"v_mov_b64 {vr(QA+2*i,2)}, 0")
    A.label(L_step)
    stamp(0)
    FA, FB = 4, 6
    A(f"s_mov_b32 s{S_CNT2}, 0\ns_mov_b64 s[{FA}:{FA+1}], -1\ns_mov_b64 s[{FB}:{FB+1}], -1")
    A.label(L_poll)
    T = QF
    A(f"""
    s_mov_b64 exec, s[{FA}:{FA+1}]
    buffer_load_dwordx4 {vr(MEMF,4)}, v{V_POLL}, {WS}, s{S_MEMOFF} offen sc1
    s_mov_b64 exec, s[{FB}:{FB+1}]
    buffer_load_dwordx4 {vr(MEMF+4,4)}, v{V_POLL}, {WS}, s{S_MEMOFF} offen offset:1024 sc1
    s_mov_b64 exec, -1
    s_add_u32 s{S_CNT2}, s{S_CNT2}, 1
    """)
    warm(pw)
    A(f"""
    s_waitcnt vmcnt(1)
    v_max3_u32 v{T}, v{MEMF}, v{MEMF+1}, v{MEMF+2}
    v_max_u32 v{T}, v{T}, v{MEMF+3}
    v_cmp_eq_u32 s[{FA}:{FA+1}], -1, v{T}
    s_waitcnt vmcnt(0)
    v_max3_u32 v{T+1}, v{MEMF+4}, v{MEMF+5}, v{MEMF+6}
    v_max_u32 v{T+1}, v{T+1}, v{MEMF+7}
    v_cmp_eq_u32 s[{FB}:{FB+1}], -1, v{T+1}
    s_cmp_gt_u32 s{S_CNT2}, {timeout}
    s_cbranch_scc1 {L_pok}
    s_or_b64 vcc, s[{FA}:{FA+1}], s[{FB}:{FB+1}]
    s_cbranch_scc1 {L_poll}
    """)
    A.label(L_pok)
    stamp(1)
    A(f"""
    ds_write_b128 v{V_MEMW}, {vr(MEMF,4)}
    ds_write_b128 v{V_MEMW}, {vr(MEMF+4,4)} offset:1024
    """)
    Q0, Q1, K0, K1, V0, V1 = QA, QA + 4, KA, KA + 4, VA, VA + 4
    def W(m, js):
        base = [QA, KA, VA][m]
        return [smf_s(base + 4 * p, MEMF + 4 * j, wreg(m, p, j)) for j in js for p in range(2)]
    slots(A, W(0, [0, 1]), [f"s_add_u32 s{S_T0}, s{S_KVOFF}, 8192\ns_add_u32 s{S_T1}, s{S_KVOFF}, {32*16384}\ns_mov_b32 m0, s{S_KXN}"])
    A("s_waitcnt lgkmcnt(0)\ns_barrier")
    stamp(2)
    KXA, XB = KX, KX + 16
    memr = [f"ds_read_b128 {vr(MEMF+8+4*i,4)}, v{V_MEMR+i//2} offset:{(i%2)*1024}" for i in range(6)]
    vm1 = [f"buffer_load_dwordx4 {vr(VX,4)}, v{V_LANE16}, {WS}, s{S_T0} offen {kvld}",
           f"buffer_load_dwordx4 {vr(VX+4,4)}, v{V_LANE16}, {WS}, s{S_T0} offen offset:1024 {kvld}"]
    vm2 = [f"buffer_load_dwordx4 v{V_LANE16}, {WS}, s{S_T1} offen {kvld} lds",
           f"buffer_load_dwordx4 v{V_LANE16}, {WS}, s{S_T1} offen offset:1024 {kvld} lds"]
    slots(A, W(1, [0, 1]) + W(2, [0, 1]), memr + vm1)
    order = []
    for tp in range(4):
        order += [(2 * tp, 0), (2 * tp + 1, 0), (2 * tp, 1), (2 * tp + 1, 1)]
    bufs = [XB, XB + 8, MEMF + 16, MEMF + 24, QF, QF + 8, KA, VA]
    def wa(Tt): return (MEMF + 4 * Tt) if Tt < 4 else (KXA + 4 * (Tt - 4))
    def wo_rd(i):
        Tt, ups = order[i]; buf = bufs[i % 8]
        return [f"ds_read_b128 {vr(buf,4)}, v{V_WOR} offset:{((Tt*2+ups)*2)*1024}",
                f"ds_read_b128 {vr(buf+4,4)}, v{V_WOR} offset:{((Tt*2+ups)*2+1)*1024}"]
    kx0 = [f"ds_read_b128 {vr(KXA+4*f,4)}, v{V_KXR} offset:{f*1024}" for f in range(4)]
    kx1 = [f"ds_read_b128 {vr(MEMF+4*f,4)}, v{V_KXR} offset:{(4+f)*1024}" for f in range(4)]
    qs = W(0, range(2, 8))
    for j in range(6):
        A(f"s_waitcnt lgkmcnt({5 - j})" if j < 6 else "")
        A(qs[2 * j])
        if j == 1: A(vm2[0])
        if j == 3: A(vm2[1])
        A(qs[2 * j + 1])
    if prog: prog(A, 0)
    stamp(3)
    def fold_list(X0, X1, off):
        return [f"v_pk_add_f32 {vr(X0,2)}, {vr(X0,2)}, {vr(X0+2,2)}", f"v_pk_add_f32 {vr(X1,2)}, {vr(X1,2)}, {vr(X1+2,2)}",
                f"v_cvt_pk_bf16_f32 v{X0}, v{X0}, v{X1}\nds_write_b32 v{V_QW}, v{X0} offset:{off}",
                f"v_cvt_pk_bf16_f32 v{X0+1}, v{X0+1}, v{X1+1}\nds_write_b32 v{V_QW}, v{X0+1} offset:{off+QP}"]
    ks = W(1, range(2, 8))
    slots(A, ks, kx0[:3] + [None, None] + kx0[3:] + wo_rd(0) + wo_rd(1) + kx1[:2], [None] + fold_list(Q0, Q1, 0))
    stamp(4)
    vs = W(2, range(2, 8))
    S1, S2, S0 = QA, QA + 4, KA + 4
    KMF = KXA
    kf = fold_list(K0, K1, LDS_K2)
    slots(A, vs[:6], [None] + kf)
    A("s_waitcnt lgkmcnt(0)\ns_barrier")
    qfr = [f"ds_read_b128 {vr(QF+4*kp,4)}, v{V_QR} offset:{kp*64}" for kp in range(4)]
    kexp = [None, f"buffer_store_dword v{K0}, v{V_KMX}, {WS}, s{S_KMOFF} offen {exp_st}",
            None,
            f"buffer_store_dword v{K0+1}, v{V_KMX}, {WS}, s{S_KMOFF} offen offset:64 {exp_st}"]
    slots(A, vs[6:], qfr + kx1[2:], kexp)
    stamp(5)
    sx = [mf_s(S1, KXA + 4 * kp, QF + 4 * kp, "0" if kp == 0 else vr(S1, 4)) for kp in range(4)]
    sx += [mf_s(S2, MEMF + 4 * kp, QF + 4 * kp, "0" if kp == 0 else vr(S2, 4)) for kp in range(4)]
    kmr = [f"ds_read_b128 {vr(KMF+4*kp,4)}, v{V_QR} offset:{LDS_K2+kp*64}" for kp in range(4)]
    VM = VA
    M, M2, LS, L2 = VA + 4, VA + 5, VA + 6, VA + 7
    zlo = [f"v_mov_b64 {vr(MEMF+2*i,2)}, 0" for i in range(8)]
    zhi = [f"v_mov_b64 {vr(KXA+2*i,2)}, 0" for i in range(8)]
    vmp = [None, None,
           f"v_cvt_pk_bf16_f32 v{VM}, v{V0}, v{V0+1}\nv_cvt_pk_bf16_f32 v{VM+1}, v{V0+2}, v{V0+3}",
           f"v_cvt_pk_bf16_f32 v{VM+2}, v{V1}, v{V1+1}\nv_cvt_pk_bf16_f32 v{VM+3}, v{V1+2}, v{V1+3}",
           f"v_xor_b32 v{V_KXR}, 0x2000, v{V_KXR}", None,
           f"v_max3_f32 v{M}, v{S1}, v{S1+1}, v{S1+2}",
           f"buffer_store_dwordx4 {vr(VM,4)}, v{V_LANE16}, {WS}, s{S_VMOFF} offen {exp_st}"]
    w2 = wo_rd(2) + wo_rd(3)
    dsf = kmr + w2
    outq = ["q0", "q1", "q2", "q3", "x2", "x3"]
    need = ["q0", "q1", "q2", "q3", None, None, "x2", "x3"]
    tags = ["m0", "m1", "m2", "m3", "w", "w", "w", "w"]
    for i in range(8):
        if need[i] in outq:
            k = outq.index(need[i])
            A(f"s_waitcnt lgkmcnt({len(outq) - 1 - k})")
            outq = outq[k + 1:]
        A(sx[i]); A(dsf[i]); outq.append(tags[i])
        if vmp[i]: A(vmp[i])
    A(f"s_cmp_eq_u32 s{S_STEP}, {nsteps-1}\ns_cbranch_scc1 {L_done}")
    A("s_waitcnt lgkmcnt(4)")
    sm = [mf_s(S0, KMF + 4 * kp, QF + 4 * kp, "0" if kp == 0 else vr(S0, 4)) for kp in range(4)]
    slots(A, sm, [zlo[0] + "\n" + zlo[1], zlo[2] + "\n" + zlo[3],
                  f"v_max3_f32 v{M2}, v{S1+3}, v{S2}, v{S2+1}\nv_max3_f32 v{M}, v{M}, v{S2+2}, v{S2+3}",
                  f"v_max_f32 v{M}, v{M}, v{M2}\n" + zlo[4]])
    r2 = wo_rd(4) + wo_rd(5)
    PM = KA
    OA = KXA + 12
    CC = f"s[{S_C2}:{S_C2+1}]"
    def pkf(r): return f"v_pk_fma_f32 {vr(r,2)}, {vr(r,2)}, {CC}, {vr(M,2)} op_sel_hi:[1,1,0] neg_lo:[0,0,1] neg_hi:[0,0,1]"
    A(f"""
    {zlo[5]}
    {zlo[6]}
    {zlo[7]}
    {zhi[0]}
    {zhi[1]}
    {zhi[2]}
    v_max3_f32 v{M}, v{M}, v{S0}, v{S0+1}
    v_mov_b32 v{M2}, v{M}
    {zhi[3]}
    {zhi[4]}
    v_permlane16_swap_b32 v{M}, v{M2}
    v_max_f32 v{M}, v{M}, v{M2}
    v_mov_b32 v{M2}, v{M}
    {zhi[5]}
    s_add_u32 s{S_KVOFF}, s{S_KVOFF}, {32*16384}
    v_permlane32_swap_b32 v{M}, v{M2}
    v_max_f32 v{M}, v{M}, v{M2}
    v_mul_f32 v{M}, s{S_C}, v{M}
    {pkf(S0)}
    {pkf(S1)}
    {pkf(S1+2)}
    v_exp_f32 v{S0}, v{S0}
    v_exp_f32 v{S0+1}, v{S0+1}
    {pkf(S2)}
    {pkf(S2+2)}
    v_cvt_pk_bf16_f32 v{PM}, v{S0}, v{S0+1}
    v_cvt_pk_bf16_f32 v{PM+1}, v{S0}, v{S0+1}
    v_exp_f32 v{S1}, v{S1}
    v_exp_f32 v{S1+1}, v{S1+1}
    v_mfma_f32_16x16x16_bf16 {vr(OA,4)}, {vr(VM,2)}, {vr(PM,2)}, 0
    {r2[0]}
    v_exp_f32 v{S1+2}, v{S1+2}
    v_exp_f32 v{S1+3}, v{S1+3}
    v_pk_add_f32 {vr(LS,2)}, {vr(S0,2)}, {vr(S1,2)}
    v_mfma_f32_16x16x16_bf16 {vr(S0,4)}, {vr(VM+2,2)}, {vr(PM,2)}, 0
    {r2[1]}
    v_exp_f32 v{S2}, v{S2}
    v_exp_f32 v{S2+1}, v{S2+1}
    v_exp_f32 v{S2+2}, v{S2+2}
    v_exp_f32 v{S2+3}, v{S2+3}
    v_pk_add_f32 {vr(M,2)}, {vr(S1+2,2)}, {vr(S2,2)}
    v_cvt_pk_bf16_f32 v{S1}, v{S1}, v{S1+1}
    v_cvt_pk_bf16_f32 v{S1+1}, v{S1+2}, v{S1+3}
    v_cvt_pk_bf16_f32 v{S1+2}, v{S2}, v{S2+1}
    v_cvt_pk_bf16_f32 v{S1+3}, v{S2+2}, v{S2+3}
    v_pk_add_f32 {vr(LS,2)}, {vr(LS,2)}, {vr(S2+2,2)}
    s_waitcnt vmcnt(5)
    v_mfma_f32_16x16x32_bf16 {vr(OA,4)}, {vr(VX,4)}, {vr(S1,4)}, {vr(OA,4)}
    {r2[2]}
    v_pk_add_f32 {vr(LS,2)}, {vr(LS,2)}, {vr(M,2)}
    v_mfma_f32_16x16x32_bf16 {vr(S0,4)}, {vr(VX+4,4)}, {vr(S1,4)}, {vr(S0,4)}
    {r2[3]}
    v_add_f32 v{LS}, v{LS}, v{L2}
    v_mov_b32 v{L2}, v{LS}
    v_add_u32 v{S2}, {LDS_O}, v{V_LANE16}
    s_xor_b32 s{S_KXN}, s{S_KXN}, 0x2000
    v_permlane16_swap_b32 v{LS}, v{L2}
    v_add_f32 v{LS}, v{LS}, v{L2}
    v_mov_b32 v{L2}, v{LS}
    v_cndmask_b32 v{PM}, v{OA+1}, v{OA}, s[{S_LO}:{S_LO+1}]
    v_cndmask_b32 v{PM+2}, v{OA+3}, v{OA+2}, s[{S_LO}:{S_LO+1}]
    v_permlane32_swap_b32 v{LS}, v{L2}
    v_add_f32 v{LS}, v{LS}, v{L2}
    v_rcp_f32 v{LS}, v{LS}
    v_cndmask_b32 v{PM+1}, v{S0+1}, v{S0}, s[{S_LO}:{S_LO+1}]
    v_cndmask_b32 v{PM+3}, v{S0+3}, v{S0+2}, s[{S_LO}:{S_LO+1}]
    v_pk_mul_f32 {vr(PM,2)}, {vr(PM,2)}, {vr(LS,2)} op_sel_hi:[1,0]
    v_pk_mul_f32 {vr(PM+2,2)}, {vr(PM+2,2)}, {vr(LS,2)} op_sel_hi:[1,0]
    v_cvt_pk_bf16_f32 v{S1}, v{PM}, v{PM+1}
    v_cvt_pk_bf16_f32 v{S1+1}, v{PM+2}, v{PM+3}
    ds_write_b64 v{V_OW}, {vr(S1,2)}
    v_mov_b64 {vr(OA,2)}, 0
    v_mov_b64 {vr(OA+2,2)}, 0
    s_add_u32 s{S_T0}, s{S_PARTOFF}, 8192
    s_waitcnt lgkmcnt(0)
    s_barrier
    """)
    stamp(6)
    OF = VX
    A(f"ds_read_b128 {vr(OF,4)}, v{S2}\nds_read_b128 {vr(OF+4,4)}, v{S2} offset:1024")
    for x in wo_rd(6) + wo_rd(7): A(x)
    PK = QA
    def fold_pair(tp):
        a = wa(2 * tp)
        d0 = PK + 4 * (tp // 2) + tp % 2
        L = [f"v_pk_add_f32 {vr(a,2)}, {vr(a,2)}, {vr(a+2,2)}", f"v_pk_add_f32 {vr(a+4,2)}, {vr(a+4,2)}, {vr(a+6,2)}",
             f"v_cvt_pk_bf16_f32 v{d0}, v{a}, v{a+4}", f"v_cvt_pk_bf16_f32 v{d0+2}, v{a+1}, v{a+5}"]
        if tp % 2 == 0:
            L += [f"v_bfi_b32 v{d0}, 1, s{S_PHASE}, v{d0}"]
        return L
    pend = []
    outq = ["o0", "o1", 6, 6, 7, 7]
    rdl = [(f, hh) for f in range(8, 16) for hh in range(2)]
    for i in range(16):
        Tt, ups = order[i]
        need = [i, "o0" if ups == 0 else "o1"]
        idx = [k for k, v in enumerate(outq) if v in need]
        if idx:
            last = max(idx)
            A(f"s_waitcnt lgkmcnt({len(outq) - 1 - last})")
            outq = outq[last + 1:]
        A(smf_s(wa(Tt), OF + 4 * ups, vr(bufs[i % 8], 8)))
        nrd = 2 if i < wo2 else 1
        for _ in range(nrd):
            if rdl and rdl[0][0] - 8 <= i:
                f, hh = rdl.pop(0)
                A(wo_rd(f)[hh]); outq.append(f)
                assert len(outq) <= 15
        if i % 4 == 1 and i >= 5: pend += fold_pair(i // 4 - 1)
        if pend: A(pend.pop(0))
        if i == 13:
            assert not [x for x in pend if f"v{PK+1}," in x or f"v{PK+3}," in x]
            mstore([f"buffer_store_dwordx4 {vr(PK,4)}, v{V_PST}, {WS}, s{S_PARTOFF} offen"])
    assert not rdl
    for x in pend: A(x)
    A("s_nop 3")
    for x in fold_pair(3): A(x)
    mstore([f"buffer_store_dwordx4 {vr(PK+4,4)}, v{V_PST}, {WS}, s{S_T0} offen"])
    A(f"""
    s_add_u32 s{S_MEMOFF}, s{S_MEMOFF}, 8192
    s_and_b32 s{S_MEMOFF}, s{S_MEMOFF}, {0xffff7fff:#x}
    s_xor_b32 s{S_T2}, s{S_MEMOFF}, 0x4000
    """)
    stamp(7)
    A(f"""
    s_add_u32 s{S_KMOFF}, s{S_KMOFF}, {32*2048}
    s_add_u32 s{S_VMOFF}, s{S_VMOFF}, {32*4096}
    s_add_u32 s{S_STEP}, s{S_STEP}, 1
    """)
    A(f"s_cmp_lg_u32 s{S_W}, 0\ns_cbranch_scc1 {L_next}")
    R = 72; SEL = 104; D = 108; TT = 112
    A(f"""
    s_mov_b32 s{S_EXEC}, 0x00030003
    s_mov_b32 s{S_EXEC+1}, 0x00030003
    s_lshl_b32 s{S_T0}, s{S_H}, 13
    s_add_u32 s{S_T0}, s{S_T0}, s{S_PARTOFF}
    s_add_u32 s{S_T1}, s{S_T0}, 4096
    s_mov_b32 s{S_CNT}, 0
    """)
    A(f"v_and_b32 v{TT}, 16, v{V_LANE16}\nv_mov_b32 v{TT+1}, 0x3f80\nv_lshlrev_b32 v{TT}, v{TT}, v{TT+1}\nv_mov_b64 {vr(TT+4,2)}, -1")
    for r in range(4):
        A(f"v_cndmask_b32 v{SEL+r}, 0, v{TT}, s[{S_EXEC}:{S_EXEC+1}]")
        if r < 3: A(f"s_lshl_b64 s[{S_EXEC}:{S_EXEC+1}], s[{S_EXEC}:{S_EXEC+1}], 2")
    for i in range(4, 12): A(f"v_mov_b64 {vr(QA+2*i,2)}, 0")
    for i in range(4): A(f"v_mov_b64 {vr(QA+2*i,2)}, 0")
    warm(rw, TT)
    A("s_mov_b64 vcc, -1")
    A.label(L_red)
    A("s_mov_b64 exec, vcc")
    for jj in range(8):
        A(f"buffer_load_dwordx4 {vr(R+4*jj,4)}, v{V_LANE16}, {WS}, s{S_T0 + jj//4} offen offset:{(jj%4)*1024} sc1")
    A(f"s_mov_b64 exec, -1\ns_add_u32 s{S_CNT}, s{S_CNT}, 1")
    warm(rw2, TT)
    for jj in range(8):
        A(f"s_waitcnt vmcnt({7-jj})")
        A(mf_s(D, SEL, R + 4 * jj, "0" if jj == 0 else vr(D, 4)))
        if jj % 2 == 1:
            A(f"v_bitop3_b32 v{TT + jj//2}, v{R+4*jj-4}, v{R+4*jj}, s{S_PHASE} bitop3:0x7e")
    A(f"""
    v_or3_b32 v{TT}, v{TT}, v{TT+1}, v{TT+2}
    v_or_b32 v{TT}, v{TT}, v{TT+3}
    v_and_b32 v{TT}, 1, v{TT}
    v_cmp_ne_u32 vcc, 0, v{TT}
    s_cmp_gt_u32 s{S_CNT}, {timeout}
    s_cbranch_scc1 {L_rok}
    s_cbranch_vccnz {L_red}
    """)
    A.label(L_rok)
    stamp(8)
    A(f"""
    s_mov_b64 exec, 0xffffffff
    v_cvt_pk_bf16_f32 v{D}, v{D}, v{D+1}
    v_cvt_pk_bf16_f32 v{D+1}, v{D+2}, v{D+3}
    v_min_u32 v{D}, s{S_SENT}, v{D}
    v_min_u32 v{D+1}, s{S_SENT}, v{D+1}
    """)
    mstore([f"buffer_store_dwordx2 {vr(D,2)}, v{V_MST}, {WS}, s{S_MEMOFF} offen",
            f"buffer_store_dwordx2 {vr(TT+4,2)}, v{V_MST}, {WS}, s{S_T2} offen"])
    A("s_mov_b64 exec, -1")
    warm(pr)
    L_n2 = A.newlabel("CH_n2")
    A(f"s_branch {L_n2}")
    A.label(L_next)
    A("s_nop 1")
    if kv_wait: kv_wait(A, 1)
    for i in range(4, 12): A(f"v_mov_b64 {vr(QA+2*i,2)}, 0")
    for i in range(4): A(f"v_mov_b64 {vr(QA+2*i,2)}, 0")
    warm(pw0)
    A.label(L_n2)
    if stamps and trace:
        stamp(9)
        A("s_waitcnt lgkmcnt(0)")
        A(f"s_sub_u32 s{S_T0}, s100, s94")
        if trace[0] == 8: A(f"s_lshl_b32 s{S_T0}, s{S_CNT}, 4\ns_add_u32 s{S_T0}, s{S_T0}, s{S_CNT2}")
        A(f"s_mov_b32 m0, s{S_STEP}\ns_nop 0\nv_writelane_b32 v0, s{S_T0}, m0")
    elif stamps:
        stamp(9)
        A("s_waitcnt lgkmcnt(0)")
        for i in range(1, NST):
            A(f"s_sub_u32 s{S_T0}, s{82+2*i}, s{82+2*(i-1)}")
            A(f"v_writelane_b32 v0, s{S_T0}, {i}")
        A(f"v_writelane_b32 v0, s{S_CNT}, 10")
        A(f"v_writelane_b32 v0, s{S_CNT2}, 11")
    A(f"""
    s_xor_b32 s{S_PARTOFF}, s{S_PARTOFF}, {0x40000}
    s_bfe_i32 s{S_PHASE}, s{S_STEP}, 0x10001
    s_branch {L_step}
    """)
    A.label(L_done)
    if prog: prog(A, 1)
    if timing:
        A(f"""
        s_memtime s[{S_TM+2}:{S_TM+3}]
        s_waitcnt lgkmcnt(0)
        s_sub_u32 s{S_TM+2}, s{S_TM+2}, s{S_TM}
        """)

def tk(path, **kw):
    C1.chain_loop = chain_loop8
    open(path, "w").write(C1.test_kernel(**kw))

if __name__ == "__main__":
    V = [dict(rw=60, pr=20, pw0=200, pw=40, rw2=40), dict(rw=40, pr=20, pw0=180, pw=40, rw2=40), dict(rw=20, pr=10, pw0=160, pw=40, rw2=40), dict(rw=50, pr=30, pw0=200, pw=30, rw2=30)]
    for i, v in enumerate(V):
        tk(f"c8_{i}.s", **v)
    for a, b in [(0, 9), (0, 2), (2, 5), (5, 6), (6, 7), (7, 9)]:
        tk(f"c8_tr{a}{b}.s", stamps=True, trace=(a, b), **V[0])
```

```python
from dsl import *
from layout import *

class Q:
    def __init__(self, A, name, maxc):
        self.A, self.name, self.maxc = A, name, maxc
        self.q = []
    def issue(self, tag):
        self.q.append(tag)
        if len(self.q) > self.maxc:
            raise RuntimeError(f"{self.name} overflow {len(self.q)}")
    def wait(self, tag):
        idx = [i for i, t in enumerate(self.q) if t == tag]
        if not idx: return
        last = idx[-1]
        n = len(self.q) - 1 - last
        self.A(f"s_waitcnt {self.name}({n})")
        self.q = self.q[last + 1:]
    def drain(self):
        if self.q:
            self.A(f"s_waitcnt {self.name}(0)")
            self.q = []
    def room(self, n):
        over = len(self.q) + n - self.maxc
        if over > 0:
            keep = len(self.q) - over
            self.A(f"s_waitcnt {self.name}({keep})")
            self.q = self.q[over:]

class GemmCfg:
    def __init__(self, **kw):
        self.np = 4; self.nw = 8; self.wp = 4; self.ww = 1
        self.BK = 64; self.NS = 4; self.PD = 2; self.RW = 4
        self.wkind = "tr"
        self.kpat = "nat"
        self.orient = "WP"
        self.lds_base = 0
        self.early = True
        self.__dict__.update(kw)
        self.BN = self.nw * self.ww * 16
        self.BM = self.np * self.wp * 16
        self.stage_bytes = self.BK * self.BN * 2
        self.dma_per_wave = self.stage_bytes // 4096
        self.kshift = 0 if self.BN >= 128 else 1
        self.nsets = (self.NS * self.stage_bytes + 65535) // 65536 if self.stage_bytes <= 32768 else 1
        assert self.stage_bytes % 4096 == 0

G_VL16 = 1
G_VDMA = 2
G_VRD = 18
G_VT = 34
G_VE = 40
G_VP = 48
G_SP = 8
G_SW = 12
G_SWV = 29
G_ST = 42
G_SPOFF = 48
G_SWOFF = 49
G_SLOOP = 50
G_SM0 = 51

def key8(row):
    return (row % 4) | ((((row // 4) ^ (row // 8)) % 2) << 2)

def gemm_setup_addr(A, c, wpitch):
    T0, T1, T2, T3 = G_VT, G_VT + 1, G_VT + 2, G_VT + 3
    A(f"v_and_b32 v{T0}, 63, v0")
    A(f"v_lshlrev_b32 v{G_VL16}, 4, v{T0}")
    rowbytes = c.BN * 2 if c.wkind == "tr" else c.BK * 2
    lanes_per_row = rowbytes // 16
    rows_per_instr = max(1, 64 // lanes_per_row)
    c.rows_per_instr = rows_per_instr
    if c.wkind == "tr":
        assert c.dma_per_wave <= 8 or True
        c.dma_v = []
        nuniq = min(c.dma_per_wave, 8)
        assert c.dma_per_wave <= 16
        for i in range(c.dma_per_wave):
            r = G_VDMA + i
            c.dma_v.append(r)
            A(f"s_mul_i32 s{G_ST}, s{G_SWV}, {c.dma_per_wave*64}")
            A(f"s_add_u32 s{G_ST}, s{G_ST}, {i*64}")
            A(f"v_add_u32 v{T1}, s{G_ST}, v{T0}")
            if lanes_per_row & (lanes_per_row - 1) == 0:
                sh = lanes_per_row.bit_length() - 1
                A(f"v_lshrrev_b32 v{T2}, {sh}, v{T1}")
                A(f"v_and_b32 v{T3}, {lanes_per_row-1}, v{T1}")
            else:
                magic = (1 << 20) // lanes_per_row + 1
                A(f"v_mul_u32_u24 v{T2}, {magic}, v{T1}")
                A(f"v_lshrrev_b32 v{T2}, 20, v{T2}")
                A(f"v_mul_u32_u24 v{T3}, {lanes_per_row}, v{T2}")
                A(f"v_sub_u32 v{T3}, v{T1}, v{T3}")
            A(f"v_lshrrev_b32 v{G_VT+4}, 2, v{T2}")
            A(f"v_lshrrev_b32 v{G_VT+5}, 3, v{T2}")
            A(f"v_xor_b32 v{G_VT+4}, v{G_VT+4}, v{G_VT+5}")
            A(f"v_and_b32 v{G_VT+4}, 1, v{G_VT+4}")
            A(f"v_and_b32 v{G_VT+5}, 3, v{T2}")
            A(f"v_lshl_or_b32 v{G_VT+4}, v{G_VT+4}, 2, v{G_VT+5}")
            if c.kshift: A(f"v_lshrrev_b32 v{G_VT+4}, {c.kshift}, v{G_VT+4}")
            A(f"v_lshlrev_b32 v{G_VT+4}, 1, v{G_VT+4}")
            A(f"v_xor_b32 v{T3}, v{T3}, v{G_VT+4}")
            A(f"s_mov_b32 s{G_ST}, {wpitch}")
            A(f"v_mul_lo_u32 v{T2}, v{T2}, s{G_ST}")
            A(f"v_lshl_add_u32 v{r}, v{T3}, 4, v{T2}")
        A(f"v_bfe_u32 v{T1}, v{T0}, 2, 2")
        A(f"v_lshrrev_b32 v{T2}, 4, v{T0}")
        for h in range(2):
            if c.kpat == "nat":
                A(f"v_lshl_add_u32 v{T3}, v{T2}, 3, v{T1}")
                if h: A(f"v_add_u32 v{T3}, 4, v{T3}")
            else:
                A(f"v_lshl_add_u32 v{T3}, v{T2}, 2, v{T1}")
                if h: A(f"v_add_u32 v{T3}, 16, v{T3}")
            A(f"v_lshrrev_b32 v{G_VT+4}, 2, v{T3}")
            A(f"v_lshrrev_b32 v{G_VT+5}, 3, v{T3}")
            A(f"v_xor_b32 v{G_VT+4}, v{G_VT+4}, v{G_VT+5}")
            A(f"v_and_b32 v{G_VT+4}, 1, v{G_VT+4}")
            A(f"v_and_b32 v{G_VT+5}, 3, v{T3}")
            A(f"v_lshl_or_b32 v{G_VT+4}, v{G_VT+4}, 2, v{G_VT+5}")
            if c.kshift: A(f"v_lshrrev_b32 v{G_VT+4}, {c.kshift}, v{G_VT+4}")
            A(f"v_mul_u32_u24 v{T3}, {rowbytes}, v{T3}")
            A(f"v_and_b32 v{G_VT+5}, 3, v{T0}")
            A(f"v_lshl_add_u32 v{T3}, v{G_VT+5}, 3, v{T3}")
            for j in range(min(8, c.nw)):
                r = G_VRD + h * 8 + j
                if c.ww == 1:
                    A(f"v_xor_b32 v{G_VT+5}, {j}, v{G_VT+4}")
                    A(f"v_lshl_add_u32 v{r}, v{G_VT+5}, 5, v{T3}")
                    if c.lds_base: A(f"v_add_u32 v{r}, {c.lds_base}, v{r}")
                    if c.nsets > 1:
                        assert c.nw <= 4 and c.nsets == 2
                        A(f"v_add_u32 v{r+4}, 0x10000, v{r}")
                else:
                    A(f"s_and_b32 s{G_ST}, s{G_SWV}, {c.ww-1}")
                    A(f"s_mul_i32 s{G_ST}, s{G_ST}, {c.nw}")
                    A(f"s_add_u32 s{G_ST}, s{G_ST}, {j}")
                    A(f"s_and_b32 s{G_ST+1}, s{G_ST}, 7")
                    A(f"s_lshr_b32 s{G_ST}, s{G_ST}, 3")
                    A(f"s_lshl_b32 s{G_ST}, s{G_ST}, 8")
                    A(f"s_add_u32 s{G_ST}, s{G_ST}, {c.lds_base}")
                    A(f"v_xor_b32 v{G_VT+5}, s{G_ST+1}, v{G_VT+4}")
                    A(f"v_lshl_add_u32 v{r}, v{G_VT+5}, 5, v{T3}")
                    A(f"v_add_u32 v{r}, s{G_ST}, v{r}")
    else:
        assert c.BK == 64 and c.ww == 1
        A(f"v_lshrrev_b32 v{T1}, 3, v{T0}")
        A(f"v_and_b32 v{T2}, 7, v{T0}")
        c.dma_v = []
        for par in range(2):
            r = G_VDMA + par
            A(f"v_lshrrev_b32 v{T3}, 1, v{T1}")
            if par: A(f"v_add_u32 v{T3}, 4, v{T3}")
            A(f"v_xor_b32 v{T3}, v{T3}, v{T2}")
            A(f"s_mov_b32 s{G_ST}, {wpitch}")
            A(f"v_mul_lo_u32 v{G_VT+4}, v{T1}, s{G_ST}")
            A(f"v_lshl_add_u32 v{r}, v{T3}, 4, v{G_VT+4}")
            A(f"s_mul_i32 s{G_ST}, s{G_SWV}, {c.dma_per_wave*8*wpitch}")
            A(f"v_add_u32 v{r}, s{G_ST}, v{r}")
        A(f"v_and_b32 v{T1}, 15, v{T0}")
        A(f"v_lshrrev_b32 v{T2}, 4, v{T0}")
        for kk in range(2):
            for p in range(2):
                r = G_VRD + kk * 2 + p
                A(f"v_lshrrev_b32 v{T3}, 1, v{T2}")
                A(f"v_add_u32 v{T3}, {4*kk+2*p}, v{T3}")
                A(f"v_lshrrev_b32 v{G_VT+4}, 1, v{T1}")
                A(f"v_xor_b32 v{T3}, v{T3}, v{G_VT+4}")
                A(f"v_lshlrev_b32 v{T3}, 4, v{T3}")
                A(f"v_and_b32 v{G_VT+4}, 1, v{T2}")
                A(f"v_lshl_add_u32 v{T3}, v{G_VT+4}, 3, v{T3}")
                A(f"v_lshl_add_u32 v{r}, v{T1}, 7, v{T3}")
                if c.lds_base: A(f"v_add_u32 v{r}, {c.lds_base}, v{r}")
                for st_ in range(1, c.nsets):
                    A(f"v_add_u32 v{r+4*st_}, {65536*st_}, v{r}")

def acc(c, i, j):
    return (i * c.nw + j) * 4

import math
def gemm_mainloop(A, c, nk32, p_tile_stride, wpitch, first=True, sc="", roll=True, pre_p=None):
    for a0 in (1, 2, 3, 4):
        try:
            _gemm_mainloop(Asm(), c, nk32, p_tile_stride, wpitch, first, None, None, sc, roll, a0, pre_p)
        except AssertionError as e:
            if "not periodic" in str(e): continue
            raise
        return _gemm_mainloop(A, c, nk32, p_tile_stride, wpitch, first, None, None, sc, roll, a0, pre_p)
    raise RuntimeError("no periodic schedule")

def _gemm_mainloop(A, c, nk32, p_tile_stride, wpitch, first, vq, lq, sc, roll, a0, pre_p=None):
    vq = vq or Q(A, "vmcnt", 63); lq = lq or Q(A, "lgkmcnt", 15)
    kps = c.BK // 32
    nst = nk32 // kps
    assert nk32 % kps == 0
    npsets = c.PD + 1
    def preg(t, i): return G_VP + ((t % npsets) * c.np + i) * 4
    WR = G_VP + npsets * c.np * 4
    def wreg(slot): return WR + (slot % c.RW) * 4
    c.vgpr_end = WR + c.RW * 4
    st = dict(pb=0, sb=0, nread=0)
    wadv = c.BK * wpitch if c.wkind == "tr" else c.BK * 2
    def dma(s):
        if s >= nst: return
        buf = c.lds_base + (s % c.NS) * c.stage_bytes
        A(f"s_add_u32 s{G_ST}, s{G_SWOFF}, {(s - st['sb']) * wadv}")
        for i in range(c.dma_per_wave):
            A(f"s_add_u32 m0, s{G_SM0}, {buf + i*1024}")
            if c.wkind == "tr":
                vq.room(1)
                A("s_nop 0")
                A(f"buffer_load_dwordx4 v{c.dma_v[i]}, s[{G_SW}:{G_SW+3}], s{G_ST} offen lds")
            else:
                if i: A(f"s_add_u32 s{G_ST}, s{G_ST}, {8*wpitch}")
                else: A("s_nop 0")
                vq.room(1)
                A(f"buffer_load_dwordx4 v{G_VDMA + (i&1)}, s[{G_SW}:{G_SW+3}], s{G_ST} offen lds")
            vq.issue(("D", s))
    def pload(t):
        if t >= nk32: return
        for i in range(c.np):
            off = i * p_tile_stride + (t - st['pb']) * 1024
            hi = off - off % 4096
            vq.room(1)
            if hi:
                A(f"s_add_u32 s{G_ST+1}, s{G_SPOFF}, {hi}")
                A(f"buffer_load_dwordx4 {vr(preg(t,i),4)}, v{G_VL16}, s[{G_SP}:{G_SP+3}], s{G_ST+1} offen offset:{off % 4096} {sc}")
            else:
                A(f"buffer_load_dwordx4 {vr(preg(t,i),4)}, v{G_VL16}, s[{G_SP}:{G_SP+3}], s{G_SPOFF} offen offset:{off} {sc}")
            vq.issue(("P", t))
    nseq = nk32 * c.nw
    def wread(n):
        t, j = divmod(n, c.nw)
        s, kk = divmod(t, kps)
        buf = (s % c.NS) * c.stage_bytes
        lq.room(2)
        if c.wkind == "tr":
            off = buf + kk * 32 * c.BN * 2 + (j // 8) * 256
            st_ = 0
            if off >= 65536 and c.nsets > 1: off -= 65536; st_ = 4
            assert off < 65536, off
            for h in range(2):
                A(f"ds_read_b64_tr_b16 {vr(wreg(n)+2*h,2)}, v{G_VRD + h*8 + j%8 + st_} offset:{off}")
                lq.issue(("W", n))
        else:
            off = buf % 65536 + j * 2048
            assert off < 65536, off
            for p in range(2):
                A(f"ds_read_b64 {vr(wreg(n)+2*p,2)}, v{G_VRD + kk*2 + p + 4*(buf // 65536)} offset:{off}")
                lq.issue(("W", n))
    A(f"s_mul_i32 s{G_SM0}, s{G_SWV}, {c.dma_per_wave*1024}")
    lead = c.NS - 2 if c.early else c.NS - 1
    assert lead >= 1
    for s in range(lead): dma(s)
    if pre_p:
        pre_p(A)
        vq.q = []
    for t in range(c.PD): pload(t)
    per_stage = kps * c.nw
    def kstep(t):
        pload(t + c.PD)
        for j in range(c.nw):
            n = t * c.nw + j
            lim = min(n + c.RW, nseq)
            if not c.early: lim = min(lim, (n // per_stage + 1) * per_stage)
            while st['nread'] < lim:
                if st['nread'] % per_stage == 0:
                    s = st['nread'] // per_stage
                    vq.wait(("D", s))
                    A("s_barrier")
                    dma(s + lead)
                wread(st['nread']); st['nread'] += 1
            if j == 0: vq.wait(("P", t))
            lq.wait(("W", n))
            for i in range(c.np):
                a = ar(acc(c, i, j), 4)
                cc = "0" if (first and t == 0) else a
                if c.orient == "WP":
                    A(f"v_mfma_f32_16x16x32_bf16 {a}, {vr(wreg(n),4)}, {vr(preg(t,i),4)}, {cc}")
                else:
                    A(f"v_mfma_f32_16x16x32_bf16 {a}, {vr(preg(t,i),4)}, {vr(wreg(n),4)}, {cc}")
    L = c.NS
    while (L * kps) % npsets or (L * per_stage) % c.RW: L += c.NS
    tail = max(lead + 1, (c.PD + kps - 1) // kps + 1)
    nit = (nst - a0 - tail) // L if roll else 0
    if nit < 2:
        for t in range(nk32): kstep(t)
        return vq, lq
    for t in range(a0 * kps): kstep(t)
    def norm(q, t0):
        d = {"D": t0 // kps, "P": t0, "W": t0 * c.nw}
        return [(k, i - d[k]) if k in d else (k, i) for k, i in q]
    t0 = a0 * kps
    lab = A.newlabel("GL")
    A(f"s_mov_b32 s{G_SLOOP}, {nit}")
    sv, sl, sn = norm(vq.q, t0), norm(lq.q, t0), st['nread'] - t0 * c.nw
    A.label(lab)
    for t in range(t0, t0 + L * kps): kstep(t)
    t1 = t0 + L * kps
    assert norm(vq.q, t1) == sv and norm(lq.q, t1) == sl and st['nread'] - t1 * c.nw == sn, ("not periodic", sv, norm(vq.q, t1))
    A(f"s_add_u32 s{G_SPOFF}, s{G_SPOFF}, {L*kps*1024}")
    A(f"s_add_u32 s{G_SWOFF}, s{G_SWOFF}, {L*wadv}")
    A(f"s_sub_u32 s{G_SLOOP}, s{G_SLOOP}, 1")
    A(f"s_cmp_lg_u32 s{G_SLOOP}, 0")
    A(f"s_cbranch_scc1 {lab}")
    t2 = t0 + nit * L * kps
    sh = t2 - t1
    d = {"D": sh // kps, "P": sh, "W": sh * c.nw}
    vq.q = [(k, i + d[k]) if k in d else (k, i) for k, i in vq.q]
    lq.q = [(k, i + d[k]) if k in d else (k, i) for k, i in lq.q]
    st['nread'] += sh * c.nw
    st['pb'] = nit * L * kps; st['sb'] = nit * L
    for t in range(t2, nk32): kstep(t)
    return vq, lq
```

```python
from kernels import *
import chain as CH
import chain8 as CH2

F_XCC = 0
F_DEC = 8 * 128
F_TICK = 9 * 128
F_ZD = 10 * 128
F_CH2 = 11 * 128
F_KV = 16 * 128
F_Q = 24 * 128
F_U = 32 * 128
F_PR = 40 * 128
F_OX = 72 * 128
F_FIN = 200 * 128
LDS_MBOX = CH.LDS_END
LDS_MAIN = LDS_MBOX + 64
S_MODE = 31
S_FL = 84
S_TK = 88
S_GO = 89
S_HELD = 92
PSLEEP = 4
PO_START = 1168

def wg_atomic(A, off, val, dst, op="add", val2=None):
    L = A.newlabel("AT")
    A(f"s_cmp_lg_u32 s{G_SWV}, 0\ns_cbranch_scc1 {L}")
    A(f"v_mov_b32 v2, {off}" if isinstance(off, int) else f"v_mov_b32 v2, {off}")
    A(f"v_mov_b32 v4, {val}")
    if op == "cas": A(f"v_mov_b32 v5, {val2}")
    A(f"s_mov_b32 s{dst}, {WS_FLAG}")
    A("s_mov_b64 exec, 1")
    if op == "add":
        A(f"buffer_atomic_add v4, v2, s[{S_FL}:{S_FL+3}], s{dst} offen sc0 sc1")
    elif op == "cas":
        A(f"buffer_atomic_cmpswap v[4:5], v2, s[{S_FL}:{S_FL+3}], s{dst} offen sc0 sc1")
    elif op == "load":
        A(f"buffer_load_dword v4, v2, s[{S_FL}:{S_FL+3}], s{dst} offen sc1")
    A(f"v_mov_b32 v3, {LDS_MBOX}")
    A("s_waitcnt vmcnt(0)")
    A("ds_write_b32 v3, v4")
    A("s_mov_b64 exec, -1")
    A("s_waitcnt lgkmcnt(0)")
    A.label(L)
    A(f"""
    s_barrier
    v_mov_b32 v3, {LDS_MBOX}
    ds_read_b32 v4, v3
    s_waitcnt lgkmcnt(0)
    v_readfirstlane_b32 s{dst}, v4
    s_barrier
    """)

def signal(A, off_sgpr_or_int):
    L = A.newlabel("SG")
    A("s_waitcnt vmcnt(0)\ns_barrier")
    A(f"s_cmp_lg_u32 s{G_SWV}, 0\ns_cbranch_scc1 {L}")
    A(f"v_mov_b32 v2, {off_sgpr_or_int}")
    A(f"v_mov_b32 v4, 1\ns_mov_b32 s{G_ST}, {WS_FLAG}\ns_mov_b64 exec, 1")
    A(f"buffer_atomic_add v4, v2, s[{S_FL}:{S_FL+3}], s{G_ST} offen sc1")
    A("s_mov_b64 exec, -1")
    A.label(L)

def wait_flag(A, off, target, tmp_v, tmp_s, srd_s, sleep=2, timeout=400000):
    L = A.newlabel("WF"); L2 = A.newlabel("WFd")
    A(f"v_mov_b32 v{tmp_v}, {off}")
    A(f"s_mov_b32 s{tmp_s+1}, 0")
    A.label(L)
    A(f"""
    buffer_load_dword v{tmp_v+1}, v{tmp_v}, s[{srd_s}:{srd_s+3}], 0 offen sc1
    s_add_u32 s{tmp_s+1}, s{tmp_s+1}, 1
    s_waitcnt vmcnt(0)
    v_readfirstlane_b32 s{tmp_s}, v{tmp_v+1}
    s_cmp_ge_u32 s{tmp_s}, {target}
    s_cbranch_scc1 {L2}
    s_cmp_gt_u32 s{tmp_s+1}, {timeout}
    s_cbranch_scc1 {L2}
    s_sleep {sleep}
    s_branch {L}
    """)
    A.label(L2)

def order_ranges():
    R = []
    R.append((64, "KV", 0)); R.append((32, "Z2", 0)); R.append((56, "Z1", 0)); R.append((64, "KV", 1))
    R.append((256, "KV", 2)); R.append((56, "SP", 0)); R.append((128, "KV", 6)); R.append((256, "Q", 0))
    R.append((256, "FU", 0))
    R.append((1536, "PO", 0))
    return R

def dbg_time(A, slot, cond_h0=True, op="store", v=124):
    L = A.newlabel("DT")
    if cond_h0:
        A(f"s_cmp_lg_u32 s{CH.S_H}, 0\ns_cbranch_scc1 {L}")
    A(f"s_cmp_lg_u32 s{G_SWV}, 0\ns_cbranch_scc1 {L}")
    A(f"""
    s_memrealtime s[94:95]
    s_waitcnt lgkmcnt(0)
    v_mov_b32 v{v}, {WS_FLAG + 0x10100 + slot*4}
    v_mov_b32 v{v+1}, s94
    s_mov_b64 exec, 1
    """)
    if op == "store": A(f"buffer_store_dword v{v+1}, v{v}, s[{S_FL}:{S_FL+3}], 0 offen")
    else: A(f"buffer_atomic_umax v{v+1}, v{v}, s[{S_FL}:{S_FL+3}], 0 offen")
    A("s_mov_b64 exec, -1\ns_waitcnt vmcnt(0)")
    A.label(L)

def main_kernel(chain_kw={}, force_abort=False, dbg=False, no_cand=False):
    def fn(A):
        A.raw(kernel_head("main_kernel"))
        A("s_cmp_lt_u32 s2, 256\ns_cbranch_scc1 L_m_start\ns_endpgm")
        A.label("L_m_start")
        A(f"s_mov_b32 s{S_HELD}, 0")
        load_ptr(A, 80, "ws")
        wave_id(A)
        A(f"s_getreg_b32 s3, hwreg(HW_REG_XCC_ID)\ns_and_b32 s3, s3, 7\ns_mov_b32 s{S_GO}, 0\ns_waitcnt lgkmcnt(0)")
        srd(A, S_FL, 80, WS_SIZE)
        A(f"s_cmp_lg_u32 s3, {9 if no_cand else 0}\ns_cbranch_scc1 L_m_work")
        wg_atomic(A, F_XCC, 1, CH.S_H)
        A(f"s_cmp_ge_u32 s{CH.S_H}, 32\ns_cbranch_scc1 L_m_work")
        A(f"s_mov_b32 s{S_MODE}, 0")
        A.label("L_m_chain")
        if dbg: dbg_time(A, 0)
        A(f"""
        s_load_dwordx4 s[72:75], s[0:1], 16
        s_load_dwordx4 s[76:79], s[0:1], 32
        s_waitcnt lgkmcnt(0)
        """)
        CH.chain_setup(A)
        CH.chain_load_weights(A)
        A(f"s_cmp_lg_u32 s{S_MODE}, 0\ns_cbranch_scc1 L_m_go")
        A(f"""
        v_mov_b32 v16, {WS_FLAG + F_XCC}
        s_mov_b32 s{CH.S_CNT}, 0
        """)
        A.label("L_m_cnt")
        A(f"""
        buffer_load_dword v17, v16, s[{S_FL}:{S_FL+3}], 0 offen sc1
        s_add_u32 s{CH.S_CNT}, s{CH.S_CNT}, 1
        s_waitcnt vmcnt(0)
        v_readfirstlane_b32 s{CH.S_T0}, v17
        s_mov_b32 s{CH.S_T1}, 1
        s_cmp_ge_u32 s{CH.S_T0}, {33 if force_abort else 32}
        s_cbranch_scc1 L_m_dec
        s_mov_b32 s{CH.S_T1}, 2
        s_cmp_gt_u32 s{CH.S_CNT}, 200
        s_cbranch_scc1 L_m_dec
        s_sleep 8
        s_branch L_m_cnt
        """)
        A.label("L_m_dec")
        A(f"""
        v_mov_b32 v16, {WS_FLAG + F_DEC}
        v_mov_b32 v18, s{CH.S_T1}
        v_mov_b32 v19, 0
        s_mov_b64 exec, 1
        buffer_atomic_cmpswap v[18:19], v16, s[{S_FL}:{S_FL+3}], 0 offen sc0 sc1
        s_waitcnt vmcnt(0)
        v_readfirstlane_b32 s{CH.S_T0}, v18
        s_mov_b64 exec, -1
        s_cmp_eq_u32 s{CH.S_T0}, 0
        s_cselect_b32 s{CH.S_T0}, s{CH.S_T1}, s{CH.S_T0}
        s_cmp_eq_u32 s{CH.S_T0}, 1
        s_cbranch_scc1 L_m_go
        s_barrier
        s_branch L_m_work
        """)
        A.label("L_m_go")
        if dbg: dbg_time(A, 1)
        def kv_wait(A, which):
            if which == 0:
                wait_flag(A, WS_FLAG + F_KV, 64, CH2.QF, CH.S_T0, CH.S_WS, sleep=1)
                if dbg: dbg_time(A, 2)
            else:
                L = A.newlabel("KW")
                A(f"""
                s_cmp_lg_u32 s{CH.S_W}, 1
                s_cbranch_scc1 {L}
                s_add_u32 s{CH.S_T2}, s{CH.S_STEP}, 1
                s_and_b32 s{CH.S_T0}, s{CH.S_T2}, 7
                s_cmp_lg_u32 s{CH.S_T0}, 0
                s_cbranch_scc1 {L}
                s_cmp_ge_u32 s{CH.S_T2}, 64
                s_cbranch_scc1 {L}
                s_lshl_b32 s{CH.S_T2}, s{CH.S_T2}, 4
                s_add_u32 s{CH.S_T2}, s{CH.S_T2}, {WS_FLAG + F_KV}
                """)
                wait_flag(A, f"s{CH.S_T2}", 64, CH2.QF, CH.S_T0, CH.S_WS, sleep=1)
                A.label(L)
        def prog(A, last):
            L = A.newlabel("PG")
            if last:
                A("s_waitcnt vmcnt(0)\ns_barrier")
                A(f"s_add_u32 s{CH.S_STEP}, s{CH.S_STEP}, 1")
            A(f"""
            s_cmp_lg_u32 s{CH.S_W}, 1
            s_cbranch_scc1 {L}
            s_cmp_eq_u32 s{CH.S_STEP}, 0
            s_cbranch_scc1 {L}
            s_sub_u32 s{CH.S_T2}, s{CH.S_STEP}, 1
            s_lshr_b32 s{CH.S_T2}, s{CH.S_T2}, 1
            s_lshl_b32 s{CH.S_T2}, s{CH.S_T2}, 7
            s_add_u32 s{CH.S_T2}, s{CH.S_T2}, {WS_FLAG + F_PR}
            v_mov_b32 v{CH2.QF}, 0
            v_mov_b32 v{CH2.QF+1}, 1
            s_mov_b64 exec, 1
            buffer_atomic_add v{CH2.QF+1}, v{CH2.QF}, s[{CH.S_WS}:{CH.S_WS+3}], s{CH.S_T2} offen sc1
            s_mov_b64 exec, -1
            """)
            A.label(L)
        A(f"s_cmp_lg_u32 s{S_MODE}, 0\ns_cbranch_scc1 L_m_slow")
        CH2.chain_loop8(A, st="", timeout=300000, kvld="sc1", kv_wait=kv_wait, exp_st="sc1", prog=prog, **chain_kw)
        A("s_branch L_m_cend")
        A.label("L_m_slow")
        kw2 = {k: v for k, v in chain_kw.items() if k not in ("stamps", "trace")}
        CH2.chain_loop8(A, st="sc1", timeout=300000, kvld="sc1", kv_wait=kv_wait, exp_st="sc1", prog=prog, **kw2)
        A.label("L_m_cend")
        if dbg: dbg_time(A, 3)
        if chain_kw.get("trace"):
            A(f"""
            s_cmp_lg_u32 s{CH.S_H}, 0
            s_cbranch_scc1 L_tr_skip
            s_cmp_lg_u32 s{G_SWV}, 0
            s_cbranch_scc1 L_tr_skip
            v_lshrrev_b32 v20, 2, v{CH.V_LANE16}
            s_mov_b32 s3, {WS_FLAG + 0x10000}
            buffer_store_dword v0, v20, s[{CH.S_WS}:{CH.S_WS+3}], s3 offen
            s_waitcnt vmcnt(0)
            """)
            A.label("L_tr_skip")
            A(f"v_lshrrev_b32 v0, 4, v{CH.V_LANE16}\nv_mov_b32 v20, s{G_SWV}\nv_lshl_add_u32 v0, v20, 6, v0")
        A(f"s_mov_b32 s{S_GO}, 1\ns_barrier")
        A.label("L_m_work")
        wave_id(A)
        gelu_consts(A)
        A(f"s_cmp_eq_u32 s{S_HELD}, 1\ns_mov_b32 s{S_HELD}, 0\ns_cbranch_scc1 L_m_disp")
        A.label("L_m_next")
        A(f"s_cmp_eq_u32 s{S_GO}, 1\ns_cbranch_scc1 L_m_tick")
        wg_atomic(A, F_DEC, 0, S_GO, op="load")
        A(f"s_cmp_lg_u32 s{S_GO}, 2\ns_cbranch_scc1 L_m_tick")
        wg_atomic(A, F_CH2, 1, CH.S_H)
        A(f"s_mov_b32 s{S_GO}, 1\ns_mov_b32 s{S_MODE}, 1\ns_cmp_lt_u32 s{CH.S_H}, 32\ns_cbranch_scc1 L_m_chain")
        A.label("L_m_tick")
        wg_atomic(A, F_TICK, 1, S_TK)
        A(f"s_cmp_eq_u32 s{S_GO}, 1\ns_cbranch_scc1 L_m_disp\ns_cmp_lt_u32 s{S_TK}, {PO_START}\ns_cbranch_scc1 L_m_disp")
        A(f"s_mov_b32 s{S_HELD}, 0")
        A.label("L_m_res")
        wg_atomic(A, F_DEC, 0, S_GO, op="load")
        A(f"""
        s_cmp_eq_u32 s{S_GO}, 1
        s_cbranch_scc1 L_m_res1
        s_cmp_eq_u32 s{S_GO}, 2
        s_cbranch_scc1 L_m_res2
        s_sleep 20
        s_add_u32 s{S_HELD}, s{S_HELD}, 1
        s_cmp_lt_u32 s{S_HELD}, 400
        s_cbranch_scc1 L_m_res
        """)
        wg_atomic(A, F_DEC, 2, S_GO, op="cas", val2=0)
        A("s_branch L_m_res")
        A.label("L_m_res1")
        A(f"s_mov_b32 s{S_HELD}, 0\ns_branch L_m_disp")
        A.label("L_m_res2")
        wg_atomic(A, F_CH2, 1, CH.S_H)
        A(f"s_mov_b32 s{S_GO}, 1\ns_mov_b32 s{S_MODE}, 1\ns_mov_b32 s{S_HELD}, 1\ns_cmp_lt_u32 s{CH.S_H}, 32\ns_cbranch_scc1 L_m_chain\ns_mov_b32 s{S_HELD}, 0")
        A.label("L_m_disp")
        srd(A, G_SP, 80, WS_SIZE)
        start = 0
        for n, kind, base in order_ranges():
            L = A.newlabel("RG")
            A(f"s_cmp_ge_u32 s{S_TK}, {start + n}\ns_cbranch_scc1 {L}")
            A(f"s_sub_u32 s3, s{S_TK}, {start}")
            if kind == "KV":
                A(f"s_add_u32 s3, s3, {base*64}")
            elif kind == "Q":
                A(f"s_add_u32 s3, s3, {base}")
            ljump(A, f"L_w_{kind}", True)
            A.label(L)
            start += n
        if dbg: dbg_time(A, 4, False, "max")
        A("s_waitcnt vmcnt(0)\ns_endpgm")
        A.label("L_w_KV")
        A("s_load_dwordx4 s[16:19], s[0:1], 24")
        gemm_setup_addr(A, C_QK, 8192); qkv_epi_addr(A)
        A(f"s_and_b32 s{S_HD}, s3, 31\ns_lshr_b32 s{S_RB}, s3, 6\ns_bitcmp1_b32 s3, 5\ns_waitcnt lgkmcnt(0)\ns_cbranch_scc1 L_w_V")
        srd(A, G_SW, 16, 4 << 20)
        qkv_tile(A, "K", st="sc1")
        A("s_branch L_w_KVd")
        A.label("L_w_V")
        srd(A, G_SW, 18, 4 << 20)
        qkv_tile(A, "V", st="sc1")
        A.label("L_w_KVd")
        A(f"s_lshl_b32 s3, s{S_RB}, 7\ns_add_u32 s3, s3, {F_KV}")
        signal(A, "s3")
        ljump(A, "L_m_next", False)
        A.label("L_w_Q")
        load_ptr(A, 16, "wq")
        gemm_setup_addr(A, C_QK, 8192)
        A(f"s_and_b32 s{S_HD}, s3, 31\ns_lshr_b32 s{S_RB}, s3, 5\ns_waitcnt lgkmcnt(0)")
        srd(A, G_SW, 16, 4 << 20)
        qkv_tile(A, "Q", st="sc1")
        A(f"s_lshl_b32 s3, s{S_RB}, 7\ns_add_u32 s3, s3, {F_Q}")
        signal(A, "s3")
        ljump(A, "L_m_next", False)
        A.label("L_w_Z2")
        load_ptr(A, 16, "win")
        gemm_setup_addr(A, C_Z2, 3584)
        A(f"s_mov_b32 s{S_RB}, s3\ns_waitcnt lgkmcnt(0)")
        srd(A, G_SW, 16, 512 * 3584)
        z2_tile(A, st="sc1")
        signal(A, F_ZD)
        ljump(A, "L_m_next", False)
        A.label("L_w_Z1")
        load_ptr(A, 16, "win")
        gemm_setup_addr(A, C_Z1, 3584)
        A(f"s_and_b32 s{S_RB}, s3, 7\ns_lshr_b32 s{S_HD}, s3, 3\ns_waitcnt lgkmcnt(0)")
        srd(A, G_SW, 16, 512 * 3584)
        z1_tile(A, st="sc1")
        signal(A, F_ZD)
        ljump(A, "L_m_next", False)
        A.label("L_w_SP")
        load_ptr(A, 16, "wsp"); load_ptr(A, 18, "bsp")
        gemm_setup_addr(A, C_SP, 4096)
        A(f"s_and_b32 s{S_RB}, s3, 7\ns_lshr_b32 s{S_HD}, s3, 3\ns_waitcnt lgkmcnt(0)")
        srd(A, G_SW, 16, 2048 * 4096); srd(A, S_BSP, 18, 4096)
        wait_flag(A, WS_FLAG + F_ZD, 88, G_VT, G_ST, S_FL, sleep=8)
        A("s_barrier")
        sp_tile(A, ld="sc1", st="sc1")
        A(f"s_lshl_b32 s3, s{S_RB}, 7\ns_add_u32 s3, s3, {F_U}")
        signal(A, "s3")
        ljump(A, "L_m_next", False)
        A.label("L_w_PO")
        if dbg:
            A("s_cmp_lg_u32 s3, 0\ns_cbranch_scc1 L_dbg_po")
            dbg_time(A, 5, False)
            A.label("L_dbg_po")
        A(f"""
        s_mul_i32 s30, s3, 1366
        s_lshr_b32 s30, s30, 16            ; grp = s3/48
        s_mul_i32 s31, s30, 48
        s_sub_u32 s31, s3, s31             ; r
        s_mov_b32 s{S_RB}, s30
        s_cmp_ge_u32 s31, 16
        s_cbranch_scc1 L_w_FIN
        """)
        attn_setup(A)
        A(f"s_lshr_b32 s3, s30, 2\ns_lshl_b32 s3, s3, 7\ns_add_u32 s3, s3, {WS_FLAG + F_KV}")
        wait_flag(A, "s3", 64, 8, G_ST, S_FL, sleep=16)
        A(f"s_add_u32 s3, s3, {F_Q - F_KV}")
        wait_flag(A, "s3", 32, 8, G_ST, S_FL, sleep=16)
        A(f"""
        s_lshl_b32 s30, s30, 1
        s_bfe_u32 s3, s31, 0x10001
        s_add_u32 s30, s30, s3             ; seg
        s_lshr_b32 s{S_HD}, s31, 2         ; octet
        s_and_b32 s31, s31, 1
        s_lshl_b32 s3, s{S_HD}, 1
        s_add_u32 s31, s31, s3
        s_lshl_b32 s31, s31, 2
        s_add_u32 s31, s31, s{G_SWV}       ; head
        """)
        def mid(A):
            A(f"s_lshl_b32 s3, s{S_RB}, 7\ns_add_u32 s3, s3, {WS_FLAG + F_PR}")
            wait_flag(A, "s3", 64, 220, 50, S_FL, sleep=PSLEEP)
            if dbg: dbg_time(A, 8, False, "max", v=222)
        attn_task(A, 30, 31, ld="sc1", st="sc1", mid=mid)
        if dbg:
            A("s_waitcnt vmcnt(0)")
            dbg_time(A, 6, False, "max")
        A(f"s_lshl_b32 s3, s{S_RB}, 2\ns_add_u32 s3, s3, s{S_HD}\ns_lshl_b32 s3, s3, 7\ns_add_u32 s3, s3, {F_OX}")
        signal(A, "s3")
        ljump(A, "L_m_next", False)
        A.label("L_w_FIN")
        load_ptr(A, 16, "wo"); load_ptr(A, 18, "wout"); load_ptr(A, 20, "x"); load_ptr(A, 22, "out")
        A(f"s_sub_u32 s31, s31, 16\ns_and_b32 s{S_HD}, s31, 7\ns_lshr_b32 s63, s31, 3\ns_waitcnt lgkmcnt(0)")
        def wait_ox(A):
            A(f"s_lshl_b32 s3, s{S_RB}, 3\ns_add_u32 s3, s3, s{S_HD}\ns_lshl_b32 s3, s3, 7\ns_add_u32 s3, s3, {WS_FLAG + F_FIN}")
            wait_flag(A, "s3", 1, G_VT, G_ST + 2, S_FL, sleep=PSLEEP)
            A(f"s_lshl_b32 s3, s{S_RB}, 2\ns_add_u32 s3, s3, s63\ns_lshl_b32 s3, s3, 7\ns_add_u32 s3, s3, {WS_FLAG + F_OX}")
            wait_flag(A, "s3", 4, G_VT, G_ST + 2, S_FL, sleep=PSLEEP)
            if dbg: dbg_time(A, 9, False, "max")
        final_split(A, "OX", ld="sc1", wait=wait_ox)
        A("s_branch L_w_FD")
        A.label("L_w_FU")
        load_ptr(A, 16, "wo"); load_ptr(A, 18, "wout"); load_ptr(A, 20, "x"); load_ptr(A, 22, "out")
        A(f"s_and_b32 s{S_HD}, s3, 7\ns_lshr_b32 s{S_RB}, s3, 3\ns_waitcnt lgkmcnt(0)")
        def wait_u(A):
            A(f"s_lshr_b32 s3, s{S_RB}, 2\ns_lshl_b32 s3, s3, 7\ns_add_u32 s3, s3, {WS_FLAG + F_U}")
            wait_flag(A, "s3", 7, G_VT, G_ST, S_FL, sleep=16)
        final_split(A, "U", ld="sc1", wait=wait_u)
        A.label("L_w_FD")
        A("s_waitcnt vmcnt(0)\ns_barrier")
        if dbg: dbg_time(A, 7, False, "max")
        A(f"s_lshl_b32 s3, s{S_RB}, 3\ns_add_u32 s3, s3, s{S_HD}\ns_lshl_b32 s3, s3, 7\ns_add_u32 s3, s3, {F_FIN}")
        wg_atomic(A, "s3", 1, 63)
        A("s_cmp_lg_u32 s63, 4\ns_cbranch_scc1 L_w_FE")
        final_finish(A)
        A.label("L_w_FE")
        ljump(A, "L_m_next", False)
        return kernel_desc("main_kernel", 512, 102, 256)
    return fn

HDR = open("parallel_sum__memory_aug_recurrent_mem_tr__mixer_gmlp__prompt.s.ref").read().split("; Override launch")[0]
def build_main(path, **kw):
    build([("prep_kernel", 160, 0), ("main_kernel", 256, LDS_MAIN)],
          [prep_kernel, main_kernel(**kw)], path)
    t = open(path).read()
    open(path, "w").write(HDR + t)
if __name__ == "__main__":
    ck = dict(rw=2, pr=3, pw0=12, pw=0, rw2=0, ow2=0, slp=True)
    build_main("m7.s", chain_kw=ck)
    build_main("m7_abort.s", chain_kw=ck, force_abort=True)
    build_main("m7_dbg.s", chain_kw=ck, dbg=True)
    build_main("m7_nocand.s", chain_kw=ck, no_cand=True)
    build_main(f"m7_rt.s", chain_kw=dict(stamps=True, trace=(0, 9, 1), **ck), dbg=True)
    for a, b in [(0, 9)]:
        build_main(f"m7_tr{a}{b}.s", chain_kw=dict(stamps=True, trace=(a, b), **ck), dbg=True)
```

```python
from kernels import *
import chain as CH
import chain8 as CH2

F_XCC = 0
F_DEC = 8 * 128
F_TICK = 9 * 128
F_ZD = 10 * 128
F_CH2 = 11 * 128
F_WL = 12 * 128
F_KV = 16 * 128
F_Q = 24 * 128
F_U = 32 * 128
F_PR = 40 * 128
F_OX = 72 * 128
F_FIN = 200 * 128
LDS_MBOX = CH.LDS_END
LDS_MAIN = LDS_MBOX + 64
S_MODE = 31
S_FL = 84
S_TK = 88
S_GO = 89
S_HELD = 92
PSLEEP = 4
GATE = 96
PO_START = 1168

def wg_atomic(A, off, val, dst, op="add", val2=None):
    L = A.newlabel("AT")
    A(f"s_cmp_lg_u32 s{G_SWV}, 0\ns_cbranch_scc1 {L}")
    A(f"v_mov_b32 v2, {off}" if isinstance(off, int) else f"v_mov_b32 v2, {off}")
    A(f"v_mov_b32 v4, {val}")
    if op == "cas": A(f"v_mov_b32 v5, {val2}")
    A(f"s_mov_b32 s{dst}, {WS_FLAG}")
    A("s_mov_b64 exec, 1")
    if op == "add":
        A(f"buffer_atomic_add v4, v2, s[{S_FL}:{S_FL+3}], s{dst} offen sc0 sc1")
    elif op == "cas":
        A(f"buffer_atomic_cmpswap v[4:5], v2, s[{S_FL}:{S_FL+3}], s{dst} offen sc0 sc1")
    elif op == "load":
        A(f"buffer_load_dword v4, v2, s[{S_FL}:{S_FL+3}], s{dst} offen sc1")
    A(f"v_mov_b32 v3, {LDS_MBOX}")
    A("s_waitcnt vmcnt(0)")
    A("ds_write_b32 v3, v4")
    A("s_mov_b64 exec, -1")
    A("s_waitcnt lgkmcnt(0)")
    A.label(L)
    A(f"""
    s_barrier
    v_mov_b32 v3, {LDS_MBOX}
    ds_read_b32 v4, v3
    s_waitcnt lgkmcnt(0)
    v_readfirstlane_b32 s{dst}, v4
    s_barrier
    """)

def signal(A, off_sgpr_or_int):
    L = A.newlabel("SG")
    A("s_waitcnt vmcnt(0)\ns_barrier")
    A(f"s_cmp_lg_u32 s{G_SWV}, 0\ns_cbranch_scc1 {L}")
    A(f"v_mov_b32 v2, {off_sgpr_or_int}")
    A(f"v_mov_b32 v4, 1\ns_mov_b32 s{G_ST}, {WS_FLAG}\ns_mov_b64 exec, 1")
    A(f"buffer_atomic_add v4, v2, s[{S_FL}:{S_FL+3}], s{G_ST} offen sc1")
    A("s_mov_b64 exec, -1")
    A.label(L)

def wait_flag(A, off, target, tmp_v, tmp_s, srd_s, sleep=2, timeout=400000):
    L = A.newlabel("WF"); L2 = A.newlabel("WFd")
    A(f"v_mov_b32 v{tmp_v}, {off}")
    A(f"s_mov_b32 s{tmp_s+1}, 0")
    A.label(L)
    A(f"""
    buffer_load_dword v{tmp_v+1}, v{tmp_v}, s[{srd_s}:{srd_s+3}], 0 offen sc1
    s_add_u32 s{tmp_s+1}, s{tmp_s+1}, 1
    s_waitcnt vmcnt(0)
    v_readfirstlane_b32 s{tmp_s}, v{tmp_v+1}
    s_cmp_ge_u32 s{tmp_s}, {target}
    s_cbranch_scc1 {L2}
    s_cmp_gt_u32 s{tmp_s+1}, {timeout}
    s_cbranch_scc1 {L2}
    s_sleep {sleep}
    s_branch {L}
    """)
    A.label(L2)

def order_ranges():
    R = []
    R.append((64, "KV", 0)); R.append((32, "Z2", 0)); R.append((56, "Z1", 0)); R.append((64, "KV", 1))
    R.append((256, "KV", 2)); R.append((56, "SP", 0)); R.append((128, "KV", 6)); R.append((256, "Q", 0))
    R.append((256, "FU", 0))
    R.append((1536, "PO", 0))
    return R

def dbg_time(A, slot, cond_h0=True, op="store", v=124):
    L = A.newlabel("DT")
    if cond_h0:
        A(f"s_cmp_lg_u32 s{CH.S_H}, 0\ns_cbranch_scc1 {L}")
    A(f"s_cmp_lg_u32 s{G_SWV}, 0\ns_cbranch_scc1 {L}")
    A(f"""
    s_memrealtime s[94:95]
    s_waitcnt lgkmcnt(0)
    v_mov_b32 v{v}, {WS_FLAG + 0x10100 + slot*4}
    v_mov_b32 v{v+1}, s94
    s_mov_b64 exec, 1
    """)
    if op == "store": A(f"buffer_store_dword v{v+1}, v{v}, s[{S_FL}:{S_FL+3}], 0 offen")
    else: A(f"buffer_atomic_umax v{v+1}, v{v}, s[{S_FL}:{S_FL+3}], 0 offen")
    A("s_mov_b64 exec, -1\ns_waitcnt vmcnt(0)")
    A.label(L)

def main_kernel(chain_kw={}, force_abort=False, dbg=False, no_cand=False):
    def fn(A):
        A.raw(kernel_head("main_kernel"))
        A("s_cmp_lt_u32 s2, 256\ns_cbranch_scc1 L_m_start\ns_endpgm")
        A.label("L_m_start")
        A(f"s_mov_b32 s{S_HELD}, 0\ns_mov_b32 s93, 0")
        load_ptr(A, 80, "ws")
        wave_id(A)
        A(f"s_getreg_b32 s3, hwreg(HW_REG_XCC_ID)\ns_and_b32 s3, s3, 7\ns_mov_b32 s{S_GO}, 0\ns_waitcnt lgkmcnt(0)")
        srd(A, S_FL, 80, WS_SIZE)
        A(f"s_cmp_lg_u32 s3, {9 if no_cand else 0}\ns_cbranch_scc1 L_m_work")
        wg_atomic(A, F_XCC, 1, CH.S_H)
        A(f"s_cmp_ge_u32 s{CH.S_H}, 32\ns_cbranch_scc1 L_m_work")
        A(f"s_mov_b32 s{S_MODE}, 0")
        A.label("L_m_chain")
        if dbg: dbg_time(A, 0)
        A(f"""
        s_load_dwordx4 s[72:75], s[0:1], 16
        s_load_dwordx4 s[76:79], s[0:1], 32
        s_waitcnt lgkmcnt(0)
        """)
        CH.chain_setup(A)
        CH.chain_load_weights(A)
        A(f"s_cmp_lg_u32 s{S_MODE}, 0\ns_cbranch_scc1 L_m_go")
        A(f"""
        s_cmp_lg_u32 s{G_SWV}, 3
        s_cbranch_scc1 L_m_wl
        v_mov_b32 v16, {WS_FLAG + F_WL}
        v_mov_b32 v17, 1
        s_mov_b64 exec, 1
        buffer_atomic_add v17, v16, s[{S_FL}:{S_FL+3}], 0 offen sc1
        s_mov_b64 exec, -1
        """)
        A.label("L_m_wl")
        A(f"""
        v_mov_b32 v16, {WS_FLAG + F_XCC}
        s_mov_b32 s{CH.S_CNT}, 0
        """)
        A.label("L_m_cnt")
        A(f"""
        buffer_load_dword v17, v16, s[{S_FL}:{S_FL+3}], 0 offen sc1
        s_add_u32 s{CH.S_CNT}, s{CH.S_CNT}, 1
        s_waitcnt vmcnt(0)
        v_readfirstlane_b32 s{CH.S_T0}, v17
        s_mov_b32 s{CH.S_T1}, 1
        s_cmp_ge_u32 s{CH.S_T0}, {33 if force_abort else 32}
        s_cbranch_scc1 L_m_dec
        s_mov_b32 s{CH.S_T1}, 2
        s_cmp_gt_u32 s{CH.S_CNT}, 200
        s_cbranch_scc1 L_m_dec
        s_sleep 8
        s_branch L_m_cnt
        """)
        A.label("L_m_dec")
        A(f"""
        v_mov_b32 v16, {WS_FLAG + F_DEC}
        v_mov_b32 v18, s{CH.S_T1}
        v_mov_b32 v19, 0
        s_mov_b64 exec, 1
        buffer_atomic_cmpswap v[18:19], v16, s[{S_FL}:{S_FL+3}], 0 offen sc0 sc1
        s_waitcnt vmcnt(0)
        v_readfirstlane_b32 s{CH.S_T0}, v18
        s_mov_b64 exec, -1
        s_cmp_eq_u32 s{CH.S_T0}, 0
        s_cselect_b32 s{CH.S_T0}, s{CH.S_T1}, s{CH.S_T0}
        s_cmp_eq_u32 s{CH.S_T0}, 1
        s_cbranch_scc1 L_m_go
        s_barrier
        s_branch L_m_work
        """)
        A.label("L_m_go")
        if dbg: dbg_time(A, 1)
        def kv_wait(A, which):
            if which == 0:
                wait_flag(A, WS_FLAG + F_KV, 64, CH2.QF, CH.S_T0, CH.S_WS, sleep=1)
                if dbg: dbg_time(A, 2)
            else:
                L = A.newlabel("KW")
                A(f"""
                s_cmp_lg_u32 s{CH.S_W}, 1
                s_cbranch_scc1 {L}
                s_add_u32 s{CH.S_T2}, s{CH.S_STEP}, 1
                s_and_b32 s{CH.S_T0}, s{CH.S_T2}, 7
                s_cmp_lg_u32 s{CH.S_T0}, 0
                s_cbranch_scc1 {L}
                s_cmp_ge_u32 s{CH.S_T2}, 64
                s_cbranch_scc1 {L}
                s_lshl_b32 s{CH.S_T2}, s{CH.S_T2}, 4
                s_add_u32 s{CH.S_T2}, s{CH.S_T2}, {WS_FLAG + F_KV}
                """)
                wait_flag(A, f"s{CH.S_T2}", 64, CH2.QF, CH.S_T0, CH.S_WS, sleep=1)
                A.label(L)
        def prog(A, last):
            L = A.newlabel("PG")
            if last:
                A("s_waitcnt vmcnt(0)\ns_barrier")
                A(f"s_add_u32 s{CH.S_STEP}, s{CH.S_STEP}, 1")
            A(f"""
            s_cmp_lg_u32 s{CH.S_W}, 1
            s_cbranch_scc1 {L}
            s_cmp_eq_u32 s{CH.S_STEP}, 0
            s_cbranch_scc1 {L}
            s_sub_u32 s{CH.S_T2}, s{CH.S_STEP}, 1
            s_lshr_b32 s{CH.S_T2}, s{CH.S_T2}, 1
            s_lshl_b32 s{CH.S_T2}, s{CH.S_T2}, 7
            s_add_u32 s{CH.S_T2}, s{CH.S_T2}, {WS_FLAG + F_PR}
            v_mov_b32 v{CH2.QF}, 0
            v_mov_b32 v{CH2.QF+1}, 1
            s_mov_b64 exec, 1
            buffer_atomic_add v{CH2.QF+1}, v{CH2.QF}, s[{CH.S_WS}:{CH.S_WS+3}], s{CH.S_T2} offen sc1
            s_mov_b64 exec, -1
            """)
            A.label(L)
        A(f"s_cmp_lg_u32 s{S_MODE}, 0\ns_cbranch_scc1 L_m_slow")
        CH2.chain_loop8(A, st="", timeout=300000, kvld="sc1", kv_wait=kv_wait, exp_st="sc1", prog=prog, **chain_kw)
        A("s_branch L_m_cend")
        A.label("L_m_slow")
        kw2 = {k: v for k, v in chain_kw.items() if k not in ("stamps", "trace")}
        CH2.chain_loop8(A, st="sc1", timeout=300000, kvld="sc1", kv_wait=kv_wait, exp_st="sc1", prog=prog, **kw2)
        A.label("L_m_cend")
        if dbg: dbg_time(A, 3)
        if chain_kw.get("trace"):
            A(f"""
            s_cmp_lg_u32 s{CH.S_H}, 0
            s_cbranch_scc1 L_tr_skip
            s_cmp_lg_u32 s{G_SWV}, 0
            s_cbranch_scc1 L_tr_skip
            v_lshrrev_b32 v20, 2, v{CH.V_LANE16}
            s_mov_b32 s3, {WS_FLAG + 0x10000}
            buffer_store_dword v0, v20, s[{CH.S_WS}:{CH.S_WS+3}], s3 offen
            s_waitcnt vmcnt(0)
            """)
            A.label("L_tr_skip")
            A(f"v_lshrrev_b32 v0, 4, v{CH.V_LANE16}\nv_mov_b32 v20, s{G_SWV}\nv_lshl_add_u32 v0, v20, 6, v0")
        A(f"s_mov_b32 s{S_GO}, 1\ns_barrier")
        A.label("L_m_work")
        wave_id(A)
        gelu_consts(A)
        A(f"s_cmp_eq_u32 s{S_HELD}, 1\ns_mov_b32 s{S_HELD}, 0\ns_cbranch_scc1 L_m_disp")
        A.label("L_m_next")
        A(f"s_cmp_eq_u32 s{S_GO}, 1\ns_cbranch_scc1 L_m_tick")
        wg_atomic(A, F_DEC, 0, S_GO, op="load")
        A(f"s_cmp_lg_u32 s{S_GO}, 2\ns_cbranch_scc1 L_m_tick")
        wg_atomic(A, F_CH2, 1, CH.S_H)
        A(f"s_mov_b32 s{S_GO}, 1\ns_mov_b32 s{S_MODE}, 1\ns_cmp_lt_u32 s{CH.S_H}, 32\ns_cbranch_scc1 L_m_chain")
        A.label("L_m_tick")
        wg_atomic(A, F_TICK, 1, S_TK)
        A(f"s_cmp_eq_u32 s{S_GO}, 1\ns_cbranch_scc1 L_m_disp\ns_cmp_lt_u32 s{S_TK}, {PO_START}\ns_cbranch_scc1 L_m_disp")
        A(f"s_mov_b32 s{S_HELD}, 0")
        A.label("L_m_res")
        wg_atomic(A, F_DEC, 0, S_GO, op="load")
        A(f"""
        s_cmp_eq_u32 s{S_GO}, 1
        s_cbranch_scc1 L_m_res1
        s_cmp_eq_u32 s{S_GO}, 2
        s_cbranch_scc1 L_m_res2
        s_sleep 20
        s_add_u32 s{S_HELD}, s{S_HELD}, 1
        s_cmp_lt_u32 s{S_HELD}, 400
        s_cbranch_scc1 L_m_res
        """)
        wg_atomic(A, F_DEC, 2, S_GO, op="cas", val2=0)
        A("s_branch L_m_res")
        A.label("L_m_res1")
        A(f"s_mov_b32 s{S_HELD}, 0\ns_branch L_m_disp")
        A.label("L_m_res2")
        wg_atomic(A, F_CH2, 1, CH.S_H)
        A(f"s_mov_b32 s{S_GO}, 1\ns_mov_b32 s{S_MODE}, 1\ns_mov_b32 s{S_HELD}, 1\ns_cmp_lt_u32 s{CH.S_H}, 32\ns_cbranch_scc1 L_m_chain\ns_mov_b32 s{S_HELD}, 0")
        A.label("L_m_disp")
        srd(A, G_SP, 80, WS_SIZE)
        A(f"s_cmp_lt_u32 s{S_TK}, {GATE}\ns_cbranch_scc1 L_m_d2\ns_cmp_eq_u32 s93, 1\ns_cbranch_scc1 L_m_d2\ns_mov_b32 s93, 2")
        A.label("L_m_gw")
        wg_atomic(A, F_WL, 0, 3, op="load")
        A(f"s_cmp_ge_u32 s3, 32\ns_cbranch_scc1 L_m_gd\ns_add_u32 s93, s93, 1\ns_cmp_gt_u32 s93, 24\ns_cbranch_scc1 L_m_gd\ns_sleep 24\ns_branch L_m_gw")
        A.label("L_m_gd")
        A("s_mov_b32 s93, 1")
        A.label("L_m_d2")
        start = 0
        for n, kind, base in order_ranges():
            L = A.newlabel("RG")
            A(f"s_cmp_ge_u32 s{S_TK}, {start + n}\ns_cbranch_scc1 {L}")
            A(f"s_sub_u32 s3, s{S_TK}, {start}")
            if kind == "KV":
                A(f"s_add_u32 s3, s3, {base*64}")
            elif kind == "Q":
                A(f"s_add_u32 s3, s3, {base}")
            ljump(A, f"L_w_{kind}", True)
            A.label(L)
            start += n
        if dbg: dbg_time(A, 4, False, "max")
        A("s_waitcnt vmcnt(0)\ns_endpgm")
        A.label("L_w_KV")
        A("s_load_dwordx4 s[16:19], s[0:1], 24")
        gemm_setup_addr(A, C_QK, 8192); qkv_epi_addr(A)
        A(f"s_and_b32 s{S_HD}, s3, 31\ns_lshr_b32 s{S_RB}, s3, 6\ns_bitcmp1_b32 s3, 5\ns_waitcnt lgkmcnt(0)\ns_cbranch_scc1 L_w_V")
        srd(A, G_SW, 16, 4 << 20)
        qkv_tile(A, "K", st="sc1")
        A("s_branch L_w_KVd")
        A.label("L_w_V")
        srd(A, G_SW, 18, 4 << 20)
        qkv_tile(A, "V", st="sc1")
        A.label("L_w_KVd")
        A(f"s_lshl_b32 s3, s{S_RB}, 7\ns_add_u32 s3, s3, {F_KV}")
        signal(A, "s3")
        ljump(A, "L_m_next", False)
        A.label("L_w_Q")
        load_ptr(A, 16, "wq")
        gemm_setup_addr(A, C_QK, 8192)
        A(f"s_and_b32 s{S_HD}, s3, 31\ns_lshr_b32 s{S_RB}, s3, 5\ns_waitcnt lgkmcnt(0)")
        srd(A, G_SW, 16, 4 << 20)
        qkv_tile(A, "Q", st="sc1")
        A(f"s_lshl_b32 s3, s{S_RB}, 7\ns_add_u32 s3, s3, {F_Q}")
        signal(A, "s3")
        ljump(A, "L_m_next", False)
        A.label("L_w_Z2")
        load_ptr(A, 16, "win")
        gemm_setup_addr(A, C_Z2, 3584)
        A(f"s_mov_b32 s{S_RB}, s3\ns_waitcnt lgkmcnt(0)")
        srd(A, G_SW, 16, 512 * 3584)
        z2_tile(A, st="sc1")
        signal(A, F_ZD)
        ljump(A, "L_m_next", False)
        A.label("L_w_Z1")
        load_ptr(A, 16, "win")
        gemm_setup_addr(A, C_Z1, 3584)
        A(f"s_and_b32 s{S_RB}, s3, 7\ns_lshr_b32 s{S_HD}, s3, 3\ns_waitcnt lgkmcnt(0)")
        srd(A, G_SW, 16, 512 * 3584)
        z1_tile(A, st="sc1")
        signal(A, F_ZD)
        ljump(A, "L_m_next", False)
        A.label("L_w_SP")
        load_ptr(A, 16, "wsp"); load_ptr(A, 18, "bsp")
        gemm_setup_addr(A, C_SP, 4096)
        A(f"s_and_b32 s{S_RB}, s3, 7\ns_lshr_b32 s{S_HD}, s3, 3\ns_waitcnt lgkmcnt(0)")
        srd(A, G_SW, 16, 2048 * 4096); srd(A, S_BSP, 18, 4096)
        wait_flag(A, WS_FLAG + F_ZD, 88, G_VT, G_ST, S_FL, sleep=8)
        A("s_barrier")
        sp_tile(A, ld="sc1", st="sc1")
        A(f"s_lshl_b32 s3, s{S_RB}, 7\ns_add_u32 s3, s3, {F_U}")
        signal(A, "s3")
        ljump(A, "L_m_next", False)
        A.label("L_w_PO")
        if dbg:
            A("s_cmp_lg_u32 s3, 0\ns_cbranch_scc1 L_dbg_po")
            dbg_time(A, 5, False)
            A.label("L_dbg_po")
        A(f"""
        s_mul_i32 s30, s3, 1366
        s_lshr_b32 s30, s30, 16            ; grp = s3/48
        s_mul_i32 s31, s30, 48
        s_sub_u32 s31, s3, s31             ; r
        s_mov_b32 s{S_RB}, s30
        s_cmp_ge_u32 s31, 16
        s_cbranch_scc1 L_w_FIN
        """)
        attn_setup(A)
        A(f"s_lshr_b32 s3, s30, 2\ns_lshl_b32 s3, s3, 7\ns_add_u32 s3, s3, {WS_FLAG + F_KV}")
        wait_flag(A, "s3", 64, 8, G_ST, S_FL, sleep=16)
        A(f"s_add_u32 s3, s3, {F_Q - F_KV}")
        wait_flag(A, "s3", 32, 8, G_ST, S_FL, sleep=16)
        A(f"""
        s_lshl_b32 s30, s30, 1
        s_bfe_u32 s3, s31, 0x10001
        s_add_u32 s30, s30, s3             ; seg
        s_lshr_b32 s{S_HD}, s31, 2         ; octet
        s_and_b32 s31, s31, 1
        s_lshl_b32 s3, s{S_HD}, 1
        s_add_u32 s31, s31, s3
        s_lshl_b32 s31, s31, 2
        s_add_u32 s31, s31, s{G_SWV}       ; head
        """)
        def mid(A):
            A(f"s_lshl_b32 s3, s{S_RB}, 7\ns_add_u32 s3, s3, {WS_FLAG + F_PR}")
            wait_flag(A, "s3", 64, 220, 50, S_FL, sleep=PSLEEP)
            if dbg: dbg_time(A, 8, False, "max", v=222)
        attn_task(A, 30, 31, ld="sc1", st="sc1", mid=mid)
        if dbg:
            A("s_waitcnt vmcnt(0)")
            dbg_time(A, 6, False, "max")
        A(f"s_lshl_b32 s3, s{S_RB}, 2\ns_add_u32 s3, s3, s{S_HD}\ns_lshl_b32 s3, s3, 7\ns_add_u32 s3, s3, {F_OX}")
        signal(A, "s3")
        ljump(A, "L_m_next", False)
        A.label("L_w_FIN")
        load_ptr(A, 16, "wo"); load_ptr(A, 18, "wout"); load_ptr(A, 20, "x"); load_ptr(A, 22, "out")
        A(f"s_sub_u32 s31, s31, 16\ns_and_b32 s{S_HD}, s31, 7\ns_lshr_b32 s63, s31, 3\ns_waitcnt lgkmcnt(0)")
        def wait_ox(A):
            A(f"s_lshl_b32 s3, s{S_RB}, 3\ns_add_u32 s3, s3, s{S_HD}\ns_lshl_b32 s3, s3, 7\ns_add_u32 s3, s3, {WS_FLAG + F_FIN}")
            wait_flag(A, "s3", 1, G_VT, G_ST + 2, S_FL, sleep=PSLEEP)
            A(f"s_lshl_b32 s3, s{S_RB}, 2\ns_add_u32 s3, s3, s63\ns_lshl_b32 s3, s3, 7\ns_add_u32 s3, s3, {WS_FLAG + F_OX}")
            wait_flag(A, "s3", 4, G_VT, G_ST + 2, S_FL, sleep=PSLEEP)
            if dbg: dbg_time(A, 9, False, "max")
        final_split(A, "OX", ld="sc1", wait=wait_ox)
        A("s_branch L_w_FD")
        A.label("L_w_FU")
        load_ptr(A, 16, "wo"); load_ptr(A, 18, "wout"); load_ptr(A, 20, "x"); load_ptr(A, 22, "out")
        A(f"s_and_b32 s{S_HD}, s3, 7\ns_lshr_b32 s{S_RB}, s3, 3\ns_waitcnt lgkmcnt(0)")
        def wait_u(A):
            A(f"s_lshr_b32 s3, s{S_RB}, 2\ns_lshl_b32 s3, s3, 7\ns_add_u32 s3, s3, {WS_FLAG + F_U}")
            wait_flag(A, "s3", 7, G_VT, G_ST, S_FL, sleep=16)
        final_split(A, "U", ld="sc1", wait=wait_u)
        A.label("L_w_FD")
        A("s_waitcnt vmcnt(0)\ns_barrier")
        if dbg: dbg_time(A, 7, False, "max")
        A(f"s_lshl_b32 s3, s{S_RB}, 3\ns_add_u32 s3, s3, s{S_HD}\ns_lshl_b32 s3, s3, 7\ns_add_u32 s3, s3, {F_FIN}")
        wg_atomic(A, "s3", 1, 63)
        A("s_cmp_lg_u32 s63, 4\ns_cbranch_scc1 L_w_FE")
        final_finish(A)
        A.label("L_w_FE")
        ljump(A, "L_m_next", False)
        return kernel_desc("main_kernel", 512, 102, 256)
    return fn

HDR = open("parallel_sum__memory_aug_recurrent_mem_tr__mixer_gmlp__prompt.s.ref").read().split("; Override launch")[0]
def build_main(path, **kw):
    build([("prep_kernel", 160, 0), ("main_kernel", 256, LDS_MAIN)],
          [prep_kernel, main_kernel(**kw)], path)
    t = open(path).read()
    open(path, "w").write(HDR + t)
if __name__ == "__main__":
    ck = dict(rw=2, pr=3, pw0=12, pw=0, rw2=0, ow2=0, slp=True)
    build_main("m9.s", chain_kw=ck)
    build_main("m9_abort.s", chain_kw=ck, force_abort=True)
    build_main("m9_dbg.s", chain_kw=ck, dbg=True)
    build_main("m9_nocand.s", chain_kw=ck, no_cand=True)
    build_main(f"m9_rt.s", chain_kw=dict(stamps=True, trace=(0, 9, 1), **ck), dbg=True)
    for a, b in [(0, 9)]:
        build_main(f"m9_tr{a}{b}.s", chain_kw=dict(stamps=True, trace=(a, b), **ck), dbg=True)
```

```python
from dsl import *
from layout import *
from gemm import *

KA = dict(x=0, mem0=8, wq=16, wk=24, wv=32, wo=40, seg=48, bx=56, win=64, wsp=72, bsp=80, wout=88, out=96, dbg=104, ws=112)

def load_ptr(A, dst, name):
    A(f"s_load_dwordx2 s[{dst}:{dst+1}], s[0:1], {KA[name]}")

def prep_kernel(A):
    A.raw(kernel_head("prep_kernel"))
    A("s_cmp_ge_u32 s2, 160\ns_cbranch_scc1 L_prep_exit")
    load_ptr(A, 4, "x"); load_ptr(A, 6, "ws"); load_ptr(A, 20, "mem0")
    A("s_waitcnt lgkmcnt(0)")
    srd(A, 8, 4, 2 << 20); srd(A, 12, 6, WS_SIZE); srd(A, 16, 20, 8192)
    A("s_cmp_ge_u32 s2, 128\ns_cbranch_scc1 L_prep_fill")
    A("""
    v_lshrrev_b32 v1, 4, v0
    v_and_b32 v2, 15, v0               ; l16
    s_lshl_b32 s3, s2, 14              ; tile*16*1024
    v_lshlrev_b32 v3, 10, v1
    v_lshl_add_u32 v3, v2, 4, v3       ; token*1024 + l16*16
    buffer_load_dwordx4 v[8:11], v3, s[8:11], s3 offen
    buffer_load_dwordx4 v[12:15], v3, s[8:11], s3 offen offset:256
    buffer_load_dwordx4 v[16:19], v3, s[8:11], s3 offen offset:512
    buffer_load_dwordx4 v[20:23], v3, s[8:11], s3 offen offset:768
    s_mov_b32 s22, 0xffff0000
    s_waitcnt vmcnt(0)
    """)
    for i in range(16):
        A(f"v_lshlrev_b32 v{32+2*i}, 16, v{8+i}")
        A(f"v_and_b32 v{33+2*i}, s22, v{8+i}")
    A("v_add_f32 v4, v32, v33")
    for i in range(2, 32): A(f"v_add_f32 v4, v4, v{32+i}")
    def red16(r):
        for ctl in ("quad_perm:[1,0,3,2]", "quad_perm:[2,3,0,1]", "row_half_mirror", "row_mirror"):
            A("s_nop 1")
            A(f"v_add_f32_dpp v{r}, v{r}, v{r} {ctl} row_mask:0xf bank_mask:0xf")
    red16(4)
    A("v_mul_f32 v4, 0x3b000000, v4")
    for i in range(32): A(f"v_sub_f32 v{32+i}, v{32+i}, v4")
    A("v_mul_f32 v5, v32, v32")
    for i in range(1, 32): A(f"v_fmac_f32 v5, v{32+i}, v{32+i}")
    red16(5)
    A("""
    v_mov_b32 v6, 0x3727c5ac
    v_fmac_f32 v6, 0x3b000000, v5
    v_rsq_f32 v6, v6
    s_nop 0
    """)
    for i in range(16):
        A(f"v_mul_f32 v{32+2*i}, v{32+2*i}, v6")
        A(f"v_mul_f32 v{33+2*i}, v{33+2*i}, v6")
        A(f"v_cvt_pk_bf16_f32 v{8+i}, v{32+2*i}, v{33+2*i}")
    A(f"""
    v_lshrrev_b32 v4, 2, v2
    v_lshlrev_b32 v4, 10, v4
    v_and_b32 v5, 3, v2
    v_lshl_add_u32 v4, v5, 8, v4
    v_lshl_add_u32 v4, v1, 4, v4
    s_add_u32 s3, s3, {WS_XN}
    s_add_u32 s22, s3, 4096
    s_add_u32 s23, s3, 8192
    s_add_u32 s24, s3, 12288
    buffer_store_dwordx4 v[8:11], v4, s[12:15], s3 offen
    buffer_store_dwordx4 v[12:15], v4, s[12:15], s22 offen
    buffer_store_dwordx4 v[16:19], v4, s[12:15], s23 offen
    buffer_store_dwordx4 v[20:23], v4, s[12:15], s24 offen
    s_branch L_prep_exit
    """)
    A.label("L_prep_fill")
    A(f"""
    s_sub_u32 s3, s2, 128
    v_lshlrev_b32 v1, 4, v0
    v_mov_b32 v4, -1
    v_mov_b32 v5, -1
    v_mov_b32 v6, -1
    v_mov_b32 v7, -1
    s_lshl_b32 s22, s3, 14
    s_add_u32 s23, s22, {WS_MEMF + 8192}
    s_add_u32 s22, s22, {WS_PART}
    """)
    for i in range(4):
        A(f"buffer_store_dwordx4 v[4:7], v1, s[12:15], s22 offen")
        A(f"buffer_store_dwordx4 v[4:7], v1, s[12:15], s23 offen")
        A("s_add_u32 s22, s22, 4096\ns_add_u32 s23, s23, 4096")
    A("s_cmp_lg_u32 s3, 0\ns_cbranch_scc1 L_prep_exit")
    A(f"""
    v_mov_b32 v4, 0
    v_mov_b32 v5, 0
    v_mov_b32 v6, 0
    v_mov_b32 v7, 0
    s_mov_b32 s22, {WS_FLAG}
    """)
    for i in range(16):
        A("buffer_store_dwordx4 v[4:7], v1, s[12:15], s22 offen\ns_add_u32 s22, s22, 4096")
    for it in range(4):
        A(f"""
        v_add_u32 v2, {it*256}, v0
        v_and_b32 v3, 1, v2                 ; th
        v_bfe_u32 v8, v2, 1, 2              ; ga
        v_bfe_u32 v9, v2, 5, 2
        v_bfe_u32 v10, v2, 3, 1
        v_lshl_add_u32 v9, v9, 1, v10       ; row
        v_bfe_u32 v10, v2, 4, 1             ; hf
        v_lshrrev_b32 v11, 7, v2            ; u
        v_lshlrev_b32 v12, 10, v9
        v_lshl_add_u32 v12, v11, 7, v12
        v_lshl_add_u32 v12, v8, 5, v12
        v_lshl_add_u32 v12, v3, 4, v12
        v_lshl_add_u32 v12, v10, 3, v12
        buffer_load_dwordx2 v[14:15], v12, s[16:19], 0 offen
        v_lshlrev_b32 v2, 3, v2
        s_mov_b32 s22, {WS_MEMF}
        s_mov_b32 s23, 0xfffffffe
        s_waitcnt vmcnt(0)
        v_min_u32 v14, s23, v14
        v_min_u32 v15, s23, v15
        buffer_store_dwordx2 v[14:15], v2, s[12:15], s22 offen
        """)
    A.label("L_prep_exit")
    A("s_waitcnt vmcnt(0)\ns_endpgm")
    return kernel_desc("prep_kernel", 64, 32, 64)

def ln_tile(A, s_tile, sx, sw, st=""):
    A(f"""
    v_lshrrev_b32 v1, 4, v0
    v_and_b32 v2, 15, v0
    s_lshl_b32 s25, s{s_tile}, 14
    v_lshlrev_b32 v3, 10, v1
    v_lshl_add_u32 v3, v2, 4, v3
    buffer_load_dwordx4 v[8:11], v3, s[{sx}:{sx+3}], s25 offen
    buffer_load_dwordx4 v[12:15], v3, s[{sx}:{sx+3}], s25 offen offset:256
    buffer_load_dwordx4 v[16:19], v3, s[{sx}:{sx+3}], s25 offen offset:512
    buffer_load_dwordx4 v[20:23], v3, s[{sx}:{sx+3}], s25 offen offset:768
    s_mov_b32 s22, 0xffff0000
    s_waitcnt vmcnt(0)
    """)
    for i in range(16):
        A(f"v_lshlrev_b32 v{32+2*i}, 16, v{8+i}")
        A(f"v_and_b32 v{33+2*i}, s22, v{8+i}")
    A("v_add_f32 v4, v32, v33")
    for i in range(2, 32): A(f"v_add_f32 v4, v4, v{32+i}")
    def red16(r):
        for ctl in ("quad_perm:[1,0,3,2]", "quad_perm:[2,3,0,1]", "row_half_mirror", "row_mirror"):
            A("s_nop 1")
            A(f"v_add_f32_dpp v{r}, v{r}, v{r} {ctl} row_mask:0xf bank_mask:0xf")
    red16(4)
    A("v_mul_f32 v4, 0x3b000000, v4")
    for i in range(32): A(f"v_sub_f32 v{32+i}, v{32+i}, v4")
    A("v_mul_f32 v5, v32, v32")
    for i in range(1, 32): A(f"v_fmac_f32 v5, v{32+i}, v{32+i}")
    red16(5)
    A("""
    v_mov_b32 v6, 0x3727c5ac
    v_fmac_f32 v6, 0x3b000000, v5
    v_rsq_f32 v6, v6
    s_nop 0
    """)
    for i in range(16):
        A(f"v_mul_f32 v{32+2*i}, v{32+2*i}, v6")
        A(f"v_mul_f32 v{33+2*i}, v{33+2*i}, v6")
        A(f"v_cvt_pk_bf16_f32 v{8+i}, v{32+2*i}, v{33+2*i}")
    A(f"""
    v_lshrrev_b32 v4, 2, v2
    v_lshlrev_b32 v4, 10, v4
    v_and_b32 v5, 3, v2
    v_lshl_add_u32 v4, v5, 8, v4
    v_lshl_add_u32 v4, v1, 4, v4
    s_add_u32 s25, s25, {WS_XN}
    s_add_u32 s22, s25, 4096
    s_add_u32 s23, s25, 8192
    s_add_u32 s24, s25, 12288
    buffer_store_dwordx4 v[8:11], v4, s[{sw}:{sw+3}], s25 offen {st}
    buffer_store_dwordx4 v[12:15], v4, s[{sw}:{sw+3}], s22 offen {st}
    buffer_store_dwordx4 v[16:19], v4, s[{sw}:{sw+3}], s23 offen {st}
    buffer_store_dwordx4 v[20:23], v4, s[{sw}:{sw+3}], s24 offen {st}
    s_nop 1
    """)

def wave_id(A):
    A(f"v_lshrrev_b32 v{G_VT}, 6, v0\ns_nop 0\nv_readfirstlane_b32 s{G_SWV}, v{G_VT}\ns_nop 3")

def acc_pack(A, dst, a0, a1, t):
    for r in range(4):
        A(f"v_accvgpr_read_b32 v{t+r}, a{a0+r}")
        A(f"v_accvgpr_read_b32 v{t+4+r}, a{a1+r}")
    A(f"v_cvt_pk_bf16_f32 v{dst}, v{t}, v{t+1}")
    A(f"v_cvt_pk_bf16_f32 v{dst+1}, v{t+2}, v{t+3}")
    A(f"v_cvt_pk_bf16_f32 v{dst+2}, v{t+4}, v{t+5}")
    A(f"v_cvt_pk_bf16_f32 v{dst+3}, v{t+6}, v{t+7}")

C_QK = GemmCfg(np=4, nw=8, wp=4, ww=1, orient="WP")
C_V = GemmCfg(np=4, nw=8, wp=4, ww=1, orient="PW")
S_RB, S_HD = 52, 53

def qkv_tile(A, kind, st=""):
    c = C_V if kind == "V" else C_QK
    c.dma_v = C_QK.dma_v
    A(f"""
    s_lshl_b32 s{G_SPOFF}, s{S_RB}, 2
    s_add_u32 s{G_SPOFF}, s{G_SPOFF}, s{G_SWV}
    s_lshl_b32 s{G_SPOFF}, s{G_SPOFF}, 16
    s_add_u32 s{G_SPOFF}, s{G_SPOFF}, {WS_XN}
    s_lshl_b32 s{G_SWOFF}, s{S_HD}, 8
    """)
    vq, lq = gemm_mainloop(A, c, 16, 16384, 8192)
    A(f"""
    s_lshl_b32 s{G_ST}, s{S_RB}, 2
    s_add_u32 s{G_ST}, s{G_ST}, s{G_SWV}
    s_lshl_b32 s{G_ST}, s{G_ST}, 6              ; seg0*32
    s_add_u32 s{G_ST}, s{G_ST}, s{S_HD}
    """)
    if kind == "Q":
        A(f"s_lshl_b32 s{G_ST}, s{G_ST}, 13\ns_add_u32 s{G_ST}, s{G_ST}, {WS_Q}")
        segstride = 32 * 8192
    else:
        A(f"s_lshl_b32 s{G_ST}, s{G_ST}, 14\ns_add_u32 s{G_ST}, s{G_ST}, {WS_KV + (8192 if kind == 'V' else 0)}")
        segstride = 32 * 16384
    A("s_nop 7")
    E = G_VP
    n = 0
    if kind in "KQ":
        for i in range(4):
            for kp in range(4):
                d = E + (n % 4) * 12; n += 1
                acc_pack(A, d, acc(c, i, 2 * kp), acc(c, i, 2 * kp + 1), d + 4)
                off = (i // 2) * segstride + (i % 2) * 4096 + kp * 1024
                A(f"s_add_u32 s{G_ST+1}, s{G_ST}, {off - off % 4096}")
                A(f"buffer_store_dwordx4 {vr(d,4)}, v{G_VL16}, s[{G_SP}:{G_SP+3}], s{G_ST+1} offen offset:{off % 4096} {st}")
    else:
        for sg in range(2):
            for j in range(8):
                d = E + (n % 4) * 12; n += 1
                acc_pack(A, d, acc(c, 2 * sg, j), acc(c, 2 * sg + 1, j), d + 4)
                off = sg * segstride + (j // 2) * 2048 + (j % 2) * 128
                A(f"s_add_u32 s{G_ST+1}, s{G_ST}, {off - off % 4096}")
                A(f"buffer_store_dwordx4 {vr(d,4)}, v{G_VE}, s[{G_SP}:{G_SP+3}], s{G_ST+1} offen offset:{off % 4096} {st}")

def qkv_epi_addr(A):
    A(f"""
    v_and_b32 v{G_VT}, 1, v0
    v_lshlrev_b32 v{G_VE}, 10, v{G_VT}
    v_bfe_u32 v{G_VT}, v0, 4, 2
    v_lshl_add_u32 v{G_VE}, v{G_VT}, 8, v{G_VE}
    v_bfe_u32 v{G_VT}, v0, 1, 3
    v_lshl_add_u32 v{G_VE}, v{G_VT}, 4, v{G_VE}
    """)

def qkv_kernel(A):
    A.raw(kernel_head("qkv_kernel"))
    A("s_cmp_ge_u32 s2, 768\ns_cbranch_scc1 L_qkv_exit")
    load_ptr(A, 4, "ws")
    A("s_load_dwordx4 s[16:19], s[0:1], 16\ns_load_dwordx2 s[20:21], s[0:1], 32")
    wave_id(A)
    gemm_setup_addr(A, C_QK, 8192)
    qkv_epi_addr(A)
    A(f"""
    s_and_b32 s{S_HD}, s2, 31
    s_bfe_u32 s{S_RB}, s2, 0x30005
    s_lshr_b32 s3, s2, 8
    s_waitcnt lgkmcnt(0)
    """)
    srd(A, G_SP, 4, WS_SIZE)
    A("s_cmp_eq_u32 s3, 1\ns_cbranch_scc1 L_qkv_V\ns_cmp_eq_u32 s3, 2\ns_cbranch_scc1 L_qkv_Q")
    srd(A, G_SW, 18, 4 << 20)
    qkv_tile(A, "K")
    A("s_branch L_qkv_exit")
    A.label("L_qkv_V")
    srd(A, G_SW, 20, 4 << 20)
    qkv_tile(A, "V")
    A("s_branch L_qkv_exit")
    A.label("L_qkv_Q")
    srd(A, G_SW, 16, 4 << 20)
    qkv_tile(A, "Q")
    A.label("L_qkv_exit")
    A("s_waitcnt vmcnt(0)\ns_endpgm")
    return kernel_desc("qkv_kernel", 256, 64, 128)


import math, struct
def f32(x): return struct.unpack("<I", struct.pack("<f", x))[0]
GC0 = -2.0 * 0.7978845608028654 * math.log2(math.e)
GC1 = GC0 * 0.044715
S_GC0, S_GC1 = 54, 55
def gelu_consts(A):
    A(f"s_mov_b32 s{S_GC0}, {f32(GC0):#x}\ns_mov_b32 s{S_GC1}, {f32(GC1):#x}")
def gelu_n(A, regs, t):
    n = len(regs)
    A(f"v_mov_b32 v{t+n}, s{S_GC0}")
    for i, r in enumerate(regs): A(f"v_mul_f32 v{t+i}, v{r}, v{r}")
    for i, r in enumerate(regs): A(f"v_fma_f32 v{t+i}, v{t+i}, s{S_GC1}, v{t+n}")
    for i, r in enumerate(regs): A(f"v_mul_f32 v{t+i}, v{t+i}, v{r}")
    for i, r in enumerate(regs): A(f"v_exp_f32 v{t+i}, v{t+i}")
    for i, r in enumerate(regs): A(f"v_add_f32 v{t+i}, 1.0, v{t+i}")
    for i, r in enumerate(regs): A(f"v_rcp_f32 v{t+i}, v{t+i}")
    A("s_nop 0")
    for i, r in enumerate(regs): A(f"v_mul_f32 v{r}, v{r}, v{t+i}")

C_Z1 = GemmCfg(np=4, nw=8, wp=4, ww=1, orient="WP")
def z1_tile(A, st=""):
    c = C_Z1
    A(f"""
    s_lshl_b32 s{G_SPOFF}, s{S_RB}, 2
    s_add_u32 s{G_SPOFF}, s{G_SPOFF}, s{G_SWV}
    s_lshl_b32 s{G_SPOFF}, s{G_SPOFF}, 16
    s_add_u32 s{G_SPOFF}, s{G_SPOFF}, {WS_XN}
    s_lshl_b32 s{G_SWOFF}, s{S_HD}, 8
    """)
    gemm_mainloop(A, c, 16, 16384, 3584)
    A(f"""
    s_lshl_b32 s{G_ST}, s{S_RB}, 2
    s_add_u32 s{G_ST}, s{G_ST}, s{G_SWV}
    s_mul_i32 s{G_ST}, s{G_ST}, {4*28672}
    s_lshl_b32 s{G_ST+1}, s{S_HD}, 12
    s_add_u32 s{G_ST}, s{G_ST}, s{G_ST+1}
    s_add_u32 s{G_ST}, s{G_ST}, {WS_Z1}
    s_nop 7
    """)
    E = G_VP; n = 0
    for i in range(4):
        for kp in range(4):
            b = E + (n % 2) * 24; n += 1
            for r in range(4):
                A(f"v_accvgpr_read_b32 v{b+r}, a{acc(c,i,2*kp)+r}")
                A(f"v_accvgpr_read_b32 v{b+4+r}, a{acc(c,i,2*kp+1)+r}")
            gelu_n(A, list(range(b, b + 8)), b + 8)
            for q in range(4): A(f"v_cvt_pk_bf16_f32 v{b+20+q}, v{b+2*q}, v{b+2*q+1}")
            A(f"s_add_u32 s{G_ST+1}, s{G_ST}, {i*28672}")
            A(f"buffer_store_dwordx4 {vr(b+20,4)}, v{G_VL16}, s[{G_SP}:{G_SP+3}], s{G_ST+1} offen offset:{kp*1024} {st}")

C_Z2 = GemmCfg(np=2, nw=14, wp=1, ww=4, orient="PW", BK=32, NS=2, early=False, RW=4, PD=3)
Z2_LDS_STAT = 2 * 57344
def z2_tile(A, st=""):
    c = C_Z2
    A(f"""
    s_mul_i32 s{G_SPOFF}, s{S_RB}, {c.np*16384}
    s_add_u32 s{G_SPOFF}, s{G_SPOFF}, {WS_XN}
    s_mov_b32 s{G_SWOFF}, 1792
    """)
    gemm_mainloop(A, c, 16, 16384, 3584)
    A("s_nop 7")
    SUM = 48; SQ = 64; X = 80; T = 96
    NQ = 4 * c.np
    for j in range(14):
        for i in range(c.np):
            for r in range(4): A(f"v_accvgpr_read_b32 v{X+i*4+r}, a{acc(c,i,j)+r}")
        gelu_n(A, list(range(X, X + NQ)), T)
        for q in range(NQ):
            if j == 0:
                A(f"v_mov_b32 v{SUM+q}, v{X+q}")
                A(f"v_mul_f32 v{SQ+q}, v{X+q}, v{X+q}")
            else:
                A(f"v_add_f32 v{SUM+q}, v{SUM+q}, v{X+q}")
                A(f"v_fmac_f32 v{SQ+q}, v{X+q}, v{X+q}")
            A(f"v_accvgpr_write_b32 a{acc(c,q//4,j)+q%4}, v{X+q}")
    for ctl in ("quad_perm:[1,0,3,2]", "quad_perm:[2,3,0,1]", "row_half_mirror", "row_mirror"):
        for q in list(range(NQ)) + list(range(16, 16 + NQ)):
            A(f"v_add_f32_dpp v{SUM+q}, v{SUM+q}, v{SUM+q} {ctl} row_mask:0xf bank_mask:0xf")
    A(f"v_and_b32 v{T}, 15, v0")
    A(f"v_mov_b32 v{X}, v{SUM}\nv_mov_b32 v{X+1}, v{SQ}")
    for q in range(1, NQ):
        A(f"v_cmp_eq_u32 vcc, {q}, v{T}")
        A("s_nop 1")
        A(f"v_cndmask_b32 v{X}, v{X}, v{SUM+q}, vcc")
        A(f"v_cndmask_b32 v{X+1}, v{X+1}, v{SQ+q}, vcc")
    A(f"""
    v_lshlrev_b32 v{T}, 3, v0
    v_add_u32 v{T}, {Z2_LDS_STAT}, v{T}
    ds_write_b64 v{T}, {vr(X,2)}
    v_lshrrev_b32 v{T+1}, 1, v{G_VL16}
    v_add_u32 v{T+1}, {Z2_LDS_STAT}, v{T+1}
    s_waitcnt lgkmcnt(0)
    s_barrier
    ds_read_b64 {vr(X,2)}, v{T+1}
    ds_read_b64 {vr(X+2,2)}, v{T+1} offset:512
    ds_read_b64 {vr(X+4,2)}, v{T+1} offset:1024
    ds_read_b64 {vr(X+6,2)}, v{T+1} offset:1536
    s_mov_b32 s{G_ST}, {f32(1.0/896):#x}
    s_waitcnt lgkmcnt(0)
    v_add_f32 v{X}, v{X}, v{X+2}
    v_add_f32 v{X+1}, v{X+1}, v{X+3}
    v_add_f32 v{X+4}, v{X+4}, v{X+6}
    v_add_f32 v{X+5}, v{X+5}, v{X+7}
    v_add_f32 v{X}, v{X}, v{X+4}
    v_add_f32 v{X+1}, v{X+1}, v{X+5}
    v_mul_f32 v{X}, s{G_ST}, v{X}            ; mean
    v_mul_f32 v{X+1}, s{G_ST}, v{X+1}        ; E[x2]
    v_fma_f32 v{X+1}, -v{X}, v{X}, v{X+1}    ; var
    v_max_f32 v{X+1}, 0, v{X+1}
    v_add_f32 v{X+1}, 0x3727c5ac, v{X+1}
    v_rsq_f32 v{X+1}, v{X+1}
    s_nop 0
    v_mul_f32 v{X}, v{X}, v{X+1}             ; mean*rstd
    s_nop 1
    """)
    for q in range(NQ):
        A(f"v_mov_b32_dpp v{SUM+q}, v{X} row_newbcast:{q} row_mask:0xf bank_mask:0xf")
        A(f"v_mov_b32_dpp v{SQ+q}, v{X+1} row_newbcast:{q} row_mask:0xf bank_mask:0xf")
    A(f"""
    s_mul_i32 s{G_ST}, s{G_SWV}, {14*65536}
    s_mul_i32 s{G_ST+1}, s{S_RB}, {c.np*512}
    s_add_u32 s{G_ST}, s{G_ST}, s{G_ST+1}
    s_add_u32 s{G_ST}, s{G_ST}, {WS_Z2}
    """)
    n = 0
    for j in range(14):
        A(f"s_add_u32 s{G_ST+1}, s{G_ST}, {j*65536}")
        for ip in range(c.np // 2):
            b = X + (n % 3) * 12; n += 1
            for e in range(8):
                q = ip * 8 + e
                A(f"v_accvgpr_read_b32 v{b+e}, a{acc(c,q//4,j)+q%4}")
            for e in range(8):
                q = ip * 8 + e
                A(f"v_fma_f32 v{b+e}, v{b+e}, v{SQ+q}, -v{SUM+q}")
            for q in range(4): A(f"v_cvt_pk_bf16_f32 v{b+8+q}, v{b+2*q}, v{b+2*q+1}")
            A(f"buffer_store_dwordx4 {vr(b+8,4)}, v{G_VL16}, s[{G_SP}:{G_SP+3}], s{G_ST+1} offen offset:{ip*1024} {st}")

def z_kernel(A):
    A.raw(kernel_head("z_kernel"))
    A("s_cmp_ge_u32 s2, 88\ns_cbranch_scc1 L_z_exit")
    load_ptr(A, 4, "ws"); load_ptr(A, 16, "win")
    wave_id(A); gelu_consts(A)
    A("s_waitcnt lgkmcnt(0)")
    srd(A, G_SP, 4, WS_SIZE); srd(A, G_SW, 16, 512 * 3584)
    A("s_cmp_ge_u32 s2, 32\ns_cbranch_scc1 L_z_1")
    gemm_setup_addr(A, C_Z2, 3584)
    A(f"s_mov_b32 s{S_RB}, s2")
    z2_tile(A)
    A("s_branch L_z_exit")
    A.label("L_z_1")
    gemm_setup_addr(A, C_Z1, 3584)
    A(f"s_sub_u32 s3, s2, 32\ns_and_b32 s{S_RB}, s3, 7\ns_lshr_b32 s{S_HD}, s3, 3")
    z1_tile(A)
    A.label("L_z_exit")
    A("s_waitcnt vmcnt(0)\ns_endpgm")
    return kernel_desc("z_kernel", 480, 64, 256)

C_SP = GemmCfg(np=2, nw=8, wp=4, ww=1, orient="PW", wkind="rm", BK=64, NS=6, RW=4, PD=5)
S_BSP = 56
def sp_tile(A, st="", ld=""):
    c = C_SP
    A(f"""
    s_lshl_b32 s{G_SPOFF}, s{S_HD}, 2
    s_add_u32 s{G_SPOFF}, s{G_SPOFF}, s{G_SWV}
    s_lshl_b32 s{G_SPOFF}, s{G_SPOFF}, 17        ; 2 f tiles * 65536
    s_add_u32 s{G_SPOFF}, s{G_SPOFF}, {WS_Z2}
    s_mul_i32 s{G_SWOFF}, s{S_RB}, {c.nw*16*4096}
    """)
    gemm_mainloop(A, c, 64, 65536, 4096, sc=ld)
    A(f"""
    s_mul_i32 s{G_ST}, s{S_RB}, {c.nw*28672}
    s_lshl_b32 s{G_ST+1}, s{S_HD}, 2
    s_add_u32 s{G_ST+1}, s{G_ST+1}, s{G_SWV}
    s_lshl_b32 s{G_ST+1}, s{G_ST+1}, 10
    s_add_u32 s{G_ST}, s{G_ST}, s{G_ST+1}
    v_and_b32 v{G_VT}, 15, v0
    v_lshlrev_b32 v{G_VT}, 1, v{G_VT}
    s_mul_i32 s{G_ST+2}, s{S_RB}, {c.nw*32}
    s_mov_b32 s{G_ST+3}, 0xffff0000
    """)
    Z = 48; Bv = 112; X = 128
    for j in range(c.nw):
        A(f"s_add_u32 s{G_ST+1}, s{G_ST}, {WS_Z1 + j*28672}")
        A(f"buffer_load_dwordx4 {vr(Z+4*j,4)}, v{G_VL16}, s[{G_SP}:{G_SP+3}], s{G_ST+1} offen {ld}")
        A(f"buffer_load_ushort v{Bv+j}, v{G_VT}, s[{S_BSP}:{S_BSP+3}], s{G_ST+2} offen offset:{j*32}")
    for j in range(c.nw):
        b = X + (j % 3) * 20
        A(f"s_waitcnt vmcnt({2*(c.nw-1-j) + j})")
        for r in range(4):
            A(f"v_accvgpr_read_b32 v{b+r}, a{acc(c,0,j)+r}")
            A(f"v_accvgpr_read_b32 v{b+4+r}, a{acc(c,1,j)+r}")
        A(f"v_lshlrev_b32 v{Bv+j}, 16, v{Bv+j}")
        for q in range(4):
            A(f"v_lshlrev_b32 v{b+8+2*q}, 16, v{Z+4*j+q}")
            A(f"v_and_b32 v{b+9+2*q}, s{G_ST+3}, v{Z+4*j+q}")
        for e in range(8): A(f"v_add_f32 v{b+e}, v{b+e}, v{Bv+j}")
        for e in range(8): A(f"v_mul_f32 v{b+e}, v{b+e}, v{b+8+e}")
        for q in range(4): A(f"v_cvt_pk_bf16_f32 v{b+16+q}, v{b+2*q}, v{b+2*q+1}")
        A(f"s_add_u32 s{G_ST+1}, s{G_ST}, {WS_U + j*28672}")
        A(f"buffer_store_dwordx4 {vr(b+16,4)}, v{G_VL16}, s[{G_SP}:{G_SP+3}], s{G_ST+1} offen {st}")

def sp_kernel(A):
    A.raw(kernel_head("sp_kernel"))
    A("s_cmp_ge_u32 s2, 56\ns_cbranch_scc1 L_sp_exit")
    load_ptr(A, 4, "ws"); load_ptr(A, 16, "wsp"); load_ptr(A, 18, "bsp")
    wave_id(A)
    A("s_waitcnt lgkmcnt(0)")
    srd(A, G_SP, 4, WS_SIZE); srd(A, G_SW, 16, 2048 * 4096); srd(A, S_BSP, 18, 4096)
    gemm_setup_addr(A, C_SP, 4096)
    A(f"s_and_b32 s{S_RB}, s2, 7\ns_lshr_b32 s{S_HD}, s2, 3")
    sp_tile(A)
    A.label("L_sp_exit")
    A("s_waitcnt vmcnt(0)\ns_endpgm")
    return kernel_desc("sp_kernel", 384, 64, 256)

def attn_task(A, s_seg, s_head, ld="", st="", mid=None):
    Qf, Kf, KM, Vf, VM, S, O, T = 8, 40, 72, 88, 120, 136, 160, 192
    A(f"""
    s_lshl_b32 s42, s{s_seg}, 5
    s_add_u32 s42, s42, s{s_head}          ; sh
    s_lshl_b32 s43, s42, 13
    s_add_u32 s43, s43, {WS_Q}
    s_add_u32 s44, s43, 4096
    s_lshl_b32 s45, s42, 14
    s_add_u32 s45, s45, {WS_KV}
    s_add_u32 s46, s45, 4096
    s_lshl_b32 s47, s42, 11
    s_add_u32 s47, s47, {WS_KM}
    """)
    for f in range(8): A(f"buffer_load_dwordx4 {vr(Qf+4*f,4)}, v1, s[8:11], s{43 + f//4} offen offset:{(f%4)*1024} {ld}")
    for f in range(8): A(f"buffer_load_dwordx4 {vr(Kf+4*f,4)}, v1, s[8:11], s{45 + f//4} offen offset:{(f%4)*1024} {ld}")
    A(f"""
    s_add_u32 s45, s45, 8192
    s_add_u32 s46, s46, 8192
    s_lshl_b32 s44, s42, 12
    s_add_u32 s44, s44, {WS_VM}
    """)
    for f in range(8): A(f"buffer_load_dwordx4 {vr(Vf+4*f,4)}, v1, s[8:11], s{45 + f//4} offen offset:{(f%4)*1024} {ld}")
    def mm(d, a, b, first):
        A(f"v_mfma_f32_16x16x32_bf16 {vr(d,4)}, {vr(a,4)}, {vr(b,4)}, {'0' if first else vr(d,4)}")
    A("s_waitcnt vmcnt(8)")
    for kp in range(4):
        mm(S + 4, Kf + 4 * kp, Qf + 4 * kp, kp == 0)
        mm(S + 16, Kf + 4 * kp, Qf + (4 + kp) * 4, kp == 0)
        mm(S + 20, Kf + (4 + kp) * 4, Qf + (4 + kp) * 4, kp == 0)
    if mid: mid(A)
    for f in range(4): A(f"buffer_load_dwordx4 {vr(KM+4*f,4)}, v2, s[8:11], s47 offen offset:{f*512} {ld}")
    for f in range(4): A(f"buffer_load_dwordx4 {vr(VM+4*f,4)}, v1, s[8:11], s44 offen offset:{f*1024} {ld}")
    for kp in range(4):
        A(f"s_waitcnt vmcnt({7-kp})")
        for Tq in range(2): mm(S + Tq * 12, KM + 4 * kp, Qf + (Tq * 4 + kp) * 4, kp == 0)
    A(f"v_mov_b32 v{T+8}, 0xf149f2ca\ns_nop 7")
    A(f"""
    s_lshl_b32 s43, s{s_seg}, 18
    s_lshl_b32 s44, s{s_head}, 12
    s_add_u32 s43, s43, s44
    s_add_u32 s43, s43, {WS_OX}
    """)
    for Tq in range(2):
        Sb = S + Tq * 12
        dg = Sb + 4 + 4 * Tq
        for r in range(4): A(f"v_cndmask_b32 v{dg+r}, v{T+8}, v{dg+r}, s[{60+2*r}:{61+2*r}]")
        nv = 8 if Tq == 0 else 12
        M, M2, L, L2 = T, T + 1, T + 2, T + 3
        A(f"v_max3_f32 v{M}, v{Sb}, v{Sb+1}, v{Sb+2}")
        A(f"v_max3_f32 v{M2}, v{Sb+3}, v{Sb+4}, v{Sb+5}")
        A(f"v_max3_f32 v{M}, v{M}, v{Sb+6}, v{Sb+7}")
        if nv == 12:
            A(f"v_max3_f32 v{M2}, v{M2}, v{Sb+8}, v{Sb+9}")
            A(f"v_max3_f32 v{M}, v{M}, v{Sb+10}, v{Sb+11}")
        A(f"""
        v_max_f32 v{M}, v{M}, v{M2}
        v_mov_b32 v{M2}, v{M}
        s_nop 1
        v_permlane16_swap_b32 v{M}, v{M2}
        v_max_f32 v{M}, v{M}, v{M2}
        v_mov_b32 v{M2}, v{M}
        s_nop 1
        v_permlane32_swap_b32 v{M}, v{M2}
        v_max_f32 v{M}, v{M}, v{M2}
        v_mul_f32 v{M}, s68, v{M}
        """)
        for i in range(nv): A(f"v_fma_f32 v{Sb+i}, v{Sb+i}, s68, -v{M}")
        for i in range(nv): A(f"v_exp_f32 v{Sb+i}, v{Sb+i}")
        A(f"""
        s_nop 0
        v_add_f32 v{L}, v{Sb}, v{Sb+1}
        v_add_f32 v{L2}, v{Sb+2}, v{Sb+3}
        v_add_f32 v{L}, v{L}, v{L2}
        v_mul_f32 v{L}, 0.5, v{L}
        """)
        for i in range(4, nv): A(f"v_add_f32 v{L}, v{L}, v{Sb+i}")
        A(f"""
        v_mov_b32 v{L2}, v{L}
        s_nop 1
        v_permlane16_swap_b32 v{L}, v{L2}
        v_add_f32 v{L}, v{L}, v{L2}
        v_mov_b32 v{L2}, v{L}
        s_nop 1
        v_permlane32_swap_b32 v{L}, v{L2}
        v_add_f32 v{L}, v{L}, v{L2}
        v_rcp_f32 v{L}, v{L}
        s_nop 0
        """)
        for i in range(nv): A(f"v_mul_f32 v{Sb+i}, v{Sb+i}, v{L}")
        PM, PX = T + 4, T + 12
        A(f"v_cvt_pk_bf16_f32 v{PM}, v{Sb}, v{Sb+1}\nv_cvt_pk_bf16_f32 v{PM+1}, v{Sb+2}, v{Sb+3}")
        A(f"v_cvt_pk_bf16_f32 v{PX}, v{Sb+4}, v{Sb+5}\nv_cvt_pk_bf16_f32 v{PX+1}, v{Sb+6}, v{Sb+7}")
        if nv == 12:
            A(f"v_cvt_pk_bf16_f32 v{PX+2}, v{Sb+8}, v{Sb+9}\nv_cvt_pk_bf16_f32 v{PX+3}, v{Sb+10}, v{Sb+11}")
        else:
            A(f"v_mov_b32 v{PX+2}, 0\nv_mov_b32 v{PX+3}, 0")
        A("s_waitcnt vmcnt(0)" if Tq == 0 else "s_nop 1")
        for f in range(8):
            A(f"v_mfma_f32_16x16x32_bf16 {vr(O+4*f,4)}, {vr(Vf+4*f,4)}, {vr(PX,4)}, 0")
        for f in range(8):
            A(f"v_mfma_f32_16x16x16_bf16 {vr(O+4*f,4)}, {vr(VM+2*f,2)}, {vr(PM,2)}, {vr(O+4*f,4)}")
        A("s_nop 7")
        for w in range(4):
            d = T + 16 + 4 * w
            for r in range(4): A(f"v_cvt_pk_bf16_f32 v{d+r}, v{O+8*w+r}, v{O+8*w+4+r}")
            A(f"buffer_store_dwordx4 {vr(d,4)}, v1, s[8:11], s43 offen offset:{w*1024} {st}")
        if Tq == 0: A("s_add_u32 s43, s43, 131072")

def attn_setup(A):
    A(f"""
    v_and_b32 v3, 63, v0
    v_lshlrev_b32 v1, 4, v3
    v_bfe_u32 v4, v0, 2, 2
    v_and_b32 v5, 1, v0
    v_lshl_add_u32 v4, v4, 1, v5
    v_bfe_u32 v5, v0, 4, 2            ; g
    v_lshlrev_b32 v2, 6, v4
    v_lshl_add_u32 v2, v5, 4, v2
    v_and_b32 v4, 15, v0
    v_lshlrev_b32 v5, 2, v5
    s_mov_b32 s68, 0x3e0293ee
    """)
    for r in range(4):
        A(f"v_add_u32 v6, {r}, v5")
        A(f"v_cmp_le_u32 s[{60+2*r}:{61+2*r}], v6, v4")

def attn_kernel(A):
    A.raw(kernel_head("attn_kernel"))
    A("s_cmp_ge_u32 s2, 512\ns_cbranch_scc1 L_at_exit")
    load_ptr(A, 4, "ws")
    A(f"v_lshrrev_b32 v7, 6, v0\ns_nop 0\nv_readfirstlane_b32 s{G_SWV}, v7")
    attn_setup(A)
    A(f"""
    s_lshr_b32 s30, s2, 3
    s_and_b32 s31, s2, 7
    s_lshl_b32 s31, s31, 2
    s_add_u32 s31, s31, s{G_SWV}
    s_waitcnt lgkmcnt(0)
    """)
    srd(A, 8, 4, WS_SIZE)
    attn_task(A, 30, 31)
    A.label("L_at_exit")
    A("s_waitcnt vmcnt(0)\ns_endpgm")
    return kernel_desc("attn_kernel", 224, 80, 224)

C_F1 = GemmCfg(np=1, nw=4, wp=4, ww=1, orient="WP", BK=128, NS=4, RW=4, PD=7, kpat="nat")
C_F2 = GemmCfg(np=1, nw=4, wp=4, ww=1, orient="WP", BK=128, NS=4, RW=4, PD=7, kpat="dd")
def final_tile(A, ld="", wait_u=None, wait_ox=None):
    A(f"""
    s_lshl_b32 s60, s{S_RB}, 2
    s_add_u32 s60, s60, s{G_SWV}
    """)
    srd(A, G_SW, 18, 896 * 1024)
    gemm_setup_addr(A, C_F2, 1024)
    if wait_u: wait_u(A)
    A(f"""
    s_mul_i32 s{G_SPOFF}, s60, 28672
    s_add_u32 s{G_SPOFF}, s{G_SPOFF}, {WS_U}
    s_lshl_b32 s{G_SWOFF}, s{S_HD}, 7
    """)
    gemm_mainloop(A, C_F2, 28, 0, 1024, first=True, sc=ld)
    srd(A, G_SW, 16, 4 << 20)
    gemm_setup_addr(A, C_F1, 1024)
    if wait_ox: wait_ox(A)
    A("s_barrier")
    A(f"""
    s_lshl_b32 s{G_SPOFF}, s60, 17
    s_add_u32 s{G_SPOFF}, s{G_SPOFF}, {WS_OX}
    s_lshl_b32 s{G_SWOFF}, s{S_HD}, 7
    """)
    gemm_mainloop(A, C_F1, 128, 0, 1024, first=False, sc=ld)
    srd(A, 64, 20, 2 << 20); srd(A, 68, 22, 2 << 20)
    A(f"""
    v_and_b32 v{G_VT}, 15, v0
    v_bfe_u32 v{G_VT+1}, v0, 4, 2
    v_lshlrev_b32 v{G_VT}, 10, v{G_VT}
    v_lshl_add_u32 v{G_VT}, v{G_VT+1}, 3, v{G_VT}
    s_lshl_b32 s61, s60, 14
    s_lshl_b32 s62, s{S_HD}, 7
    s_add_u32 s61, s61, s62
    s_mov_b32 s62, 0xffff0000
    """)
    X = 48
    for j in range(4): A(f"buffer_load_dwordx2 {vr(X+2*j,2)}, v{G_VT}, s[64:67], s61 offen offset:{j*32}")
    A("s_nop 7")
    for j in range(4):
        b = 60 + j * 10
        for r in range(4): A(f"v_accvgpr_read_b32 v{b+r}, a{4*j+r}")
        A("s_waitcnt vmcnt(3)")
        A(f"""
        v_lshlrev_b32 v{b+4}, 16, v{X+2*j}
        v_and_b32 v{b+5}, s62, v{X+2*j}
        v_lshlrev_b32 v{b+6}, 16, v{X+2*j+1}
        v_and_b32 v{b+7}, s62, v{X+2*j+1}
        v_add_f32 v{b}, v{b}, v{b+4}
        v_add_f32 v{b+1}, v{b+1}, v{b+5}
        v_add_f32 v{b+2}, v{b+2}, v{b+6}
        v_add_f32 v{b+3}, v{b+3}, v{b+7}
        v_cvt_pk_bf16_f32 v{b+8}, v{b}, v{b+1}
        v_cvt_pk_bf16_f32 v{b+9}, v{b+2}, v{b+3}
        buffer_store_dwordx2 {vr(b+8,2)}, v{G_VT}, s[68:71], s61 offen offset:{j*32}
        """)

WS_ACC = WS_YB
C_S1 = GemmCfg(np=1, nw=4, wp=4, ww=1, orient="PW", BK=128, NS=8, early=False, RW=4, PD=31, kpat="nat")
C_S2 = GemmCfg(np=1, nw=4, wp=4, ww=1, orient="PW", BK=128, NS=8, early=False, RW=4, PD=15, kpat="dd")
def final_split(A, kind, ld="", wait=None, ustore=True):
    A(f"""
    s_lshl_b32 s60, s{S_RB}, 2
    s_add_u32 s60, s60, s{G_SWV}
    """)
    if kind == "U":
        srd(A, G_SW, 18, 896 * 1024)
        gemm_setup_addr(A, C_S2, 1024)
        if wait: wait(A)
        A(f"""
        s_mul_i32 s{G_SPOFF}, s60, 28672
        s_add_u32 s{G_SPOFF}, s{G_SPOFF}, {WS_U}
        s_lshl_b32 s{G_SWOFF}, s{S_HD}, 7
        """)
        gemm_mainloop(A, C_S2, 28, 0, 1024, first=True, sc=ld)
    else:
        srd(A, G_SW, 16, 4 << 20)
        gemm_setup_addr(A, C_S1, 1024)
        A(f"""
        s_lshl_b32 s{G_SPOFF}, s60, 17
        s_lshl_b32 s61, s63, 15
        s_add_u32 s{G_SPOFF}, s{G_SPOFF}, s61
        s_add_u32 s{G_SPOFF}, s{G_SPOFF}, {WS_OX}
        s_lshl_b32 s{G_SWOFF}, s{S_HD}, 7
        s_lshl_b32 s61, s63, 20
        s_add_u32 s{G_SWOFF}, s{G_SWOFF}, s61
        """)
        gemm_mainloop(A, C_S1, 32, 0, 1024, first=True, sc=ld, pre_p=wait)
    A(f"""
    v_and_b32 v{G_VT}, 15, v0
    v_bfe_u32 v{G_VT+1}, v0, 4, 2
    v_lshlrev_b32 v{G_VT}, 2, v{G_VT}
    v_lshl_add_u32 v{G_VT}, v{G_VT+1}, 13, v{G_VT}
    s_lshl_b32 s61, s60, 15
    s_lshl_b32 s62, s{S_HD}, 8
    s_add_u32 s61, s61, s62
    s_add_u32 s61, s61, {WS_ACC}
    s_add_u32 s62, s61, 4096
    s_nop 3
    """)
    for r in range(4):
        for j in range(4):
            op = "buffer_store_dword" if (kind == "U" and ustore) else "buffer_atomic_add_f32"
            A(f"{op} a{4*j+r}, v{G_VT}, s[{G_SP}:{G_SP+3}], s{61 + r//2} offen offset:{(r%2)*2048 + j*64}" + (" sc1" if op[7] == "s" else ""))

def final_finish(A):
    srd(A, 64, 20, 2 << 20); srd(A, 68, 22, 2 << 20)
    X = 48; Y = 64
    A(f"""
    v_lshrrev_b32 v{G_VT}, 2, v0
    v_and_b32 v{G_VT+1}, 3, v0
    v_lshlrev_b32 v{G_VT}, 10, v{G_VT}
    v_lshl_add_u32 v{G_VT+1}, v{G_VT+1}, 5, v{G_VT}
    v_lshlrev_b32 v{G_VT}, 1, v{G_VT+1}
    s_lshl_b32 s62, s{S_RB}, 16
    s_lshl_b32 s61, s{S_HD}, 7
    s_add_u32 s62, s62, s61
    s_lshl_b32 s61, s62, 1
    s_add_u32 s61, s61, {WS_ACC}
    s_mov_b32 s63, 0xffff0000
    """)
    for j in range(4):
        A(f"buffer_load_dwordx4 {vr(Y+4*j,4)}, v{G_VT}, s[{G_SP}:{G_SP+3}], s61 offen offset:{j*16} sc1")
    for j in range(2):
        A(f"buffer_load_dwordx4 {vr(X+4*j,4)}, v{G_VT+1}, s[64:67], s62 offen offset:{j*16}")
    A("s_waitcnt vmcnt(0)")
    for q in range(8):
        A(f"""
        v_lshlrev_b32 v96, 16, v{X+q}
        v_and_b32 v97, s63, v{X+q}
        v_add_f32 v96, v96, v{Y+2*q}
        v_add_f32 v97, v97, v{Y+2*q+1}
        v_cvt_pk_bf16_f32 v{X+q}, v96, v97
        """)
    for j in range(2):
        A(f"buffer_store_dwordx4 {vr(X+4*j,4)}, v{G_VT+1}, s[68:71], s62 offen offset:{j*16}")

def final_kernel(A):
    A.raw(kernel_head("final_kernel"))
    A("s_cmp_ge_u32 s2, 256\ns_cbranch_scc1 L_f_exit")
    load_ptr(A, 4, "ws"); load_ptr(A, 16, "wo"); load_ptr(A, 18, "wout"); load_ptr(A, 20, "x"); load_ptr(A, 22, "out")
    wave_id(A)
    A(f"s_lshr_b32 s{S_RB}, s2, 3\ns_and_b32 s{S_HD}, s2, 7\ns_waitcnt lgkmcnt(0)")
    srd(A, G_SP, 4, WS_SIZE)
    final_tile(A)
    A.label("L_f_exit")
    A("s_waitcnt vmcnt(0)\ns_endpgm")
    return kernel_desc("final_kernel", 128, 80, 112)

def build(launches, kernel_fns, path):
    A = Asm()
    for name, grid, lds in launches:
        A.raw(f"; @launch kernel={name} grid=({grid},1,1) block=(256,1,1) lds={lds}")
    A.raw('.amdgcn_target "amdgcn-amd-amdhsa--gfx950"\n.text')
    descs = []
    for fn in kernel_fns:
        descs.append(fn(A))
    for d in descs: A.raw(d)
    open(path, "w").write(A.text())

if __name__ == "__main__":
    build([("prep_kernel", 160, 0), ("qkv_kernel", 768, 65536)], [prep_kernel, qkv_kernel], "k1.s")
    build([("prep_kernel", 160, 0), ("qkv_kernel", 768, 65536), ("z_kernel", 88, Z2_LDS_STAT + 2048), ("sp_kernel", 56, 131072), ("attn_kernel", 512, 0), ("final_kernel", 256, 65536)],
          [prep_kernel, qkv_kernel, z_kernel, sp_kernel, attn_kernel, final_kernel], "k2.s")
```

```python
from kernels import *
import chain as CH
import kernels as K_
K_.C_Z2 = C_Z2 = GemmCfg(np=4, nw=14, wp=1, ww=4, orient="PW", BK=32, NS=2, early=False, RW=4, PD=2)
K_.C_SP = C_SP = GemmCfg(np=2, nw=16, wp=4, ww=1, orient="PW", wkind="rm", BK=64, NS=4, RW=4, PD=3)
import chain8 as CH2

F_XCC = 0
F_DEC = 8 * 128
F_TICK = 9 * 128
F_ZD = 10 * 128
F_CH2 = 11 * 128
F_WL = 12 * 128
F_KV = 16 * 128
F_Q = 24 * 128
F_U = 32 * 128
F_PR = 40 * 128
F_OX = 72 * 128
F_FIN = 200 * 128
LDS_MBOX = CH.LDS_END
LDS_MAIN = LDS_MBOX + 64
S_MODE = 31
S_FL = 84
S_TK = 88
S_GO = 89
S_HELD = 92
PSLEEP = 2
LSLEEP = 24
OSLEEP = 8
GATE = 96
PO_START = 1168

def wg_atomic(A, off, val, dst, op="add", val2=None):
    L = A.newlabel("AT")
    A(f"s_cmp_lg_u32 s{G_SWV}, 0\ns_cbranch_scc1 {L}")
    A(f"v_mov_b32 v2, {off}" if isinstance(off, int) else f"v_mov_b32 v2, {off}")
    A(f"v_mov_b32 v4, {val}")
    if op == "cas": A(f"v_mov_b32 v5, {val2}")
    A(f"s_mov_b32 s{dst}, {WS_FLAG}")
    A("s_mov_b64 exec, 1")
    if op == "add":
        A(f"buffer_atomic_add v4, v2, s[{S_FL}:{S_FL+3}], s{dst} offen sc0 sc1")
    elif op == "cas":
        A(f"buffer_atomic_cmpswap v[4:5], v2, s[{S_FL}:{S_FL+3}], s{dst} offen sc0 sc1")
    elif op == "load":
        A(f"buffer_load_dword v4, v2, s[{S_FL}:{S_FL+3}], s{dst} offen sc1")
    A(f"v_mov_b32 v3, {LDS_MBOX}")
    A("s_waitcnt vmcnt(0)")
    A("ds_write_b32 v3, v4")
    A("s_mov_b64 exec, -1")
    A("s_waitcnt lgkmcnt(0)")
    A.label(L)
    A(f"""
    s_barrier
    v_mov_b32 v3, {LDS_MBOX}
    ds_read_b32 v4, v3
    s_waitcnt lgkmcnt(0)
    v_readfirstlane_b32 s{dst}, v4
    s_barrier
    """)

def signal(A, off_sgpr_or_int):
    L = A.newlabel("SG")
    A("s_waitcnt vmcnt(0)\ns_barrier")
    A(f"s_cmp_lg_u32 s{G_SWV}, 0\ns_cbranch_scc1 {L}")
    A(f"v_mov_b32 v2, {off_sgpr_or_int}")
    A(f"v_mov_b32 v4, 1\ns_mov_b32 s{G_ST}, {WS_FLAG}\ns_mov_b64 exec, 1")
    A(f"buffer_atomic_add v4, v2, s[{S_FL}:{S_FL+3}], s{G_ST} offen sc1")
    A("s_mov_b64 exec, -1")
    A.label(L)

def wait_flag(A, off, target, tmp_v, tmp_s, srd_s, sleep=2, timeout=400000):
    L = A.newlabel("WF"); L2 = A.newlabel("WFd")
    A(f"v_mov_b32 v{tmp_v}, {off}")
    A(f"s_mov_b32 s{tmp_s+1}, 0")
    A.label(L)
    A(f"""
    buffer_load_dword v{tmp_v+1}, v{tmp_v}, s[{srd_s}:{srd_s+3}], 0 offen sc1
    s_add_u32 s{tmp_s+1}, s{tmp_s+1}, 1
    s_waitcnt vmcnt(0)
    v_readfirstlane_b32 s{tmp_s}, v{tmp_v+1}
    s_cmp_ge_u32 s{tmp_s}, {target}
    s_cbranch_scc1 {L2}
    s_cmp_gt_u32 s{tmp_s+1}, {timeout}
    s_cbranch_scc1 {L2}
    s_sleep {sleep}
    s_branch {L}
    """)
    A.label(L2)

def wait_wg(A, off, target, tmp_v, tmp_s, long=32, short=2, timeout=400000):
    L = A.newlabel("WW"); L2 = A.newlabel("WWd"); L3 = A.newlabel("WWs")
    A(f"s_cmp_lg_u32 s{G_SWV}, 0\ns_cbranch_scc1 {L2}")
    A(f"v_mov_b32 v{tmp_v}, {off}")
    A(f"s_mov_b32 s{tmp_s+1}, 0")
    A.label(L)
    A(f"""
    buffer_load_dword v{tmp_v+1}, v{tmp_v}, s[{S_FL}:{S_FL+3}], 0 offen sc1
    s_add_u32 s{tmp_s+1}, s{tmp_s+1}, 1
    s_waitcnt vmcnt(0)
    v_readfirstlane_b32 s{tmp_s}, v{tmp_v+1}
    s_cmp_ge_u32 s{tmp_s}, {target}
    s_cbranch_scc1 {L2}
    s_cmp_gt_u32 s{tmp_s+1}, {timeout}
    s_cbranch_scc1 {L2}
    s_cmp_lg_u32 s{tmp_s}, 0
    s_cbranch_scc1 {L3}
    s_sleep {long}
    s_branch {L}
    """)
    A.label(L3)
    A(f"s_sleep {short}\ns_branch {L}")
    A.label(L2)
    A("s_waitcnt vmcnt(0)\ns_barrier")

def order_ranges():
    R = []
    R.append((64, "KV", 0)); R.append((32, "Z2", 0)); R.append((56, "Z1", 0)); R.append((64, "KV", 1))
    R.append((256, "KV", 2)); R.append((56, "SP", 0)); R.append((128, "KV", 6)); R.append((256, "Q", 0))
    R.append((256, "FU", 0))
    R.append((1536, "PO", 0))
    return R

def dbg_time(A, slot, cond_h0=True, op="store", v=124):
    L = A.newlabel("DT")
    if cond_h0:
        A(f"s_cmp_lg_u32 s{CH.S_H}, 0\ns_cbranch_scc1 {L}")
    A(f"s_cmp_lg_u32 s{G_SWV}, 0\ns_cbranch_scc1 {L}")
    A(f"""
    s_memrealtime s[94:95]
    s_waitcnt lgkmcnt(0)
    v_mov_b32 v{v}, {WS_FLAG + 0x10100 + slot*4}
    v_mov_b32 v{v+1}, s94
    s_mov_b64 exec, 1
    """)
    if op == "store": A(f"buffer_store_dword v{v+1}, v{v}, s[{S_FL}:{S_FL+3}], 0 offen")
    else: A(f"buffer_atomic_umax v{v+1}, v{v}, s[{S_FL}:{S_FL+3}], 0 offen")
    A("s_mov_b64 exec, -1\ns_waitcnt vmcnt(0)")
    A.label(L)

def main_kernel(chain_kw={}, force_abort=False, dbg=False, no_cand=False):
    def fn(A):
        A.raw(kernel_head("main_kernel"))
        A("s_cmp_lt_u32 s2, 256\ns_cbranch_scc1 L_m_start\ns_endpgm")
        A.label("L_m_start")
        A(f"s_mov_b32 s{S_HELD}, 0\ns_mov_b32 s93, 0")
        load_ptr(A, 80, "ws")
        wave_id(A)
        A(f"s_getreg_b32 s3, hwreg(HW_REG_XCC_ID)\ns_and_b32 s3, s3, 7\ns_mov_b32 s{S_GO}, 0\ns_waitcnt lgkmcnt(0)")
        srd(A, S_FL, 80, WS_SIZE)
        A(f"s_cmp_lg_u32 s3, {9 if no_cand else 0}\ns_cbranch_scc1 L_m_work")
        wg_atomic(A, F_XCC, 1, CH.S_H)
        A(f"s_cmp_ge_u32 s{CH.S_H}, 32\ns_cbranch_scc1 L_m_work")
        A(f"s_mov_b32 s{S_MODE}, 0")
        A.label("L_m_chain")
        if dbg: dbg_time(A, 0)
        A(f"""
        s_load_dwordx4 s[72:75], s[0:1], 16
        s_load_dwordx4 s[76:79], s[0:1], 32
        s_waitcnt lgkmcnt(0)
        """)
        CH.chain_setup(A)
        CH.chain_load_weights(A)
        A(f"s_cmp_lg_u32 s{S_MODE}, 0\ns_cbranch_scc1 L_m_go")
        A(f"""
        s_cmp_lg_u32 s{G_SWV}, 3
        s_cbranch_scc1 L_m_wl
        v_mov_b32 v16, {WS_FLAG + F_WL}
        v_mov_b32 v17, 1
        s_mov_b64 exec, 1
        buffer_atomic_add v17, v16, s[{S_FL}:{S_FL+3}], 0 offen sc1
        s_mov_b64 exec, -1
        """)
        A.label("L_m_wl")
        A(f"""
        v_mov_b32 v16, {WS_FLAG + F_XCC}
        s_mov_b32 s{CH.S_CNT}, 0
        """)
        A.label("L_m_cnt")
        A(f"""
        buffer_load_dword v17, v16, s[{S_FL}:{S_FL+3}], 0 offen sc1
        s_add_u32 s{CH.S_CNT}, s{CH.S_CNT}, 1
        s_waitcnt vmcnt(0)
        v_readfirstlane_b32 s{CH.S_T0}, v17
        s_mov_b32 s{CH.S_T1}, 1
        s_cmp_ge_u32 s{CH.S_T0}, {33 if force_abort else 32}
        s_cbranch_scc1 L_m_dec
        s_mov_b32 s{CH.S_T1}, 2
        s_cmp_gt_u32 s{CH.S_CNT}, 200
        s_cbranch_scc1 L_m_dec
        s_sleep 8
        s_branch L_m_cnt
        """)
        A.label("L_m_dec")
        A(f"""
        v_mov_b32 v16, {WS_FLAG + F_DEC}
        v_mov_b32 v18, s{CH.S_T1}
        v_mov_b32 v19, 0
        s_mov_b64 exec, 1
        buffer_atomic_cmpswap v[18:19], v16, s[{S_FL}:{S_FL+3}], 0 offen sc0 sc1
        s_waitcnt vmcnt(0)
        v_readfirstlane_b32 s{CH.S_T0}, v18
        s_mov_b64 exec, -1
        s_cmp_eq_u32 s{CH.S_T0}, 0
        s_cselect_b32 s{CH.S_T0}, s{CH.S_T1}, s{CH.S_T0}
        s_cmp_eq_u32 s{CH.S_T0}, 1
        s_cbranch_scc1 L_m_go
        s_barrier
        s_branch L_m_work
        """)
        A.label("L_m_go")
        if dbg: dbg_time(A, 1)
        def kv_wait(A, which):
            if which == 0:
                wait_flag(A, WS_FLAG + F_KV, 64, CH2.QF, CH.S_T0, CH.S_WS, sleep=1)
                if dbg: dbg_time(A, 2)
            else:
                L = A.newlabel("KW")
                A(f"""
                s_cmp_lg_u32 s{CH.S_W}, 1
                s_cbranch_scc1 {L}
                s_add_u32 s{CH.S_T2}, s{CH.S_STEP}, 1
                s_and_b32 s{CH.S_T0}, s{CH.S_T2}, 7
                s_cmp_lg_u32 s{CH.S_T0}, 0
                s_cbranch_scc1 {L}
                s_cmp_ge_u32 s{CH.S_T2}, 64
                s_cbranch_scc1 {L}
                s_lshl_b32 s{CH.S_T2}, s{CH.S_T2}, 4
                s_add_u32 s{CH.S_T2}, s{CH.S_T2}, {WS_FLAG + F_KV}
                """)
                wait_flag(A, f"s{CH.S_T2}", 64, CH2.QF, CH.S_T0, CH.S_WS, sleep=1)
                A.label(L)
        def prog(A, last):
            L = A.newlabel("PG")
            if last:
                A("s_waitcnt vmcnt(0)\ns_barrier")
                A(f"s_add_u32 s{CH.S_STEP}, s{CH.S_STEP}, 1")
            A(f"""
            s_cmp_lg_u32 s{CH.S_W}, 1
            s_cbranch_scc1 {L}
            s_cmp_eq_u32 s{CH.S_STEP}, 0
            s_cbranch_scc1 {L}
            s_sub_u32 s{CH.S_T2}, s{CH.S_STEP}, 1
            s_lshr_b32 s{CH.S_T2}, s{CH.S_T2}, 1
            s_lshl_b32 s{CH.S_T2}, s{CH.S_T2}, 7
            s_add_u32 s{CH.S_T2}, s{CH.S_T2}, {WS_FLAG + F_PR}
            v_mov_b32 v{CH2.QF}, 0
            v_mov_b32 v{CH2.QF+1}, 1
            s_mov_b64 exec, 1
            buffer_atomic_add v{CH2.QF+1}, v{CH2.QF}, s[{CH.S_WS}:{CH.S_WS+3}], s{CH.S_T2} offen sc1
            s_mov_b64 exec, -1
            """)
            A.label(L)
        A(f"s_cmp_lg_u32 s{S_MODE}, 0\ns_cbranch_scc1 L_m_slow")
        CH2.chain_loop8(A, st="", timeout=300000, kvld="sc1", kv_wait=kv_wait, exp_st="sc1", prog=prog, **chain_kw)
        A("s_branch L_m_cend")
        A.label("L_m_slow")
        kw2 = {k: v for k, v in chain_kw.items() if k not in ("stamps", "trace")}
        CH2.chain_loop8(A, st="sc1", timeout=300000, kvld="sc1", kv_wait=kv_wait, exp_st="sc1", prog=prog, **kw2)
        A.label("L_m_cend")
        if dbg: dbg_time(A, 3)
        if chain_kw.get("trace"):
            A(f"""
            s_cmp_lg_u32 s{CH.S_H}, 0
            s_cbranch_scc1 L_tr_skip
            s_cmp_lg_u32 s{G_SWV}, 0
            s_cbranch_scc1 L_tr_skip
            v_lshrrev_b32 v20, 2, v{CH.V_LANE16}
            s_mov_b32 s3, {WS_FLAG + 0x10000}
            buffer_store_dword v0, v20, s[{CH.S_WS}:{CH.S_WS+3}], s3 offen
            s_waitcnt vmcnt(0)
            """)
            A.label("L_tr_skip")
            A(f"v_lshrrev_b32 v0, 4, v{CH.V_LANE16}\nv_mov_b32 v20, s{G_SWV}\nv_lshl_add_u32 v0, v20, 6, v0")
        A(f"s_mov_b32 s{S_GO}, 1\ns_barrier")
        A.label("L_m_work")
        wave_id(A)
        gelu_consts(A)
        A(f"s_cmp_eq_u32 s{S_HELD}, 1\ns_mov_b32 s{S_HELD}, 0\ns_cbranch_scc1 L_m_disp")
        A.label("L_m_next")
        A(f"s_cmp_eq_u32 s{S_GO}, 1\ns_cbranch_scc1 L_m_tick")
        wg_atomic(A, F_DEC, 0, S_GO, op="load")
        A(f"s_cmp_lg_u32 s{S_GO}, 2\ns_cbranch_scc1 L_m_tick")
        wg_atomic(A, F_CH2, 1, CH.S_H)
        A(f"s_mov_b32 s{S_GO}, 1\ns_mov_b32 s{S_MODE}, 1\ns_cmp_lt_u32 s{CH.S_H}, 32\ns_cbranch_scc1 L_m_chain")
        A.label("L_m_tick")
        wg_atomic(A, F_TICK, 1, S_TK)
        A(f"s_cmp_eq_u32 s{S_GO}, 1\ns_cbranch_scc1 L_m_disp\ns_cmp_lt_u32 s{S_TK}, {PO_START}\ns_cbranch_scc1 L_m_disp")
        A(f"s_mov_b32 s{S_HELD}, 0")
        A.label("L_m_res")
        wg_atomic(A, F_DEC, 0, S_GO, op="load")
        A(f"""
        s_cmp_eq_u32 s{S_GO}, 1
        s_cbranch_scc1 L_m_res1
        s_cmp_eq_u32 s{S_GO}, 2
        s_cbranch_scc1 L_m_res2
        s_sleep 20
        s_add_u32 s{S_HELD}, s{S_HELD}, 1
        s_cmp_lt_u32 s{S_HELD}, 400
        s_cbranch_scc1 L_m_res
        """)
        wg_atomic(A, F_DEC, 2, S_GO, op="cas", val2=0)
        A("s_branch L_m_res")
        A.label("L_m_res1")
        A(f"s_mov_b32 s{S_HELD}, 0\ns_branch L_m_disp")
        A.label("L_m_res2")
        wg_atomic(A, F_CH2, 1, CH.S_H)
        A(f"s_mov_b32 s{S_GO}, 1\ns_mov_b32 s{S_MODE}, 1\ns_mov_b32 s{S_HELD}, 1\ns_cmp_lt_u32 s{CH.S_H}, 32\ns_cbranch_scc1 L_m_chain\ns_mov_b32 s{S_HELD}, 0")
        A.label("L_m_disp")
        srd(A, G_SP, 80, WS_SIZE)
        A(f"s_cmp_lt_u32 s{S_TK}, {GATE}\ns_cbranch_scc1 L_m_d2\ns_cmp_eq_u32 s93, 1\ns_cbranch_scc1 L_m_d2\ns_mov_b32 s93, 2")
        A.label("L_m_gw")
        wg_atomic(A, F_WL, 0, 3, op="load")
        A(f"s_cmp_ge_u32 s3, 32\ns_cbranch_scc1 L_m_gd\ns_add_u32 s93, s93, 1\ns_cmp_gt_u32 s93, 24\ns_cbranch_scc1 L_m_gd\ns_sleep 24\ns_branch L_m_gw")
        A.label("L_m_gd")
        A("s_mov_b32 s93, 1")
        A.label("L_m_d2")
        start = 0
        for n, kind, base in order_ranges():
            L = A.newlabel("RG")
            A(f"s_cmp_ge_u32 s{S_TK}, {start + n}\ns_cbranch_scc1 {L}")
            A(f"s_sub_u32 s3, s{S_TK}, {start}")
            if kind == "KV":
                A(f"s_add_u32 s3, s3, {base*64}")
            elif kind == "Q":
                A(f"s_add_u32 s3, s3, {base}")
            ljump(A, f"L_w_{kind}", True)
            A.label(L)
            start += n
        if dbg: dbg_time(A, 4, False, "max")
        A("s_waitcnt vmcnt(0)\ns_endpgm")
        A.label("L_w_KV")
        A("s_load_dwordx4 s[16:19], s[0:1], 24")
        gemm_setup_addr(A, C_QK, 8192); qkv_epi_addr(A)
        A(f"s_and_b32 s{S_HD}, s3, 31\ns_lshr_b32 s{S_RB}, s3, 6\ns_bitcmp1_b32 s3, 5\ns_waitcnt lgkmcnt(0)\ns_cbranch_scc1 L_w_V")
        srd(A, G_SW, 16, 4 << 20)
        qkv_tile(A, "K", st="sc1")
        A("s_branch L_w_KVd")
        A.label("L_w_V")
        srd(A, G_SW, 18, 4 << 20)
        qkv_tile(A, "V", st="sc1")
        A.label("L_w_KVd")
        A(f"s_lshl_b32 s3, s{S_RB}, 7\ns_add_u32 s3, s3, {F_KV}")
        signal(A, "s3")
        ljump(A, "L_m_next", False)
        A.label("L_w_Q")
        load_ptr(A, 16, "wq")
        gemm_setup_addr(A, C_QK, 8192)
        A(f"s_and_b32 s{S_HD}, s3, 31\ns_lshr_b32 s{S_RB}, s3, 5\ns_waitcnt lgkmcnt(0)")
        srd(A, G_SW, 16, 4 << 20)
        qkv_tile(A, "Q", st="sc1")
        A(f"s_lshl_b32 s3, s{S_RB}, 7\ns_add_u32 s3, s3, {F_Q}")
        signal(A, "s3")
        ljump(A, "L_m_next", False)
        A.label("L_w_Z2")
        load_ptr(A, 16, "win")
        gemm_setup_addr(A, C_Z2, 3584)
        A(f"s_mov_b32 s{S_RB}, s3\ns_waitcnt lgkmcnt(0)")
        srd(A, G_SW, 16, 512 * 3584)
        z2_tile(A, st="sc1")
        signal(A, F_ZD)
        ljump(A, "L_m_next", False)
        A.label("L_w_Z1")
        load_ptr(A, 16, "win")
        gemm_setup_addr(A, C_Z1, 3584)
        A(f"s_and_b32 s{S_RB}, s3, 7\ns_lshr_b32 s{S_HD}, s3, 3\ns_waitcnt lgkmcnt(0)")
        srd(A, G_SW, 16, 512 * 3584)
        z1_tile(A, st="sc1")
        signal(A, F_ZD)
        ljump(A, "L_m_next", False)
        A.label("L_w_SP")
        load_ptr(A, 16, "wsp"); load_ptr(A, 18, "bsp")
        gemm_setup_addr(A, C_SP, 4096)
        A(f"s_and_b32 s{S_RB}, s3, 7\ns_lshr_b32 s{S_HD}, s3, 3\ns_waitcnt lgkmcnt(0)")
        srd(A, G_SW, 16, 2048 * 4096); srd(A, S_BSP, 18, 4096)
        wait_wg(A, WS_FLAG + F_ZD, 88, G_VT, G_ST, long=32, short=16)
        A("s_barrier")
        sp_tile(A, ld="sc1", st="sc1")
        A(f"s_lshl_b32 s3, s{S_RB}, 7\ns_add_u32 s3, s3, {F_U}")
        signal(A, "s3")
        ljump(A, "L_m_next", False)
        A.label("L_w_PO")
        if dbg:
            A("s_cmp_lg_u32 s3, 0\ns_cbranch_scc1 L_dbg_po")
            dbg_time(A, 5, False)
            A.label("L_dbg_po")
        A(f"""
        s_mul_i32 s30, s3, 1366
        s_lshr_b32 s30, s30, 16            ; grp = s3/48
        s_mul_i32 s31, s30, 48
        s_sub_u32 s31, s3, s31             ; r
        s_mov_b32 s{S_RB}, s30
        s_cmp_ge_u32 s31, 16
        s_cbranch_scc1 L_w_FIN
        """)
        attn_setup(A)
        A(f"s_lshr_b32 s3, s30, 2\ns_lshl_b32 s3, s3, 7\ns_add_u32 s3, s3, {WS_FLAG + F_KV}")
        wait_wg(A, "s3", 64, 8, G_ST, long=32, short=16)
        A(f"s_add_u32 s3, s3, {F_Q - F_KV}")
        wait_wg(A, "s3", 32, 8, G_ST, long=32, short=16)
        A(f"""
        s_lshl_b32 s30, s30, 1
        s_bfe_u32 s3, s31, 0x10001
        s_add_u32 s30, s30, s3             ; seg
        s_lshr_b32 s{S_HD}, s31, 2         ; octet
        s_and_b32 s31, s31, 1
        s_lshl_b32 s3, s{S_HD}, 1
        s_add_u32 s31, s31, s3
        s_lshl_b32 s31, s31, 2
        s_add_u32 s31, s31, s{G_SWV}       ; head
        """)
        def mid(A):
            A(f"s_lshl_b32 s3, s{S_RB}, 7\ns_add_u32 s3, s3, {WS_FLAG + F_PR}")
            wait_wg(A, "s3", 64, 220, 50, long=LSLEEP, short=PSLEEP)
            if dbg: dbg_time(A, 8, False, "max", v=222)
        attn_task(A, 30, 31, ld="sc1", st="sc1", mid=mid)
        if dbg:
            A("s_waitcnt vmcnt(0)")
            dbg_time(A, 6, False, "max")
        A(f"s_lshl_b32 s3, s{S_RB}, 2\ns_add_u32 s3, s3, s{S_HD}\ns_lshl_b32 s3, s3, 7\ns_add_u32 s3, s3, {F_OX}")
        signal(A, "s3")
        ljump(A, "L_m_next", False)
        A.label("L_w_FIN")
        load_ptr(A, 16, "wo"); load_ptr(A, 18, "wout"); load_ptr(A, 20, "x"); load_ptr(A, 22, "out")
        A(f"s_sub_u32 s31, s31, 16\ns_and_b32 s{S_HD}, s31, 7\ns_lshr_b32 s63, s31, 3\ns_waitcnt lgkmcnt(0)")
        def wait_ox(A):
            A(f"s_lshl_b32 s3, s{S_RB}, 3\ns_add_u32 s3, s3, s{S_HD}\ns_lshl_b32 s3, s3, 7\ns_add_u32 s3, s3, {WS_FLAG + F_FIN}")
            wait_wg(A, "s3", 1, G_VT, G_ST + 2, long=16, short=16)
            A(f"s_lshl_b32 s3, s{S_RB}, 2\ns_add_u32 s3, s3, s63\ns_lshl_b32 s3, s3, 7\ns_add_u32 s3, s3, {WS_FLAG + F_OX}")
            wait_wg(A, "s3", 4, G_VT, G_ST + 2, long=OSLEEP, short=PSLEEP)
            if dbg: dbg_time(A, 9, False, "max")
        final_split(A, "OX", ld="sc1", wait=wait_ox)
        A("s_branch L_w_FD")
        A.label("L_w_FU")
        load_ptr(A, 16, "wo"); load_ptr(A, 18, "wout"); load_ptr(A, 20, "x"); load_ptr(A, 22, "out")
        A(f"s_and_b32 s{S_HD}, s3, 7\ns_lshr_b32 s{S_RB}, s3, 3\ns_waitcnt lgkmcnt(0)")
        def wait_u(A):
            A(f"s_lshr_b32 s3, s{S_RB}, 2\ns_lshl_b32 s3, s3, 7\ns_add_u32 s3, s3, {WS_FLAG + F_U}")
            wait_wg(A, "s3", 7, G_VT, G_ST, long=32, short=16)
        final_split(A, "U", ld="sc1", wait=wait_u)
        A.label("L_w_FD")
        A("s_waitcnt vmcnt(0)\ns_barrier")
        if dbg: dbg_time(A, 7, False, "max")
        A(f"s_lshl_b32 s3, s{S_RB}, 3\ns_add_u32 s3, s3, s{S_HD}\ns_lshl_b32 s3, s3, 7\ns_add_u32 s3, s3, {F_FIN}")
        wg_atomic(A, "s3", 1, 63)
        A("s_cmp_lg_u32 s63, 4\ns_cbranch_scc1 L_w_FE")
        final_finish(A)
        A.label("L_w_FE")
        ljump(A, "L_m_next", False)
        return kernel_desc("main_kernel", 512, 102, 256)
    return fn

HDR = open("parallel_sum__memory_aug_recurrent_mem_tr__mixer_gmlp__prompt.s.ref").read().split("; Override launch")[0]
def build_main(path, **kw):
    build([("prep_kernel", 160, 0), ("main_kernel", 256, LDS_MAIN)],
          [prep_kernel, main_kernel(**kw)], path)
    t = open(path).read()
    open(path, "w").write(HDR + t)
if __name__ == "__main__":
    ck = dict(rw=2, pr=3, pw0=12, pw=0, rw2=0, ow2=0, slp=True)
    build_main("m11.s", chain_kw=ck)
    build_main("m11_abort.s", chain_kw=ck, force_abort=True)
    build_main("m11_dbg.s", chain_kw=ck, dbg=True)
    build_main("m11_nocand.s", chain_kw=ck, no_cand=True)
    build_main(f"m11_rt.s", chain_kw=dict(stamps=True, trace=(0, 9, 1), **ck), dbg=True)
    for a, b in [(0, 9)]:
        build_main(f"m11_tr{a}{b}.s", chain_kw=dict(stamps=True, trace=(a, b), **ck), dbg=True)
```
